```python
import torch

def _softmax(x, axis=-1):
    return torch.softmax(x, dim=axis)

def _gelu(x):
    return torch.nn.functional.gelu(x, approximate='tanh')

def _silu(x):
    return torch.nn.functional.silu(x)

def _sigmoid(x):
    return torch.sigmoid(x)

def _layernorm(x, axis=-1, eps=1e-05):
    m = x.mean(dim=axis, keepdim=True)
    v = x.var(dim=axis, keepdim=True, unbiased=False)
    return (x - m) / torch.sqrt(v + eps)

def _scatter_add(tgt, idx, src, axis=0):
    return tgt.clone().index_add_(axis, idx, src)

def _segment_sum(src, seg, n):
    out = torch.zeros((n,) + src.shape[1:], dtype=src.dtype)
    return out.index_add_(0, seg, src)

def _pad(x, pw):
    flat = tuple((v for pair in reversed(pw) for v in pair))
    return torch.nn.functional.pad(x, flat)
kernel_name = 'interleave_layers__ssm_conv_h3__memory_aug_recurrent_mem_tr__prompt'

def setup_inputs():

    _w = lambda a: (lambda t: t.to(torch.bfloat16) if t.is_floating_point() else t)(torch.as_tensor(a))

    def _A_setup():
        B, S, D = (1, 2048, 512)
        ks = 4
        return {'q': _w((lambda *s: torch.randn(*s, dtype=torch.bfloat16) * 0.05)(B, S, D)), 'k': _w((lambda *s: torch.randn(*s, dtype=torch.bfloat16) * 0.2)(B, S, D)), 'v': _w((lambda *s: torch.randn(*s, dtype=torch.bfloat16) * 0.2)(B, S, D)), 'shift_k': _w((lambda *s: torch.randn(*s, dtype=torch.bfloat16) * 0.2)(D, ks) * 0.5), 'ssm_k': _w((lambda *s: torch.randn(*s, dtype=torch.bfloat16) * 0.4)(D, S) * (1.0 / S ** 0.5)), 'ssm_D': _w((lambda *s: torch.randn(*s, dtype=torch.bfloat16) * 0.2)(D))}
    _A_in = _A_setup()

    def _B_setup():
        B, S, Dm = (1, 2048, 512)
        H, Dh = (32, 128)
        M, seg = (8, 32)
        seg = min(seg, S)
        S = S // seg * seg
        return {'x': _w((lambda *s: torch.randn(*s, dtype=torch.bfloat16) * 0.05)(B, S, Dm)), 'mem0': _w((lambda *s: torch.randn(*s, dtype=torch.bfloat16) * 0.2)(B, M, Dm)), 'Wq': _w((lambda *s: torch.randn(*s, dtype=torch.bfloat16) * 1.6)(Dm, H, Dh) * Dm ** (-0.5)), 'Wk': _w((lambda *s: torch.randn(*s, dtype=torch.bfloat16) * 1.6)(Dm, H, Dh) * Dm ** (-0.5)), 'Wv': _w((lambda *s: torch.randn(*s, dtype=torch.bfloat16) * 0.2)(Dm, H, Dh) * Dm ** (-0.5)), 'Wo': _w((lambda *s: torch.randn(*s, dtype=torch.bfloat16) * 0.2)(H, Dh, Dm) * (H * Dh) ** (-0.5)), 'seg_len': seg}
    _B_in = _B_setup()
    return {'A_q': _A_in['q'], 'A_k': _A_in['k'], 'A_v': _A_in['v'], 'A_shift_k': _A_in['shift_k'], 'A_ssm_k': _A_in['ssm_k'], 'A_ssm_D': _A_in['ssm_D'], 'B_x': _B_in['x'], 'B_mem0': _B_in['mem0'], 'B_Wq': _B_in['Wq'], 'B_Wk': _B_in['Wk'], 'B_Wv': _B_in['Wv'], 'B_Wo': _B_in['Wo'], 'B_seg_len': _B_in['seg_len']}

def reference(A_q, A_k, A_v, A_shift_k, A_ssm_k, A_ssm_D, B_x, B_mem0, B_Wq, B_Wk, B_Wv, B_Wo, B_seg_len):

    def _A_ref(q, k, v, shift_k, ssm_k, ssm_D):
        B, S, D = q.shape
        ks = shift_k.shape[-1]
        k_pad = _pad(k, ((0, 0), (ks - 1, 0), (0, 0)))
        k_shift = torch.zeros_like(k)
        for t in range(ks):
            k_shift = k_shift + k_pad[:, t:t + S, :] * shift_k[:, ks - 1 - t][None, None, :]
        kv = k_shift * v
        L = 2 * S
        kv_pad = _pad(kv, ((0, 0), (0, S), (0, 0)))
        kf_pad = _pad(ssm_k, ((0, 0), (0, S)))
        kv_f = (lambda x, axes=(-2, -1): torch.fft.rfft2(x.float(), dim=axes))(kv_pad[:, None, :, :], axes=(1, 2))
        kf_f = (lambda x, axes=(-2, -1): torch.fft.rfft2(x.float(), dim=axes))(kf_pad[:, None, :], axes=(1, 2))
        kf_f = (lambda x, *d: x.permute(*d))(kf_f, 1, 2, 0)
        y_f = kv_f * kf_f[None, :, :, :]
        y = (lambda x, s, axes=(-2, -1): torch.fft.irfft2(x, s=s, dim=axes).to(torch.bfloat16))(y_f, (1, L), axes=(1, 2))[:, 0, :S, :]
        y = y + kv * ssm_D[None, None, :]
        return q * y

    def _B_ref(x, mem0, Wq, Wk, Wv, Wo, seg_len):
        B, S, Dm = x.shape
        H, Dh = (Wq.shape[1], Wq.shape[2])
        M = mem0.shape[1]
        scale = Dh ** (-0.5)
        n_seg = S // seg_len
        L = M + seg_len
        idx = torch.arange(L)
        mask = (idx[:, None] < M) | (idx[:, None] >= idx[None, :])
        mem = mem0
        outs = []
        for s in range(n_seg):
            xs = x[:, s * seg_len:(s + 1) * seg_len, :].clone()
            h = torch.concatenate([mem, xs], axis=1)
            q = torch.einsum('btd,dhe->bhte', h, Wq)
            k = torch.einsum('btd,dhe->bhte', h, Wk)
            v = torch.einsum('btd,dhe->bhte', h, Wv)
            scores = torch.einsum('bhqe,bhke->bhqk', q, k) * scale
            scores = torch.where(mask[None, None], scores, -1000000000.0)
            p = _softmax(scores, axis=-1)
            o = torch.einsum('bhqk,bhke->bhqe', p, v)
            o = torch.einsum('bhte,hed->btd', o, Wo)
            mem = o[:, :M, :].clone()
            outs.append(o[:, M:, :])
        return torch.concatenate(outs, axis=1)
    x = A_q
    x = x + _A_ref(_layernorm(x, axis=-1), A_k, A_v, A_shift_k, A_ssm_k, A_ssm_D)
    x = x + _B_ref(_layernorm(x, axis=-1), B_mem0, B_Wq, B_Wk, B_Wv, B_Wo, B_seg_len)
    x = x + _A_ref(_layernorm(x, axis=-1), A_k, A_v, A_shift_k, A_ssm_k, A_ssm_D)
    x = x + _B_ref(_layernorm(x, axis=-1), B_mem0, B_Wq, B_Wk, B_Wv, B_Wo, B_seg_len)
    return x
```

```python
class Asm:
    def __init__(self):
        self.lines = []
        self._n = 0

    def __call__(self, s=""):
        for ln in s.split("\n"):
            ln = ln.strip()
            if ln:
                self.lines.append(("" if ln.endswith(":") else "    ") + ln)

    def label(self, base="L"):
        self._n += 1
        return f"{base}_{self._n}"

    def text(self):
        return "\n".join(self.lines) + "\n"

    def srd(self, d, base, nbytes):
        self(f"s_mov_b32 s{d}, s{base}")
        self(f"s_and_b32 s{d+1}, s{base+1}, 0xffff")
        self(f"s_mov_b32 s{d+2}, {nbytes:#x}")
        self(f"s_mov_b32 s{d+3}, 0x20000")


def vr(a, n=1):
    return f"v{a}" if n == 1 else f"v[{a}:{a+n-1}]"


def ar(a, n=1):
    return f"a{a}" if n == 1 else f"a[{a}:{a+n-1}]"


def sr(a, n=1):
    return f"s{a}" if n == 1 else f"s[{a}:{a+n-1}]"


def kernel_header(name):
    return (f".text\n.globl {name}\n.p2align 8\n.type {name},@function\n{name}:\n")


def kernel_desc(name, vgpr, accum, sgpr=102, kernarg=128):
    return f""".section .rodata,"a"
.p2align 6
.amdhsa_kernel {name}
  .amdhsa_next_free_vgpr {vgpr}
  .amdhsa_next_free_sgpr {sgpr}
  .amdhsa_accum_offset {accum}
  .amdhsa_group_segment_fixed_size 0
  .amdhsa_kernarg_size {kernarg}
  .amdhsa_user_sgpr_count 2
  .amdhsa_user_sgpr_kernarg_segment_ptr 1
  .amdhsa_system_sgpr_workgroup_id_x 1
  .amdhsa_float_denorm_mode_32 3
  .amdhsa_float_denorm_mode_16_64 3
.end_amdhsa_kernel
"""
```

```python
import re

REG = re.compile(r"\b([vas])(\d+)\b|\b([vas])\[(\d+):(\d+)\]")
TRANS = ("v_exp_f32", "v_log_f32", "v_rcp_f32", "v_rsq_f32", "v_sqrt_f32", "v_sin_f32", "v_cos_f32")


def regs(op):
    out = set()
    for m in REG.finditer(op):
        if m.group(1):
            out.add((m.group(1), int(m.group(2))))
        else:
            for i in range(int(m.group(4)), int(m.group(5)) + 1):
                out.add((m.group(3), i))
    if re.search(r"\bvcc\b", op):
        out.add(("s", "vcc"))
    return out


def split_ops(rest):
    ops, depth, cur = [], 0, ""
    for ch in rest:
        if ch == "[":
            depth += 1
        if ch == "]":
            depth -= 1
        if ch == "," and depth == 0:
            ops.append(cur.strip()); cur = ""
        else:
            cur += ch
    if cur.strip():
        ops.append(cur.strip())
    return ops


class Ins:
    def __init__(self, text, ln):
        self.text, self.ln = text, ln
        p = text.split(None, 1)
        self.op = p[0]
        rest = p[1] if len(p) > 1 else ""
        ops = split_ops(rest)
        self.ops = ops
        op = self.op
        self.states = 1
        self.kind = "other"
        self.wr, self.rd = set(), set()
        self.A = self.B = self.C = set()
        if op == "s_nop":
            self.states = int(ops[0], 0) + 1
        elif op.startswith("v_mfma") or op.startswith("v_smfmac"):
            self.kind = "mfma"
            self.passes = 8 if "32x32" in op else 4
            self.wr = regs(ops[0]); self.A = regs(ops[1]); self.B = regs(ops[2])
            if op.startswith("v_smfmac"):
                self.C = set(self.wr); self.A = self.A | regs(ops[3].split()[0])
            else:
                self.C = regs(ops[3].split()[0])
            self.rd = self.A | self.B | self.C
        elif op.startswith("v_"):
            self.kind = "valu"
            self.dpp = ("_dpp" in op) or any(k in rest for k in ("quad_perm", "row_", "wave_"))
            self.perm = op.startswith("v_permlane")
            self.trans = op.replace("_e32", "").replace("_e64", "") in TRANS
            self.rfl = op.startswith("v_readfirstlane") or op.startswith("v_readlane")
            if self.perm or op.startswith("v_swap"):
                self.wr = regs(ops[0]) | regs(ops[1]); self.rd = set(self.wr)
            elif op.startswith("v_cmpx"):
                self.wr = regs(ops[0]) | {("s", "exec")}
                self.rd = set().union(*[regs(o) for o in ops[1:]])
            elif "_co_" in op:
                self.wr = regs(ops[0]) | regs(ops[1])
                self.rd = set().union(*[regs(o) for o in ops[2:]])
            else:
                self.wr = regs(ops[0])
                self.rd = set().union(*[regs(o.split()[0] if i == len(ops) - 2 else o) for i, o in enumerate(ops[1:])]) if len(ops) > 1 else set()
                if op.startswith(("v_fmac", "v_dot2c", "v_mac", "v_writelane")) or "d16" in op or self.dpp:
                    self.rd |= self.wr
        elif op.startswith(("buffer_", "global_", "ds_")):
            self.kind = "mem"
            self.lds_dma = op.startswith("buffer_load") and re.search(r"\blds\b", rest) is not None
            allr = [regs(o) for o in ops]
            if op.startswith("buffer_load") and not self.lds_dma or op.startswith("ds_read") or op.startswith("global_load") or op.startswith(("ds_bpermute", "ds_permute", "ds_swizzle", "ds_add_rtn")):
                self.wr = allr[0]; self.rd = set().union(*allr[1:])
            else:
                self.rd = set().union(*allr) if allr else set()
                if op.startswith("buffer_atomic") and "sc0" in rest:
                    self.wr = allr[0]
            self.wide_store = op.startswith("buffer_store_dwordx4") or op.startswith("buffer_store_dwordx3") or op.startswith("global_store_dwordx4")
            self.data = allr[0] if op.startswith("buffer_store") else set()
        elif op.startswith("s_"):
            self.kind = "salu"
            if ops and not op.startswith(("s_cmp", "s_cbranch", "s_branch", "s_waitcnt", "s_barrier", "s_sleep", "s_setprio", "s_endpgm", "s_bitcmp")):
                self.wr = regs(ops[0])
                if ops[0] == "m0":
                    self.wr = {("s", "m0")}
                if ops[0].startswith("exec"):
                    self.wr = {("s", "exec")}


def vg(s):
    return {r for r in s if r[0] in "va"}


def sg(s):
    return {r for r in s if r[0] == "s"}


def need(p, c):
    n = 0
    if p.kind == "valu":
        w = vg(p.wr)
        if c.kind == "mfma" and w & c.rd:
            n = max(n, 2)
        if c.kind == "valu":
            if (c.dpp or c.perm) and w & vg(c.rd):
                n = max(n, 2)
            if c.rfl and w & vg(c.rd):
                n = max(n, 1)
            if p.trans and not c.trans and w & vg(c.rd):
                n = max(n, 1)
            if sg(p.wr) & sg(c.rd):
                n = max(n, 4 if c.op.startswith(("v_readlane", "v_writelane")) else 2)
            if ("s", "exec") in p.wr and (c.dpp or c.perm or c.rfl):
                n = max(n, 5)
        if c.kind == "mfma" and ("s", "exec") in p.wr:
            n = max(n, 4)
        if c.kind == "mem" and sg(p.wr) & sg(c.rd):
            n = max(n, 5)
    if p.kind == "mfma":
        big = 12 if p.passes == 8 else 8
        if c.kind == "mfma":
            if p.wr & (c.A | c.B):
                n = max(n, big)
            if p.wr & c.C:
                if not (p.wr == c.C and p.passes == c.passes):
                    n = max(n, big - 2)
            elif p.wr & c.wr:
                n = max(n, big - 2)
        elif c.kind in ("valu", "mem"):
            if p.wr & (c.rd | c.wr):
                n = max(n, big)
            if c.kind == "valu" and p.C & c.wr:
                n = max(n, 7 if p.passes == 8 else 3)
    if p.kind == "mem" and p.wide_store and c.kind in ("valu", "mfma", "mem") and p.data & c.wr:
        n = max(n, 2)
    if p.kind == "salu" and ("s", "m0") in p.wr and c.kind == "mem" and c.lds_dma:
        n = max(n, 1)
    return n


def check(text):
    ins, labels = [], {}
    for ln, raw in enumerate(text.split("\n"), 1):
        t = raw.split(";")[0].strip()
        if not t or t.startswith("."):
            continue
        if t.endswith(":"):
            labels[t[:-1]] = len(ins)
            continue
        ins.append(Ins(t, ln))
    errs = []

    def scan(seq, first_consumer):
        for j in range(first_consumer, len(seq)):
            c = seq[j]
            dist = 0
            for i in range(j - 1, -1, -1):
                p = seq[i]
                n = need(p, c)
                if n > dist:
                    errs.append(f"line {c.ln}: '{c.text}' needs {n} states after line {p.ln}: '{p.text}' (has {dist})")
                dist += p.states
                if dist >= 20:
                    break

    seg = []
    for x in ins:
        seg.append(x)
        if x.op in ("s_branch", "s_endpgm", "s_setpc_b64"):
            scan(seg, 1); seg = []
    scan(seg, 1)
    for i, x in enumerate(ins):
        if x.op.startswith(("s_cbranch", "s_branch")) and x.ops[0] in labels:
            t = labels[x.ops[0]]
            pre = ins[max(0, i - 20):i + 1]
            post = []
            for y in ins[t:t + 20]:
                post.append(y)
                if y.op in ("s_branch", "s_endpgm"):
                    break
            seq = pre + post
            for j in range(len(pre), len(seq)):
                c = seq[j]
                dist = sum(q.states for q in seq[len(pre):j])
                for k in range(len(pre) - 1, -1, -1):
                    p = seq[k]
                    n = need(p, c)
                    if n > dist:
                        errs.append(f"(edge {x.ln}) line {c.ln}: '{c.text}' needs {n} after line {p.ln}: '{p.text}' (has {dist})")
                    dist += p.states
                    if dist >= 20:
                        break
    return sorted(set(errs))


if __name__ == "__main__":
    import sys
    for e in check(open(sys.argv[1]).read()):
        print(e)


def fix(text):
    out, hist = [], []
    for ln, raw in enumerate(text.split("\n"), 1):
        t = raw.split(";")[0].strip()
        if not t or t.startswith(".") or t.endswith(":"):
            out.append(raw)
            continue
        c = Ins(t, ln)
        dist, short = 0, 0
        for p in reversed(hist):
            short = max(short, need(p, c) - dist)
            dist += p.states
            if dist >= 20:
                break
        while short > 0:
            k = min(short, 16)
            out.append(f"    s_nop {k-1}")
            hist.append(Ins(f"s_nop {k-1}", ln))
            short -= k
        out.append(raw)
        hist.append(c)
        if c.op in ("s_branch", "s_endpgm"):
            hist = []
        hist = hist[-24:]
    return "\n".join(out)
```

```python
S, D, H, DH, M, SEG, NS = 2048, 512, 32, 128, 8, 32, 64
WS_BYTES = 268435456
FLAG_BYTES = 0x60000
FB = 0x0
FH = 0x40000
FP = 0x44000
FTEAM = 0x48000
OFF_YT = 0x100000
OFF_Y = 0x300000
OFF_X = 0x500000
OFF_H = 0x900000
OFF_M = 0xD00000
OFF_P1 = 0xF00000
OFF_KM = 0x1000000
OFF_P2 = 0x2000000
OFF_QKV = 0x3000000
QKV_LAYER = 0x3000000
KNAME = "interleave_layers__ssm_conv_h3__memory_aug_recurrent_mem_tr__prompt"
T_CHAIN = (0, 4)
T_AO = (1, 5)
T_QKV = ((2, 3), (6, 7))
PRE_SLOT = {1: 0, 5: 1, 6: 2, 7: 3}
```

```python
from asmlib import *
from layout import *
from gen import PTR, WS, DBG, TMO, wait_flags, wait_counter, count_arrive, poll_tail, unpack, rowfin, allreduce


def stage_weights(a, srds, trfn, vsrc, nslot=8):
    a(f"v_bfe_u32 v{vsrc}, v0, 2, 2\n v_lshlrev_b32 v{vsrc}, 13, v{vsrc}")
    a(f"v_bfe_u32 v{vsrc+1}, v0, 4, 2\n v_lshl_add_u32 v{vsrc}, v{vsrc+1}, 6, v{vsrc}")
    a(f"v_and_b32 v{vsrc+1}, 3, v0\n v_lshl_add_u32 v{vsrc}, v{vsrc+1}, 4, v{vsrc}")
    a(f"s_lshl_b32 s40, s5, 8\n v_add_u32 v{vsrc}, s40, v{vsrc}")
    a("s_lshl_b32 s40, s6, 17\n s_lshl_b32 s41, s6, 12")
    chunks = [(m, c) for m in range(len(srds)) for c in range(8)]

    def issue(j):
        m, c = chunks[j]
        for b in range(4):
            a(f"s_add_u32 m0, s41, {(j % nslot) * 16384 + b * 1024}")
            a(f"s_add_u32 s42, s40, {(64 * c + 4 * b) * 8192}")
            a(f"buffer_load_dwordx4 v{vsrc}, {srds[m]}, s42 offen lds")

    issued = 0
    for j in range(min(nslot, len(chunks))):
        issue(j); issued += 1
    for j, (m, c) in enumerate(chunks):
        a(f"s_waitcnt vmcnt({4 * (issued - j - 1)})\n s_barrier")
        if j >= 1 and issued < len(chunks):
            issue(issued); issued += 1
        trfn(m, c, (j % nslot) * 16384)
        a("s_waitcnt lgkmcnt(0)")
    a("s_barrier")


def flag_store(a, vone, vz, soff, imm=0):
    a("s_mov_b64 exec, 1")
    a(f"buffer_store_dword v{vone}, v{vz}, {WS}, {soff} offen offset:{imm} sc1")
    a("s_mov_b64 exec, -1")


def role_qkv(a, o):
    a.srd(12, PTR(9), D * H * DH * 2)
    a.srd(16, PTR(10), D * H * DH * 2)
    a.srd(20, PTR(8), D * H * DH * 2)
    WREG = lambda m, ks: (f"a[{128*m+4*ks}:{128*m+4*ks+3}]" if m < 2 else f"v[{128+4*ks}:{128+4*ks+3}]")
    VL16, VZ, VONE, VF, VFO = 1, 2, 3, 4, 5
    AK, AV, AQ, HF, NB, PK, VA = 16, 32, 48, 64, 6, 88, 104
    a(f"v_and_b32 v{VL16}, 63, v0\n v_lshlrev_b32 v{VL16}, 4, v{VL16}")
    a(f"v_mov_b32 v{VZ}, 0\n v_mov_b32 v{VONE}, 1")
    a(f"v_and_b32 v{VFO}, 31, v0\n v_lshlrev_b32 v{VFO}, 2, v{VFO}")
    a("v_bfe_u32 v8, v0, 5, 1\n v_lshlrev_b32 v8, 11, v8")
    a("v_bfe_u32 v9, v0, 2, 2\n v_lshl_add_u32 v8, v9, 6, v8")
    a("v_bfe_u32 v9, v0, 4, 1\n v_lshl_add_u32 v8, v9, 5, v8")
    a("v_and_b32 v9, 3, v0\n v_lshl_add_u32 v8, v9, 3, v8")
    a("s_lshl_b32 s3, s6, 8\n v_add_u32 v8, s3, v8\n v_add_u32 v9, 0x10000, v8")

    def tr(m, c, base):
        for kk in range(4):
            for u in range(2):
                r = 4 * (4 * c + kk) + 2 * u
                dst = f"a[{128*m+r}:{128*m+r+1}]" if m < 2 else f"v[{128+r}:{128+r+1}]"
                off = base + kk * 4096 + u * 1024
                a(f"ds_read_b64_tr_b16 {dst}, v{8 + (off >> 16)} offset:{off & 0xffff}")

    stage_weights(a, ["s[12:15]", "s[16:19]", "s[20:23]"], tr, 10)
    if not o.get("staged"):
        wait_counter(a, VF, VZ, 0, 32)
    a("v_and_b32 v8, 31, v0\n v_bfe_u32 v9, v0, 5, 1\n v_and_b32 v10, 15, v0\n v_xor_b32 v9, v9, v10")
    a("v_lshlrev_b32 v9, 4, v9\n v_lshl_add_u32 v8, v8, 10, v9")
    for j in range(8):
        a(f"v_xor_b32 v{VA+j}, {j << 5}, v8")
    a("s_and_b32 s44, s4, 1")
    a(f"s_lshl_b32 s3, s7, 6\n s_add_u32 s3, s3, s44")
    a(f"s_lshl_b32 s45, s3, 7\n s_add_u32 s45, s45, {FH}")
    a(f"s_lshl_b32 s46, s3, 15\n s_add_u32 s46, s46, {OFF_H}\n s_lshl_b32 s53, s6, 13\n s_add_u32 s46, s46, s53")
    a(f"s_lshl_b32 s3, s3, 5\n s_add_u32 s3, s3, s5")
    a(f"s_lshl_b32 s50, s3, 6\n s_lshl_b32 s47, s6, 2\n s_add_u32 s50, s50, s47")
    a(f"s_mul_i32 s47, s3, 24576\n s_add_u32 s47, s47, {OFF_QKV}\n s_lshl_b32 s3, s6, 11\n s_add_u32 s47, s47, s3")

    def dma():
        a("s_mov_b32 m0, s53")
        for i in range(4):
            a(f"buffer_load_dwordx4 v{VL16}, {WS}, s46 offen offset:{i*1024} sc1 lds")
        a("s_add_u32 m0, s53, 4096\n s_add_u32 s3, s46, 4096")
        for i in range(4):
            a(f"buffer_load_dwordx4 v{VL16}, {WS}, s3 offen offset:{i*1024} sc1 lds")
        a("s_add_u32 s45, s45, 256\n s_add_u32 s46, s46, 65536\n s_xor_b32 s53, s53, 0x8000")

    def epi(acc, pk, soff):
        L = [f"v_cvt_pk_bf16_f32 v{pk+i}, v{acc+2*i}, v{acc+2*i+1}" for i in range(4)]
        L.append(f"buffer_store_dwordx4 v[{pk}:{pk+3}], v{VL16}, {WS}, {soff} offen sc1")
        L += [f"v_cvt_pk_bf16_f32 v{pk+i}, v{acc+2*i}, v{acc+2*i+1}" for i in range(4, 8)]
        L.append(f"buffer_store_dwordx4 v[{pk+4}:{pk+7}], v{VL16}, {WS}, {soff} offen offset:1024 sc1")
        return L

    wait_flags(a, VF, VFO, "s45")
    dma()
    a("s_waitcnt vmcnt(0)\n s_barrier")
    a("s_mov_b32 s54, 0")
    a("L_qkv_loop:")
    a("s_add_u32 s48, s47, 8192")
    a("s_add_u32 s3, s44, 2\n s_cmp_ge_u32 s3, 64\n s_cselect_b32 s52, 1, 0")
    a(f"buffer_load_dword v{VF}, v{VFO}, {WS}, s45 offen sc1")
    hf = lambda j: f"v[{HF+4*(j%NB)}:{HF+4*(j%NB)+3}]"
    rd = lambda j: a(f"ds_read_b128 {hf(j)}, v{VA+(j&7)} offset:{((j&31)>>3)*256}")
    for j in range(NB - 1):
        rd(j)
    for j in range(64):
        if j + NB - 1 < 64:
            rd(j + NB - 1)
        a(f"s_waitcnt lgkmcnt({min(NB-1, 63-j)})")
        ks = j & 31
        if j < 32:
            a(f"v_mfma_f32_32x32x16_bf16 v[{AK}:{AK+15}], {WREG(0,ks)}, {hf(j)}, " + (f"v[{AK}:{AK+15}]" if ks else "0"))
            a(f"v_mfma_f32_32x32x16_bf16 v[{AV}:{AV+15}], {hf(j)}, {WREG(1,ks)}, " + (f"v[{AV}:{AV+15}]" if ks else "0"))
            if j == 1:
                sk = a.label("Lq")
                a(f"s_cmp_eq_u32 s54, 0\n s_cbranch_scc1 {sk}")
                for x in epi(AQ, PK, "s49"):
                    a(x)
                a(f"{sk}:")
            if j == 22:
                sk, s2 = a.label("Lq"), a.label("Lq")
                a("s_waitcnt vmcnt(0)")
                a(f"s_cmp_eq_u32 s54, 0\n s_cbranch_scc1 {sk}")
                flag_store(a, VONE, VZ, "s51", 16)
                a(f"{sk}:")
                a(f"s_cmp_lg_u32 s52, 0\n s_cbranch_scc1 {s2}")
                a(f"v_cmp_eq_u32 vcc, 0, v{VF}\n s_cbranch_vccnz {s2}")
                dma()
                a("s_mov_b32 s52, 1")
                a(f"{s2}:")
        else:
            a(f"v_mfma_f32_32x32x16_bf16 v[{AQ}:{AQ+15}], {WREG(2,ks)}, {hf(j)}, " + (f"v[{AQ}:{AQ+15}]" if ks else "0"))
            E = epi(AK, PK, "s47") + epi(AV, PK + 8, "s48")
            if 2 <= ks < 7:
                for x in E[4 * (ks - 2):4 * (ks - 1)]:
                    a(x)
    a("s_waitcnt vmcnt(0)")
    flag_store(a, VONE, VZ, "s50", 0)
    a(f"s_add_u32 s49, s47, 16384\n s_mov_b32 s51, s50\n s_mov_b32 s54, 1")
    sk = a.label("Lq")
    a(f"s_cmp_lg_u32 s52, 0\n s_cbranch_scc1 {sk}")
    for x in epi(AQ, PK, "s49"):
        a(x)
    a(f"buffer_load_dword v{VF}, v{VFO}, {WS}, s45 offen sc1")
    a("s_waitcnt vmcnt(0)")
    flag_store(a, VONE, VZ, "s51", 16)
    a("s_mov_b32 s54, 0")
    s2 = a.label("Lq")
    a(f"v_cmp_eq_u32 vcc, 0, v{VF}\n s_cbranch_vccz {s2}")
    wait_flags(a, VF, VFO, "s45")
    a(f"{s2}:")
    dma()
    a("s_waitcnt vmcnt(0)")
    a(f"{sk}:")
    for j in range(8):
        a(f"v_xor_b32 v{VA+j}, 0x8000, v{VA+j}")
    a(f"s_add_u32 s47, s47, {2*32*24576}\n s_add_u32 s50, s50, {2*32*64}\n s_add_u32 s44, s44, 2")
    a("s_barrier")
    a("s_cmp_lt_u32 s44, 64\n s_cbranch_scc1 L_qkv_loop")
    for x in epi(AQ, PK, "s49"):
        a(x)
    a("s_waitcnt vmcnt(0)")
    flag_store(a, VONE, VZ, "s51", 16)


def team_publish(a, vtmp, vz):
    sk = a.label("Ltp")
    a(f"s_cmp_lg_u32 s6, 0\n s_cbranch_scc1 {sk}")
    a("s_getreg_b32 s3, hwreg(HW_REG_XCC_ID)\n s_and_b32 s3, s3, 15\n s_add_u32 s3, s3, 1")
    a(f"v_mov_b32 v{vtmp}, s3")
    a(f"s_lshl_b32 s3, s4, 7\n s_lshl_b32 s40, s5, 2\n s_add_u32 s3, s3, s40\n s_add_u32 s3, s3, {FTEAM}")
    flag_store(a, vtmp, vz, "s3")
    a(f"{sk}:")


def team_wait(a, vtmp, voff, mixed_label):
    a(f"v_and_b32 v{voff}, 31, v0\n v_lshlrev_b32 v{voff}, 2, v{voff}")
    a(f"s_lshl_b32 s40, s4, 7\n s_add_u32 s40, s40, {FTEAM}")
    wait_flags(a, vtmp, voff, "s40")
    a(f"v_readfirstlane_b32 s3, v{vtmp}")
    a(f"v_cmp_ne_u32 vcc, s3, v{vtmp}")
    a(f"s_cbranch_vccnz {mixed_label}")


def nops(a, cyc):
    n = cyc // 4
    while n > 0:
        k = min(n, 16)
        a(f"s_nop {k-1}")
        n -= k


def role_chain(a, o):
    MX, KX, VX_, QX, KMX, OX = 0x20000, 0x22000, 0x24000, 0x26000, 0x26800, 0x27000
    VL16, VIDX, VMX, VQW, VQR, VKX, VVX, VOX, VWO, VP1S, VP1L, VMS, VKMS, VVMS, VF = range(1, 16)
    RM, RK, AQ, AK, AV, QF, VX = 16, 48, 80, 88, 96, 104, 120
    prof = o.get("prof")
    a.srd(12, PTR(8), D * H * DH * 2)
    a.srd(16, PTR(9), D * H * DH * 2)
    a.srd(20, PTR(10), D * H * DH * 2)
    a.srd(24, PTR(11), D * H * DH * 2)
    a.srd(32, PTR(7), M * D * 2)
    a(f"v_and_b32 v{VL16}, 63, v0\n v_lshlrev_b32 v{VL16}, 4, v{VL16}")
    a("v_and_b32 v20, 15, v0\n v_bfe_u32 v21, v0, 4, 2\n v_mov_b32 v22, 0")
    for r in range(24, 28):
        a(f"v_mov_b32 v{r}, -1")
    if not o.get("staged"):
        sk = a.label("Lnc")
        a(f"s_cmp_lg_u32 s4, {T_CHAIN[1]}\n s_cbranch_scc1 {sk}")
        for r in range(28, 32):
            a(f"v_mov_b32 v{r}, 0")
        a("s_lshl_b32 s3, s5, 2\n s_add_u32 s3, s3, s6\n s_mul_i32 s3, s3, 3072")
        for i in range(3):
            a(f"buffer_store_dwordx4 v[28:31], v{VL16}, {WS}, s3 offen offset:{i*1024} sc1")
        a("s_waitcnt vmcnt(0)\n s_barrier")
        s2 = a.label("Lnc")
        a(f"s_cmp_lg_u32 s6, 0\n s_cbranch_scc1 {s2}")
        count_arrive(a, 23, 22, 0)
        a(f"{s2}:")
        a(f"{sk}:")
    a(f"s_lshl_b32 s46, s7, 20\n s_add_u32 s46, s46, {OFF_M}")
    a(f"s_lshl_b32 s47, s7, 19\n s_add_u32 s47, s47, {OFF_P1}")
    a("s_lshl_b32 s43, s5, 2\n s_add_u32 s43, s43, s6")
    a("s_lshl_b32 s3, s43, 11\n s_add_u32 s3, s3, s47")
    for sl in range(2):
        for i in range(2):
            a(f"buffer_store_dwordx4 v[24:27], v{VL16}, {WS}, s3 offen offset:{i*1024} sc1")
        a("s_add_u32 s3, s3, 0x40000")
    a("v_lshlrev_b32 v23, 13, v21\n v_lshl_add_u32 v23, v20, 4, v23")
    a("s_lshl_b32 s3, s6, 17\n s_add_u32 s3, s3, s46\n s_lshl_b32 s40, s5, 8\n s_add_u32 s3, s3, s40\n s_add_u32 s3, s3, 8192")
    for i in range(4):
        a(f"buffer_store_dwordx4 v[24:27], v23, {WS}, s3 offen sc1")
        a("s_add_u32 s3, s3, 0x8000")
    a("v_lshrrev_b32 v23, 2, v20\n v_lshlrev_b32 v23, 10, v23\n v_and_b32 v28, 3, v20\n v_lshl_add_u32 v23, v28, 3, v23")
    a("s_and_b32 s3, s6, 1\n s_lshl_b32 s3, s3, 12\n s_lshl_b32 s40, s5, 5\n s_add_u32 s3, s3, s40")
    a("s_lshr_b32 s40, s6, 1\n s_lshl_b32 s40, s40, 2\n s_add_u32 s3, s3, s40")
    a("buffer_load_dword v28, v23, s[32:35], s3 offen")
    a("v_lshlrev_b32 v23, 2, v20\n s_lshl_b32 s3, s43, 6\n s_add_u32 s3, s3, s46")
    a("s_waitcnt vmcnt(0)\n v_min_u32 v28, -2, v28")
    a(f"buffer_store_dword v28, v23, {WS}, s3 offen sc1")
    a("s_waitcnt vmcnt(0)")
    a("v_lshlrev_b32 v8, 11, v21\n v_bfe_u32 v9, v0, 2, 2\n v_lshl_add_u32 v8, v9, 6, v8")
    a("v_and_b32 v9, 3, v0\n v_lshl_add_u32 v8, v9, 3, v8")
    a("s_lshl_b32 s3, s6, 8\n v_add_u32 v8, s3, v8\n v_add_u32 v9, 0x10000, v8")

    def wreg(m, t, j, lo=0, n=8):
        b = (t * 8 + j) * 8 + lo
        return f"a[{128*m+b}:{128*m+b+n-1}]" if m < 2 else f"v[{128+b}:{128+b+n-1}]"

    def tr(m, c, base):
        L = [a.label("Lt") for _ in range(5)]
        a(f"s_cmp_eq_u32 s6, 1\n s_cbranch_scc1 {L[1]}\n s_cmp_eq_u32 s6, 2\n s_cbranch_scc1 {L[2]}\n s_cmp_eq_u32 s6, 3\n s_cbranch_scc1 {L[3]}")
        for w in range(4):
            if w:
                a(f"{L[w]}:")
            for t in range(2):
                for q in range(4):
                    off = base + (q >> 1) * 8192 + (q & 1) * 1024 + t * 32
                    a(f"ds_read_b64_tr_b16 {wreg(m, t, c ^ (2 * w), 2 * q, 2)}, v{8 + (off >> 16)} offset:{off & 0xffff}")
            if w < 3:
                a(f"s_branch {L[4]}")
        a(f"{L[4]}:")

    stage_weights(a, ["s[12:15]", "s[16:19]", "s[20:23]"], tr, 10)
    if not o.get("staged"):
        wait_counter(a, 23, 22, 0, 32)
    team_publish(a, 23, 22)
    a(f"s_lshl_b32 s3, s6, 15\n v_add_u32 v{VWO}, s3, v{VL16}")
    a("v_and_b32 v8, 1, v21\n v_lshlrev_b32 v8, 14, v8\n v_lshrrev_b32 v10, 1, v21\n v_lshl_add_u32 v8, v10, 12, v8")
    a("v_lshl_add_u32 v8, v20, 3, v8\n s_lshl_b32 s3, s6, 8\n v_add_u32 v8, s3, v8")
    a("s_mov_b32 s60, 0x05040100\n s_mov_b32 s61, 0x07060302\n s_lshl_b32 s41, s5, 17")
    groups = [(jc, i) for jc in range(4) for i in range(2)]
    LD = lambda gi: 32 + 16 * (gi % 4)

    def wo_issue(gi):
        jc, i = groups[gi]
        a(f"s_xor_b32 s3, s6, {jc}\n s_lshl_b32 s3, s3, 15\n s_add_u32 s3, s3, s41\n s_add_u32 s3, s3, {i*128}\n s_add_u32 s40, s3, 8192")
        for u in range(2):
            for v in range(2):
                for e in range(2):
                    r = LD(gi) + 8 * u + 4 * v + 2 * e
                    a(f"buffer_load_dwordx2 v[{r}:{r+1}], v8, s[24:27], {'s40' if u else 's3'} offen offset:{(2*v+e)*1024}")

    for gi in range(3):
        wo_issue(gi)
    for gi, (jc, i) in enumerate(groups):
        if gi + 3 < 8:
            wo_issue(gi + 3)
        a(f"s_waitcnt vmcnt({8*min(3, 7-gi)})")
        for sel in range(2):
            for u in range(2):
                for v in range(2):
                    for z in range(2):
                        r = LD(gi) + 8 * u + 4 * v + z
                        a(f"v_perm_b32 v{96+8*sel+4*u+2*v+z}, v{r+2}, v{r}, s{60+sel}")
        for sel in range(2):
            for hh in range(2):
                a(f"ds_write_b128 v{VWO}, v[{96+8*sel+4*hh}:{99+8*sel+4*hh}] offset:{(jc*4+2*i+sel)*2048+hh*1024}")
        a("s_waitcnt lgkmcnt(0)")
    a(f"v_mov_b32 v{VIDX}, 0x4444\n v_mov_b32 v23, 0xeeee\n v_cmp_lt_u32 vcc, 7, v20\n s_nop 1\n v_cndmask_b32 v{VIDX}, v{VIDX}, v23, vcc")
    a(f"s_lshl_b32 s3, s6, 11\n s_add_u32 s3, s3, {MX}\n v_add_u32 v{VMX}, s3, v{VL16}")
    a(f"v_lshrrev_b32 v23, 1, v21\n v_lshl_add_u32 v23, v23, 4, v20\n v_lshlrev_b32 v23, 4, v23")
    a(f"v_and_b32 v24, 1, v21\n v_lshl_add_u32 v{VQW}, v24, 3, v23\n s_lshl_b32 s3, s6, 9\n s_add_u32 s3, s3, {QX}\n v_add_u32 v{VQW}, s3, v{VQW}")
    a(f"v_lshlrev_b32 v{VVMS}, 8, v24\n v_lshrrev_b32 v23, 1, v23\n v_add_u32 v{VVMS}, v{VVMS}, v23")
    a(f"v_lshrrev_b32 v23, 1, v21\n v_lshlrev_b32 v23, 8, v23\n v_lshl_add_u32 v23, v24, 6, v23")
    a(f"v_lshrrev_b32 v25, 2, v20\n v_lshl_add_u32 v23, v25, 4, v23\n v_and_b32 v25, 1, v0\n v_lshl_add_u32 v23, v25, 3, v23")
    a(f"v_add_u32 v{VQR}, {QX}, v23")
    a(f"v_lshrrev_b32 v23, 3, v20\n v_lshlrev_b32 v23, 4, v23\n v_and_b32 v25, 7, v20\n v_add_u32 v23, v23, v25")
    a(f"v_lshlrev_b32 v23, 4, v23\n v_lshl_add_u32 v23, v21, 9, v23\n v_add_u32 v{VKX}, {KX}, v23")
    a(f"v_lshlrev_b32 v23, 9, v21\n v_lshl_add_u32 v23, v20, 4, v23\n s_lshl_b32 s3, s6, 11\n s_add_u32 s3, s3, {VX_}\n v_add_u32 v{VVX}, s3, v23")
    a(f"s_lshl_b32 s3, s6, 10\n s_add_u32 s3, s3, {OX}\n v_add_u32 v{VOX}, s3, v{VL16}")
    a(f"v_and_b32 v23, 12, v20\n v_add_u32 v23, v23, v21\n v_lshlrev_b32 v23, 11, v23\n v_and_b32 v25, 3, v20\n v_lshl_add_u32 v23, v25, 4, v23")
    a(f"s_lshl_b32 s3, s6, 16\n s_lshl_b32 s40, s5, 6\n s_add_u32 s3, s3, s40\n v_add_u32 v{VP1S}, s3, v23")
    a(f"v_lshl_add_u32 v23, v21, 2, v25\n v_lshlrev_b32 v23, 6, v23\n v_lshrrev_b32 v25, 2, v20\n v_lshl_add_u32 v23, v25, 4, v23")
    a(f"s_lshl_b32 s3, s43, 11\n v_add_u32 v{VP1L}, s3, v23")
    a(f"v_lshrrev_b32 v23, 1, v20\n v_lshlrev_b32 v23, 4, v23\n v_lshl_add_u32 v23, v21, 2, v23\n s_lshl_b32 s3, s43, 6\n v_add_u32 v{VMS}, s3, v23")
    a(f"v_lshlrev_b32 v{VKMS}, 7, v21\n v_lshl_add_u32 v{VKMS}, v20, 4, v{VKMS}")
    a("s_lshl_b32 s3, s7, 11\n s_add_u32 s3, s3, s5")
    a(f"s_mul_i32 s48, s3, 24576\n s_add_u32 s48, s48, {OFF_QKV}\n s_lshl_b32 s40, s6, 11\n s_add_u32 s48, s48, s40")
    a("s_lshl_b32 s49, s3, 6")
    a(f"s_lshl_b32 s50, s3, 12\n s_add_u32 s50, s50, {OFF_KM}\n s_lshl_b32 s41, s6, 9\n s_add_u32 s50, s50, s41")
    a("s_lshl_b32 s41, s6, 2\n s_add_u32 s59, s49, s41\n s_add_u32 s59, s59, 32\n s_add_u32 s51, s59, 16\n s_add_u32 s55, s47, 0x40000")
    a(f"s_add_u32 s45, s46, s40\n s_add_u32 s46, s46, 8192\n s_add_u32 s52, s40, {KX}")
    a("s_lshl_b32 s53, s43, 11")
    a("s_mov_b32 s44, 0\n s_mov_b32 s54, 0x3e0293ee")
    a("s_mov_b32 s56, -1\n s_mov_b32 s57, 0")
    for d in range(4):
        m = (3 << (2 * d)) * 0x00010001
        a(f"s_mov_b32 s{64+2*d}, {m:#x}\n s_mov_b32 s{65+2*d}, {m:#x}")
    a("s_mov_b32 s72, 0x00550055\n s_mov_b32 s73, 0x00550055\n s_mov_b32 s74, 0x00ff00ff\n s_mov_b32 s75, 0x00ff00ff")

    def kvdma():
        a("s_mov_b32 m0, s52\n s_add_u32 s3, s48, 8192")
        a(f"buffer_load_dwordx4 v{VL16}, {WS}, s48 offen sc1 lds")
        a(f"buffer_load_dwordx4 v{VL16}, {WS}, s48 offen offset:1024 sc1 lds")
        a("s_add_u32 m0, s52, 8192")
        a(f"s_cmp_lt_u32 s44, 61\n s_cselect_b32 s40, {32*24576}, 0\n s_cselect_b32 s41, 2048, 0")
        a(f"buffer_load_dwordx4 v{VL16}, {WS}, s3 offen sc1 lds")
        a(f"buffer_load_dwordx4 v{VL16}, {WS}, s3 offen offset:1024 sc1 lds")
        a("s_add_u32 s48, s48, s40\n s_add_u32 s49, s49, s41")

    a("v_and_b32 v23, 3, v0\n v_lshlrev_b32 v23, 2, v23")
    wait_flags(a, VF, 23, "s49")
    kvdma()
    a(f"buffer_load_dword v{VF}, v23, {WS}, s49 offen sc1")
    team_wait(a, 24, 25, "L_chain_mixed_pre")
    a("s_branch L_chain_pure_pre")

    def sm(acc, A, B):
        a(f"v_smfmac_f32_16x16x64_bf16 v[{acc}:{acc+3}], v[{A}:{A+3}], {B}, v{VIDX}")

    def proj(m, t, j):
        sm((AQ, AK, AV)[m] + 4 * t, RM + 4 * j, wreg(m, t, j))

    def halves(acc):
        L = [f"v_permlane32_swap_b32 v{acc+r}, v{acc+4+r}" for r in range(4)]
        L += [f"v_add_f32 v{acc+r}, v{acc+r}, v{acc+4+r}" for r in range(4)]
        L += [f"v_cvt_pk_bf16_f32 v{acc+4}, v{acc}, v{acc+1}", f"v_cvt_pk_bf16_f32 v{acc+5}, v{acc+2}, v{acc+3}"]
        return L

    def poll(tag, dst, voff, soff, delay, gap):
        ld = lambda: (a(f"buffer_load_dwordx4 v[{dst}:{dst+3}], v{voff}, {WS}, {soff} offen sc1"),
                      a(f"buffer_load_dwordx4 v[{dst+4}:{dst+7}], v{voff}, {WS}, {soff} offen offset:1024 sc1"))
        return ld

    def stamp(i):
        if prof:
            a(f"s_memtime s[76:77]\n s_waitcnt lgkmcnt(0)\n s_sub_u32 s3, s76, s78\n s_add_u32 s{80+i}, s{80+i}, s3\n s_mov_b32 s78, s76")

    def spin(tag, dst, t0, ld):
        a(f"L_{tag}:")
        ld()
        a("s_waitcnt vmcnt(2)")
        a(f"v_max3_u32 v{t0}, v{dst}, v{dst+1}, v{dst+2}\n v_max3_u32 v{t0+1}, v{dst+3}, v{dst+4}, v{dst+5}")
        a(f"v_max3_u32 v{t0}, v{t0}, v{dst+6}, v{dst+7}\n v_max_u32 v{t0}, v{t0}, v{t0+1}")
        a(f"v_cmp_eq_u32 vcc, -1, v{t0}")
        a(f"s_cbranch_vccz L_{tag}_ok")
        a("s_mov_b64 exec, vcc")
        poll_tail(a, f"L_{tag}")
        a(f"L_{tag}_ok:")
        a("s_mov_b64 exec, -1")

    LAND = [RK, RK + 8, RK + 16, RK + 24, RM, RM + 8, RM + 16, RM + 24, VX, QF + 8]
    WACC = [AV, AV + 4, QF, QF + 4]
    order = [(0, np_) for np_ in range(4)] + [(jc, np_) for np_ in (0, 1) for jc in (1, 2, 3)] + [(jc, np_) for np_ in (2, 3) for jc in (1, 2, 3)]
    order = order[:4] + [order[4 + k] for k in (0, 3, 1, 4, 2, 5)] + [order[10 + k] for k in (0, 3, 1, 4, 2, 5)]
    slot_of = [2, 0, 1, 3, 4, 5, 6, 7, 8, 9, 2, 0, 1, 3, 4, 5]

    def land(k):
        jc, np_ = order[k]
        r = LAND[slot_of[k]]
        a(f"ds_read_b128 v[{r}:{r+3}], v{VWO} offset:{(jc*4+np_)*2048}")
        a(f"ds_read_b128 v[{r+4}:{r+7}], v{VWO} offset:{(jc*4+np_)*2048+1024}")

    def wo(k):
        jc, np_ = order[k]
        r = LAND[slot_of[k]]
        sm(WACC[np_], AQ + 4 * jc, f"v[{r}:{r+7}]")

    def loop(mode):
        st = "" if mode == "pure" else " sc1"
        T = f"chain_{mode}"
        a(f"L_{T}_pre:")
        a(f"v_mov_b32 v0, 0x3f80\n v_mov_b32 v23, 0x3f800000\n s_mov_b32 s40, 0xaaaaaaaa\n s_mov_b32 s41, 0xaaaaaaaa")
        a("v_cndmask_b32 v0, v0, v23, s[40:41]")
        if prof:
            for i in range(16):
                a(f"s_mov_b32 s{80+i}, 0")
            a("s_memtime s[78:79]\n s_waitcnt lgkmcnt(0)")
        a(f"L_{T}:")
        ld2 = poll("h2", RM, VL16, "s45", 0, 0)
        a("s_barrier")
        for kst in range(4):
            for kt in range(2):
                r = RK + 8 * kst + 4 * kt
                a(f"ds_read_b128 v[{r}:{r+3}], v{VKX} offset:{kst*2048+kt*128}")
        for t in range(2):
            a(f"ds_read_b128 v[{VX+4*t}:{VX+4*t+3}], v{VVX} offset:{t*256}")
        for r in range(AQ, AQ + 24):
            a(f"v_mov_b32 v{r}, 0")
        for jj in (1, 2, 3):
            a(f"v_xor_b32 v{QF+jj}, {jj << 11}, v{VMX}")
        nops(a, o.get("d2", 0))
        ld2()
        nops(a, o.get("g2", 64))
        spin(f"{T}_h2", RM, QF + 4, ld2)
        stamp(0)
        a(f"ds_write_b128 v{VMX}, v[{RM}:{RM+3}]\n ds_write_b128 v{VMX}, v[{RM+4}:{RM+7}] offset:1024")
        for j in range(2):
            for t in range(2):
                proj(0, t, j)
        a("s_waitcnt lgkmcnt(0)\n s_barrier")
        for j in range(2, 8):
            a(f"ds_read_b128 v[{RM+4*j}:{RM+4*j+3}], v{QF+(j>>1)} offset:{(j&1)*1024}")
        proj(1, 0, 0)
        a(f"v_mov_b32 v{QF+4}, -1\n v_mov_b32 v{QF+5}, -1\n v_mov_b32 v{QF+6}, -1\n v_mov_b32 v{QF+7}, -1")
        a("s_mov_b64 exec, 1")
        a(f"buffer_store_dword v{QF+4}, v{VL16}, {WS}, s51 offen sc1")
        a("s_mov_b64 exec, -1")
        a("s_mov_b32 s51, s59\n s_add_u32 s59, s59, 2048\n s_add_u32 s3, s55, s53")
        a(f"buffer_store_dwordx4 v[{QF+4}:{QF+7}], v{VL16}, {WS}, s3 offen{st}")
        a(f"buffer_store_dwordx4 v[{QF+4}:{QF+7}], v{VL16}, {WS}, s3 offen offset:1024{st}")
        proj(1, 1, 0)
        proj(1, 0, 1)
        s2 = a.label("Lf")
        a(f"v_bfe_u32 v{QF+8}, v{VL16}, 2, 4")
        a(f"v_cmp_eq_u32 vcc, 0, v{VF}\n s_cbranch_vccz {s2}")
        wait_flags(a, VF, QF + 8, "s49", sleep=0)
        a(f"{s2}:")
        kvdma()
        proj(1, 1, 1)
        a(f"s_add_u32 s3, s46, 8192\n s_mov_b64 exec, s[56:57]")
        a(f"buffer_load_dword v{VF}, v{QF+8}, {WS}, s49 offen sc1")
        a("s_not_b64 exec, exec")
        a(f"buffer_load_dword v{VF}, v{VMS}, {WS}, s3 offen sc1")
        a("s_mov_b64 exec, -1")
        for j in range(2):
            for t in range(2):
                proj(2, t, j)
        a(f"s_and_b32 s55, s44, 1\n s_lshl_b32 s55, s55, 18\n s_add_u32 s55, s55, s47\n s_add_u32 s58, s55, 0x8000")
        stamp(1)
        for j in range(2, 8):
            a(f"s_waitcnt lgkmcnt({7-j})")
            for t in range(2):
                proj(0, t, j)
        kl = [(t, j) for j in range(2, 8) for t in range(2)]
        E = halves(AQ)
        for i in range(3):
            proj(1, *kl[i])
        for i in range(5):
            a(E[2 * i]); a(E[2 * i + 1])
            proj(1, *kl[3 + i])
        a(f"ds_write_b64 v{VQW}, v[{AQ+4}:{AQ+5}]")
        proj(1, *kl[8]); proj(1, *kl[9])
        a("s_waitcnt lgkmcnt(0)\n s_barrier")
        for kst in range(4):
            for u in range(2):
                a(f"ds_read_b64_tr_b16 v[{QF+4*kst+2*u}:{QF+4*kst+2*u+1}], v{VQR} offset:{kst*512+u*128}")
            if kst == 1:
                proj(1, *kl[10])
        proj(1, *kl[11])
        stamp(2)
        vl = [(t, j) for j in range(2, 8) for t in range(2)]
        proj(2, *vl[0]); proj(2, *vl[1])
        E = halves(AK)
        for kst in range(4):
            a(f"s_waitcnt lgkmcnt({6-2*kst})")
            for kt in range(2):
                A = RK + 8 * kst + 4 * kt
                a(f"v_mfma_f32_16x16x32_bf16 v[{AQ+4*kt}:{AQ+4*kt+3}], v[{A}:{A+3}], v[{QF+4*kst}:{QF+4*kst+3}], " + (f"v[{AQ+4*kt}:{AQ+4*kt+3}]" if kst else "0"))
                i = 2 * kst + kt - 2
                if 0 <= i < 5:
                    a(E[2 * i]); a(E[2 * i + 1])
                if i == 4:
                    a(f"ds_write_b64 v{VQW}, v[{AK+4}:{AK+5}] offset:{KMX-QX}")
        proj(2, *vl[2]); proj(2, *vl[3])
        a("s_waitcnt lgkmcnt(0)\n s_barrier")
        for kst in range(4):
            for u in range(2):
                a(f"ds_read_b64_tr_b16 v[{RK+4*kst+2*u}:{RK+4*kst+2*u+1}], v{VQR} offset:{KMX-QX+kst*512+u*128}")
        a(f"s_lshl_b32 s3, s6, 9\n v_add_u32 v{AK+7}, s3, v{VQR}")
        proj(2, *vl[4])
        for u in range(2):
            a(f"ds_read_b64_tr_b16 v[{RK+28+2*u}:{RK+29+2*u}], v{AK+7} offset:{KMX-QX+u*128}")
        land(0)
        MXR, TMP, SUM = AK + 4, AK + 5, AK + 6
        proj(2, *vl[5])
        a(f"v_max3_f32 v{MXR}, v{AQ}, v{AQ+1}, v{AQ+2}\n v_max3_f32 v{TMP}, v{AQ+3}, v{AQ+4}, v{AQ+5}")
        proj(2, *vl[6])
        a(f"v_max3_f32 v{MXR}, v{MXR}, v{AQ+6}, v{AQ+7}\n v_max_f32 v{MXR}, v{MXR}, v{TMP}")
        proj(2, *vl[7])
        a(f"v_mov_b32 v{TMP}, v{MXR}")
        for kst in range(4):
            a(f"s_waitcnt lgkmcnt({10-2*kst})")
            a(f"v_mfma_f32_16x16x32_bf16 v[{AK}:{AK+3}], v[{RK+4*kst}:{RK+4*kst+3}], v[{QF+4*kst}:{QF+4*kst+3}], " + (f"v[{AK}:{AK+3}]" if kst else "0"))
            if kst == 0:
                a(f"v_permlane32_swap_b32 v{TMP}, v{MXR}")
            if kst == 1:
                a(f"v_max_f32 v{MXR}, v{MXR}, v{TMP}")
        land(1); land(2)
        proj(2, *vl[8])
        a("s_waitcnt lgkmcnt(6)\n s_mov_b64 exec, s[74:75]")
        a(f"buffer_store_dwordx4 v[{RK+28}:{RK+31}], v{VKMS}, {WS}, s50 offen sc1")
        a("s_mov_b64 exec, -1")
        proj(2, *vl[9])
        stamp(3)
        a(f"v_max3_f32 v{MXR}, v{MXR}, v{AK}, v{AK+1}\n v_max3_f32 v{MXR}, v{MXR}, v{AK+2}, v{AK+3}")
        proj(2, *vl[10])
        a(f"v_mov_b32 v{TMP}, v{MXR}")
        land(3)
        a(f"v_permlane16_swap_b32 v{TMP}, v{MXR}")
        proj(2, *vl[11])
        a(f"v_max_f32 v{MXR}, v{MXR}, v{TMP}\n v_mul_f32 v{MXR}, s54, v{MXR}")
        a("s_waitcnt vmcnt(10)")
        for r in range(AQ, AQ + 12):
            a(f"v_fma_f32 v{r}, v{r}, s54, -v{MXR}")
        for k in (4, 5, 6, 7):
            land(k)
        for r in range(AQ, AQ + 12):
            a(f"v_exp_f32 v{r}, v{r}")
        E = halves(AV)
        for x in E[:4]:
            a(x)
        for i in range(4):
            a(f"v_cvt_pk_bf16_f32 v{QF+i}, v{AQ+2*i}, v{AQ+2*i+1}")
        for x in E[4:8]:
            a(x)
        for t in range(2):
            a(f"v_mfma_f32_16x16x32_bf16 v[{QF+8+4*t}:{QF+11+4*t}], v[{VX+4*t}:{VX+4*t+3}], v[{QF}:{QF+3}], 0")
        a(f"v_cvt_pk_bf16_f32 v{TMP}, v{AK}, v{AK+1}\n v_cvt_pk_bf16_f32 v{MXR}, v{AK+2}, v{AK+3}")
        a(E[8]); a(E[9])
        a(f"v_cndmask_b32 v{QF+4}, 0, v{TMP}, s[56:57]\n v_cndmask_b32 v{QF+5}, 0, v{MXR}, s[56:57]")
        a(f"v_cndmask_b32 v{QF+6}, v{TMP}, 0, s[56:57]\n v_cndmask_b32 v{QF+7}, v{MXR}, 0, s[56:57]")
        a(f"v_add_f32 v{SUM}, v{AK}, v{AK+1}\n v_add_f32 v{TMP}, v{AK+2}, v{AK+3}")
        for t in range(2):
            a(f"v_mfma_f32_16x16x16_bf16 v[{QF+8+4*t}:{QF+11+4*t}], v[{AV+4}:{AV+5}], v[{QF+4+2*t}:{QF+5+2*t}], v[{QF+8+4*t}:{QF+11+4*t}]")
        a(f"buffer_store_dwordx2 v[{AV+4}:{AV+5}], v{VVMS}, {WS}, s50 offen offset:2048 sc1")
        a(f"s_cmp_eq_u32 s44, 63\n s_cbranch_scc1 L_chain_done")
        land(8)
        a(f"v_add_f32 v{SUM}, v{SUM}, v{TMP}\n v_add_f32 v{TMP}, v{AQ}, v{AQ+1}\n v_add_f32 v{MXR}, v{AQ+2}, v{AQ+3}")
        a(f"v_fma_f32 v{SUM}, v{SUM}, 0.5, v{AQ+4}\n v_add_f32 v{TMP}, v{TMP}, v{AQ+5}\n v_add_f32 v{MXR}, v{MXR}, v{AQ+6}")
        a(f"v_add_f32 v{SUM}, v{SUM}, v{AQ+7}\n v_add_f32 v{TMP}, v{TMP}, v{MXR}\n v_add_f32 v{SUM}, v{SUM}, v{TMP}")
        for sw in ("v_permlane16_swap_b32", "v_permlane32_swap_b32"):
            a(f"v_mov_b32 v{TMP}, v{SUM}\n {sw} v{TMP}, v{SUM}\n v_add_f32 v{SUM}, v{SUM}, v{TMP}")
        a(f"v_rcp_f32 v{SUM}, v{SUM}")
        for r in list(range(AV, AV + 8)) + list(range(QF, QF + 8)):
            a(f"v_mov_b32 v{r}, 0")
        stamp(4)
        for r in range(8):
            a(f"v_mul_f32 v{QF+8+r}, v{QF+8+r}, v{SUM}")
        for i in range(4):
            a(f"v_cvt_pk_bf16_f32 v{AQ+i}, v{QF+8+2*i}, v{QF+9+2*i}")
        a(f"ds_write_b128 v{VOX}, v[{AQ}:{AQ+3}]")
        for jc in (1, 2, 3):
            a(f"v_xor_b32 v{AQ+4*jc}, {jc << 10}, v{VOX}")
        land(9)
        a("s_waitcnt lgkmcnt(2)")
        for k in range(2):
            wo(k)
        a("s_barrier")
        for jc in (1, 2, 3):
            a(f"ds_read_b128 v[{AQ+4*jc}:{AQ+4*jc+3}], v{AQ+4*jc}")
        wo(2); wo(3)
        for k in (10, 11, 12, 13):
            land(k)
        a("s_add_u32 s50, s50, 0x20000")
        stamp(5)
        a("s_waitcnt lgkmcnt(10)")
        wo(4); wo(5)
        land(14); land(15)
        a("s_waitcnt lgkmcnt(13)")
        wo(6); wo(7)
        a("s_waitcnt lgkmcnt(12)")
        wo(8); wo(9)
        a("s_waitcnt lgkmcnt(8)")
        wo(10); wo(11)
        a("s_waitcnt lgkmcnt(4)")
        wo(12); wo(13)
        a("s_waitcnt lgkmcnt(0)")
        wo(14)
        for r in range(2):
            a(f"v_cvt_pk_bf16_f32 v{AV+r}, v{AV+r}, v{AV+4+r}")
        wo(15)
        for r in range(2, 4):
            a(f"v_cvt_pk_bf16_f32 v{AV+r}, v{AV+r}, v{AV+4+r}")
        for r in range(4):
            a(f"v_min_u32 v{AV+r}, -2, v{AV+r}")
        a(f"buffer_store_dwordx4 v[{AV}:{AV+3}], v{VP1S}, {WS}, s55 offen{st}")
        for r in range(4):
            a(f"v_cvt_pk_bf16_f32 v{QF+r}, v{QF+r}, v{QF+4+r}")
        for r in range(4):
            a(f"v_min_u32 v{QF+r}, -2, v{QF+r}")
        a(f"buffer_store_dwordx4 v[{QF}:{QF+3}], v{VP1S}, {WS}, s58 offen{st}")
        stamp(6)
        ld1 = poll("h1", QF + 8, VP1L, "s55", 0, 0)
        for d in range(4):
            a(f"v_cndmask_b32 v{QF+4+d}, 0, v0, s[{64+2*d}:{65+2*d}]")
        nops(a, o.get("d1", 160))
        ld1()
        nops(a, o.get("g1", 96))
        spin(f"{T}_h1", QF + 8, AQ, ld1)
        stamp(7)
        a(f"v_mfma_f32_16x16x32_bf16 v[{AV+4}:{AV+7}], v[{QF+8}:{QF+11}], v[{QF+4}:{QF+7}], 0")
        a(f"v_mfma_f32_16x16x32_bf16 v[{AV+4}:{AV+7}], v[{QF+12}:{QF+15}], v[{QF+4}:{QF+7}], v[{AV+4}:{AV+7}]")
        a("s_add_u32 s44, s44, 1\n s_add_u32 s45, s45, 8192")
        a(f"v_add_f32 v{AV+4}, v{AV+4}, v{AV+5}\n v_add_f32 v{AV+6}, v{AV+6}, v{AV+7}\n v_add_f32 v{AV+4}, v{AV+4}, v{AV+6}")
        a(f"v_mov_b32_dpp v{AV+5}, v{AV+4} quad_perm:[1,0,3,2] row_mask:0xf bank_mask:0xf")
        a(f"v_cvt_pk_bf16_f32 v{AV+4}, v{AV+4}, v{AV+5}\n v_min_u32 v{AQ+2}, -2, v{AV+4}")
        a("s_mov_b64 exec, s[72:73]")
        a(f"buffer_store_dword v{AQ+2}, v{VMS}, {WS}, s46 offen{st}")
        a("s_mov_b64 exec, -1\n s_add_u32 s46, s46, 8192")
        stamp(8)
        a(f"s_branch L_{T}")

    loop("pure")
    loop("mixed")
    a("L_chain_done:")
    a("s_waitcnt vmcnt(0)")
    a(f"v_mov_b32 v{AQ}, 1\n s_mov_b64 exec, 1")
    a(f"buffer_store_dword v{AQ}, v{VL16}, {WS}, s51 offen sc1")
    if prof:
        sk = a.label("Lp")
        a(f"s_or_b32 s3, s5, s6\n s_cmp_lg_u32 s3, 0\n s_cbranch_scc1 {sk}")
        a("s_lshl_b32 s3, s7, 6\n s_add_u32 s3, s3, 4")
        for i in range(12):
            a(f"v_mov_b32 v{RM+i}, s{80+i}\n buffer_store_dword v{RM+i}, v{VL16}, {DBG}, s3 offen offset:{4*i}")
        a(f"{sk}:")


def role_ao(a, o):
    VL16, VZ, VONE, VF, VFO, VW1, VKM, SEL, VP2S, VP2L, VL8, VHS = 1, 2, 3, 4, 5, 6, 7, 8, 12, 13, 14, 15
    MB, SX, SM, PF, PM, OA, OF, STG, XP, YP = 16, 32, 48, 64, 72, 80, 144, 176, 240, 244
    a.srd(24, PTR(11), D * H * DH * 2)
    a.srd(32, PTR(13), S * D * 2)
    a(f"v_and_b32 v40, 63, v0\n v_lshlrev_b32 v{VL16}, 4, v40\n v_lshlrev_b32 v{VL8}, 3, v40\n v_add_u32 v{VW1}, 0x10000, v{VL16}")
    a(f"v_mov_b32 v{VZ}, 0\n v_mov_b32 v{VONE}, 1")
    a("v_and_b32 v41, 15, v0\n v_bfe_u32 v42, v0, 4, 1\n v_bfe_u32 v43, v0, 5, 1\n v_and_b32 v44, 31, v0")
    a("v_lshlrev_b32 v45, 12, v43\n v_lshl_add_u32 v45, v41, 4, v45\n v_lshl_add_u32 v45, v42, 3, v45")
    a("s_mov_b32 s60, 0x05040100\n s_mov_b32 s61, 0x07060302")
    a("s_lshl_b32 s41, s5, 17\n s_lshl_b32 s3, s6, 15\n s_add_u32 s41, s41, s3")
    a(f"s_lshl_b32 s3, s6, 11\n v_add_u32 v46, s3, v{VL16}\n v_add_u32 v47, s3, v{VW1}")
    groups = [(f, sel, eh) for f in range(2) for sel in range(2) for eh in range(2)]
    LD = lambda gi: 80 + 16 * gi
    for gi, (f, sel, eh) in enumerate(groups):
        a(f"s_add_u32 s3, s41, {f*16384 + sel*512 + eh*256}\n s_add_u32 s40, s3, 8192")
        for j in range(8):
            r = LD(gi) + 2 * j
            a(f"buffer_load_dwordx2 v[{r}:{r+1}], v45, s[24:27], {'s40' if j >> 2 else 's3'} offen offset:{(j&3)*1024}")
        if gi == 6:
            a("s_waitcnt vmcnt(48)")
    for gi, (f, sel, eh) in enumerate(groups):
        a(f"s_waitcnt vmcnt({8*(7-gi)})")
        for e3 in range(4):
            for i in range(4):
                r = LD(gi) + 4 * i + (e3 >> 1)
                a(f"v_perm_b32 v{48+4*e3+i}, v{r+2}, v{r}, s{60+(e3&1)}")
        for e3 in range(4):
            T = 8 * sel + 4 * eh + e3
            off = T * 8192 + f * 1024
            a(f"ds_write_b128 v{46 + (off >> 16)}, v[{48+4*e3}:{51+4*e3}] offset:{off & 0xffff}")
        a("s_waitcnt lgkmcnt(0)")
    if not o.get("staged"):
        wait_counter(a, VF, VZ, 0, 32)
    team_publish(a, VF, VZ)
    a("v_mov_b32 v48, 0xf149f2ca\n v_lshlrev_b32 v49, 2, v43")
    for r in range(16):
        a(f"v_add_u32 v50, {8*(r>>2)+(r&3)}, v49\n v_cmp_gt_u32 vcc, v50, v44\n v_cndmask_b32 v{MB+r}, 0, v48, vcc")
    a("v_mov_b32 v48, 0x3f80\n v_and_b32 v49, 1, v0\n v_lshlrev_b32 v49, 4, v49\n v_lshlrev_b32 v48, v49, v48")
    a("v_lshrrev_b32 v49, 1, v41\n v_lshlrev_b32 v50, 2, v43\n v_sub_u32 v49, v49, v50")
    for d in range(4):
        a(f"v_cmp_eq_u32 vcc, {d}, v49\n v_cndmask_b32 v{SEL+d}, 0, v48, vcc")
    a(f"v_and_b32 v48, 7, v0\n v_lshlrev_b32 v{VKM}, 4, v48\n v_lshl_add_u32 v{VKM}, v43, 7, v{VKM}")
    a(f"v_lshlrev_b32 v{VP2S}, 17, v43\n v_lshl_add_u32 v{VP2S}, v44, 4, v{VP2S}")
    a(f"v_lshlrev_b32 v{VP2L}, 10, v42\n v_lshl_add_u32 v{VP2L}, v43, 9, v{VP2L}\n v_lshl_add_u32 v{VP2L}, v41, 4, v{VP2L}")
    a(f"s_and_b32 s3, s5, 15\n s_lshl_b32 s3, s3, 4\n v_xor_b32 v{VHS}, s3, v{VL16}")
    a("s_mov_b32 s44, s6\n s_lshl_b32 s3, s7, 6\n s_add_u32 s3, s3, s44")
    a(f"s_lshl_b32 s49, s3, 7\n s_add_u32 s49, s49, {FP}")
    a("s_lshl_b32 s3, s3, 5\n s_add_u32 s3, s3, s5\n s_lshl_b32 s45, s3, 6")
    a(f"s_mul_i32 s46, s3, 24576\n s_add_u32 s46, s46, {OFF_QKV}\n s_lshl_b32 s47, s3, 12\n s_add_u32 s47, s47, {OFF_KM}")
    a(f"s_lshl_b32 s48, s7, 23\n s_lshl_b32 s3, s6, 21\n s_add_u32 s48, s48, s3\n s_add_u32 s48, s48, {OFF_P2}")
    a("s_lshl_b32 s50, s44, 5\n s_add_u32 s50, s50, s5\n s_lshl_b32 s50, s50, 10")
    a(f"s_lshl_b32 s51, s7, 21\n s_add_u32 s51, s51, {OFF_X}\n s_mov_b32 s54, 0x3e0293ee")
    a("s_barrier")
    team_wait(a, VF, VFO, "L_ao_mixed")

    def loop(mode):
        st = "" if mode == "pure" else " sc1"
        a(f"L_ao_{mode}:")
        a(f"v_bfe_u32 v{SX}, v{VL16}, 2, 5")
        wait_flags(a, VF, SX, "s45")
        for m, dst in ((0, 32), (2, 0), (1, 64)):
            for hh in range(2):
                a(f"s_add_u32 s3, s46, {m*8192+hh*4096}")
                for i in range(4):
                    r = dst + 16 * hh + 4 * i
                    a(f"buffer_load_dwordx4 a[{r}:{r+3}], v{VL16}, {WS}, s3 offen offset:{i*1024} sc1")
        a(f"s_add_u32 s3, s51, s50\n s_add_u32 s40, s50, {OFF_Y}")
        a(f"buffer_load_dwordx4 v[{XP}:{XP+3}], v{VL16}, {WS}, s3 offen sc1")
        a(f"buffer_load_dwordx4 v[{YP}:{YP+3}], v{VL16}, {WS}, s40 offen sc1")
        a(f"v_bfe_u32 v{SM}, v{VL16}, 2, 4")
        wait_flags(a, VF, SM, "s45", imm=32)
        for i in range(8):
            a(f"buffer_load_dwordx4 a[{96+4*i}:{99+4*i}], v{VKM}, {WS}, s47 offen offset:{i*256} sc1")
        for ct in range(4):
            a(f"buffer_load_dwordx2 a[{128+2*ct}:{129+2*ct}], v{VL8}, {WS}, s47 offen offset:{2048+ct*512} sc1")
        for i in range(8):
            a(f"v_mfma_f32_32x32x16_bf16 v[{SX}:{SX+15}], a[{32+4*i}:{35+4*i}], a[{4*i}:{4*i+3}], " + (f"v[{SX}:{SX+15}]" if i else f"v[{MB}:{MB+15}]"))
        MXR, TMP, SUM = 74, 75, 76
        for i in range(8):
            a(f"s_waitcnt vmcnt({11-i})")
            a(f"v_mfma_f32_32x32x16_bf16 v[{SM}:{SM+15}], a[{96+4*i}:{99+4*i}], a[{4*i}:{4*i+3}], " + (f"v[{SM}:{SM+15}]" if i else "0"))
        seq = [(2 * p + t, ks) for p in range(8) for ks in range(8) for t in range(2)]
        a(f"v_max3_f32 v{MXR}, v{SX}, v{SX+1}, v{SX+2}\n v_max3_f32 v{TMP}, v{SX+3}, v{SX+4}, v{SX+5}")
        for r in range(6, 14, 4):
            a(f"v_max3_f32 v{MXR}, v{MXR}, v{SX+r}, v{SX+r+1}\n v_max3_f32 v{TMP}, v{TMP}, v{SX+r+2}, v{SX+r+3}")
        a(f"v_max3_f32 v{MXR}, v{MXR}, v{SX+14}, v{SX+15}")
        a(f"v_max3_f32 v{TMP}, v{TMP}, v{SM}, v{SM+1}\n v_max3_f32 v{MXR}, v{MXR}, v{SM+2}, v{SM+3}\n v_max_f32 v{MXR}, v{MXR}, v{TMP}")
        a(f"v_mov_b32 v{TMP}, v{MXR}\n v_permlane32_swap_b32 v{TMP}, v{MXR}\n v_max_f32 v{MXR}, v{MXR}, v{TMP}\n v_mul_f32 v{MXR}, s54, v{MXR}")
        for r in range(SX, SX + 20):
            a(f"v_fma_f32 v{r}, v{r}, s54, -v{MXR}")
        for r in range(SX, SX + 20):
            a(f"v_exp_f32 v{r}, v{r}")
        a(f"v_add_f32 v{SUM}, v{SX}, v{SX+1}\n v_add_f32 v{TMP}, v{SX+2}, v{SX+3}")
        for r in range(SX + 4, SX + 20, 2):
            a(f"v_add_f32 v{SUM}, v{SUM}, v{r}\n v_add_f32 v{TMP}, v{TMP}, v{r+1}")
        a(f"v_add_f32 v{SUM}, v{SUM}, v{TMP}")
        a(f"v_mov_b32 v{TMP}, v{SUM}\n v_permlane32_swap_b32 v{TMP}, v{SUM}\n v_add_f32 v{SUM}, v{SUM}, v{TMP}\n v_rcp_f32 v{SUM}, v{SUM}")
        for r in range(SX, SX + 20):
            a(f"v_mul_f32 v{r}, v{r}, v{SUM}")
        for i in range(10):
            a(f"v_cvt_pk_bf16_f32 v{PF+i}, v{SX+2*i}, v{SX+2*i+1}")
        BL, NB = 32, 6
        bf = lambda j: f"v[{BL+4*(j%NB)}:{BL+4*(j%NB)+3}]"

        def rd(j):
            T, ks = seq[j]
            off = T * 8192 + ks * 1024
            a(f"ds_read_b128 {bf(j)}, v{VW1 if off >> 16 else VL16} offset:{off & 0xffff}")

        a("s_waitcnt vmcnt(0)")
        for ct in range(4):
            A = OA + 16 * ct
            for f in range(2):
                a(f"v_mfma_f32_32x32x16_bf16 v[{A}:{A+15}], a[{64+8*ct+4*f}:{67+8*ct+4*f}], v[{PF+4*f}:{PF+4*f+3}], " + (f"v[{A}:{A+15}]" if f else "0"))
            a(f"v_mfma_f32_32x32x8_bf16 v[{A}:{A+15}], a[{128+2*ct}:{129+2*ct}], v[{PM}:{PM+1}], v[{A}:{A+15}]")
            if ct == 0:
                for j in range(NB - 1):
                    rd(j)
            if ct >= 2:
                for i in range(8):
                    a(f"v_cvt_pk_bf16_f32 v{OF+8*(ct-2)+i}, v{OA+16*(ct-2)+2*i}, v{OA+16*(ct-2)+2*i+1}")
        for ct in (2, 3):
            for i in range(8):
                a(f"v_cvt_pk_bf16_f32 v{OF+8*ct+i}, v{OA+16*ct+2*i}, v{OA+16*ct+2*i+1}")
        a("s_lshl_b32 s52, s5, 10\n s_add_u32 s52, s52, s48")
        acc = lambda T: OA + 16 * (T % 4)
        fill = {}

        def pack(p):
            return [f"v_cvt_pk_bf16_f32 v{STG+4*r+(p&3)}, v{acc(2*p)+r}, v{acc(2*p+1)+r}" for r in range(16)]

        def stores(sel):
            L = []
            for r in range(16):
                L.append(f"s_add_u32 s3, s52, {(8*(r>>2)+(r&3))*32768}\n buffer_store_dwordx4 v[{STG+4*r}:{STG+4*r+3}], v{VP2S}, {WS}, s3 offen offset:{sel*512}{st}")
            return L

        for p in range(7):
            L = pack(p)
            for i in range(4):
                fill.setdefault(16 * (p + 1) + 3 + i, []).extend(L[4 * i:4 * i + 4])
        L = stores(0)
        for i in range(8):
            fill.setdefault(16 * 4 + 7 + i, []).extend(L[2 * i:2 * i + 2])
        for j, (T, ks) in enumerate(seq):
            if j + NB - 1 < 128:
                rd(j + NB - 1)
            a(f"s_waitcnt lgkmcnt({min(NB-1, 127-j)})")
            a(f"v_mfma_f32_32x32x16_bf16 v[{acc(T)}:{acc(T)+15}], v[{OF+4*ks}:{OF+4*ks+3}], {bf(j)}, " + (f"v[{acc(T)}:{acc(T)+15}]" if ks else "0"))
            for x in fill.get(j, []):
                a(x)
        P, L = pack(7), stores(1)
        for r in range(16):
            a(P[r]); a(L[r])
        a("s_lshl_b32 s3, s5, 2\n s_add_u32 s3, s3, s49")
        a("s_waitcnt vmcnt(0)\n s_mov_b64 exec, 1")
        a(f"buffer_store_dword v{VONE}, v{VZ}, {WS}, s3 offen{st}")
        a("s_mov_b64 exec, -1")
        wait_flags(a, VF, VFO, "s49", sleep=0)
        a("s_lshl_b32 s52, s5, 15\n s_add_u32 s52, s52, s48")
        G = 80
        for ld in range(16):
            for u in range(2):
                r = G + 8 * ld + 4 * u
                a(f"buffer_load_dwordx4 v[{r}:{r+3}], v{VP2L}, {WS}, s52 offen offset:{u*256+(ld&1)*2048} sc1")
            if ld & 1:
                a("s_add_u32 s52, s52, 4096")
        row = dict(x=40, t=48, s=56, yp=YP, xo=60, ho=64)
        for i in range(4):
            unpack(a, XP + i, 40 + 2 * i, 41 + 2 * i)
        for ld in range(16):
            a(f"s_waitcnt vmcnt({2*(15-ld)})")
            for u in range(2):
                r = G + 8 * ld + 4 * u
                a(f"v_mfma_f32_16x16x32_bf16 v[{32+4*u}:{35+4*u}], v[{SEL}:{SEL+3}], v[{r}:{r+3}], " + (f"v[{32+4*u}:{35+4*u}]" if ld else "0"))
        for i in range(4):
            a(f"v_cvt_pk_bf16_f32 v56, v{32+2*i}, v{33+2*i}")
            unpack(a, 56, 32 + 2 * i, 33 + 2 * i)
            a(f"v_add_f32 v{40+2*i}, v{40+2*i}, v{32+2*i}\n v_add_f32 v{41+2*i}, v{41+2*i}, v{33+2*i}")
            a(f"v_cvt_pk_bf16_f32 v{60+i}, v{40+2*i}, v{41+2*i}")
        l1, nx = a.label("Lao"), a.label("Lao")
        a(f"s_cmp_lg_u32 s7, 0\n s_cbranch_scc1 {l1}")
        for i in range(4):
            unpack(a, 60 + i, 40 + 2 * i, 41 + 2 * i)
        rowfin(a, [row])
        a(f"s_add_u32 s3, s50, {OFF_H+0x200000}\n s_add_u32 s40, s50, {OFF_X+0x200000}")
        a(f"buffer_store_dwordx4 v[64:67], v{VHS}, {WS}, s3 offen sc1")
        a(f"buffer_store_dwordx4 v[60:63], v{VL16}, {WS}, s40 offen sc1")
        a(f"s_lshr_b32 s3, s50, 8\n s_add_u32 s3, s3, {FH+64*128}")
        a("s_waitcnt vmcnt(0)")
        flag_store(a, VONE, VZ, "s3")
        a(f"s_branch {nx}")
        a(f"{l1}:")
        a(f"buffer_store_dwordx4 v[60:63], v{VL16}, s[32:35], s50 offen")
        a(f"{nx}:")
        a(f"s_add_u32 s44, s44, 4\n s_add_u32 s45, s45, {4*32*64}\n s_add_u32 s46, s46, {4*32*24576}\n s_add_u32 s47, s47, {4*32*4096}")
        a(f"s_xor_b32 s48, s48, 0x100000\n s_add_u32 s49, s49, 512\n s_add_u32 s50, s50, {4*32*1024}")
        a(f"s_cmp_lt_u32 s44, 64\n s_cbranch_scc1 L_ao_{mode}")
        a("s_endpgm")

    loop("pure")
    loop("mixed")
```

```python
import sys
sys.path.insert(0, "gen")
from asmlib import *
from layout import *
import hazard

PTR = lambda i: 64 + 2 * i
WS = "s[8:11]"
DBG = "s[28:31]"
TMO = "s98"
EPS = 0x3727C5AC


def poll_tail(a, loop):
    a(f"s_sub_u32 {TMO}, {TMO}, 1")
    a(f"s_cbranch_scc1 L_end")
    a(f"s_branch {loop}")


def wait_flags(a, vdst, voff, soff, imm=0, sleep=1, srd=WS):
    lp, dn = a.label("Lw"), a.label("Lwd")
    a(f"{lp}:")
    a(f"buffer_load_dword v{vdst}, v{voff}, {srd}, {soff} offen offset:{imm} sc1")
    a("s_waitcnt vmcnt(0)")
    a(f"v_cmp_eq_u32 vcc, 0, v{vdst}")
    a(f"s_cbranch_vccz {dn}")
    if sleep:
        a(f"s_sleep {sleep}")
    poll_tail(a, lp)
    a(f"{dn}:")


def wait_counter(a, vtmp, vz, imm, target):
    lp, dn = a.label("Lc"), a.label("Lcd")
    a(f"{lp}:")
    a(f"buffer_load_dword v{vtmp}, v{vz}, {DBG}, 0 offen offset:{imm} sc1")
    a("s_waitcnt vmcnt(0)")
    a(f"v_cmp_gt_u32 vcc, {target}, v{vtmp}")
    a(f"s_cbranch_vccz {dn}")
    a("s_sleep 2")
    poll_tail(a, lp)
    a(f"{dn}:")


def count_arrive(a, vtmp, vz, imm):
    a(f"v_mov_b32 v{vtmp}, 1")
    a("s_mov_b64 exec, 1")
    a(f"buffer_atomic_add v{vtmp}, v{vz}, {DBG}, 0 offen offset:{imm} sc1")
    a("s_mov_b64 exec, -1")


def allreduce(a, rs, op="v_add_f32"):
    for pat in ("quad_perm:[1,0,3,2]", "quad_perm:[2,3,0,1]", "row_half_mirror", "row_mirror"):
        for r, t in rs:
            a(f"{op}_dpp v{r}, v{r}, v{r} {pat} row_mask:0xf bank_mask:0xf")
    for sw in ("v_permlane16_swap_b32", "v_permlane32_swap_b32"):
        for r, t in rs:
            a(f"v_mov_b32 v{t}, v{r}")
        for r, t in rs:
            a(f"{sw} v{t}, v{r}")
        for r, t in rs:
            a(f"{op} v{r}, v{r}, v{t}")


def unpack(a, p, lo, hi):
    a(f"v_lshlrev_b32 v{lo}, 16, v{p}")
    a(f"v_and_b32 v{hi}, 0xffff0000, v{p}")


def rnd1(a, r):
    a(f"v_cvt_pk_bf16_f32 v{r}, v{r}, v{r}")
    a(f"v_and_b32 v{r}, 0xffff0000, v{r}")


def layernorm(a, rows, key):
    for R in rows:
        x, s = R["x"], R["s"]
        a(f"v_add_f32 v{s}, v{x}, v{x+1}\n v_add_f32 v{s+1}, v{x+2}, v{x+3}")
        a(f"v_add_f32 v{s+2}, v{x+4}, v{x+5}\n v_add_f32 v{s+3}, v{x+6}, v{x+7}")
        a(f"v_add_f32 v{s}, v{s}, v{s+1}\n v_add_f32 v{s+2}, v{s+2}, v{s+3}\n v_add_f32 v{s}, v{s}, v{s+2}")
    allreduce(a, [(R["s"], R["s"] + 1) for R in rows])
    for R in rows:
        x, t, s = R["x"], R["t"], R["s"]
        a(f"v_mul_f32 v{s}, 0x3b000000, v{s}")
        for i in range(8):
            a(f"v_sub_f32 v{t+i}, v{x+i}, v{s}")
        a(f"v_mul_f32 v{s+2}, v{t}, v{t}\n v_mul_f32 v{s+3}, v{t+1}, v{t+1}")
        for i in range(2, 8):
            a(f"v_fmac_f32 v{s+2+(i&1)}, v{t+i}, v{t+i}")
        a(f"v_add_f32 v{s+2}, v{s+2}, v{s+3}")
    allreduce(a, [(R["s"] + 2, R["s"] + 3) for R in rows])
    for R in rows:
        x, t, s = R["x"], R["t"], R["s"]
        a(f"v_mul_f32 v{s+2}, 0x3b000000, v{s+2}")
        rnd1(a, s + 2)
        a(f"v_add_f32 v{s+2}, {EPS:#x}, v{s+2}")
        rnd1(a, s + 2)
        a(f"v_sqrt_f32 v{s+2}, v{s+2}")
        rnd1(a, s)
        rnd1(a, s + 2)
        a(f"v_rcp_f32 v{s+2}, v{s+2}")
        for i in range(8):
            a(f"v_sub_f32 v{t+i}, v{x+i}, v{s}")
        for i in range(0, 8, 2):
            a(f"v_cvt_pk_bf16_f32 v{s+1}, v{t+i}, v{t+i+1}")
            unpack(a, s + 1, t + i, t + i + 1)
        for i in range(8):
            a(f"v_mul_f32 v{t+i}, v{t+i}, v{s+2}")
        for i in range(4):
            a(f"v_cvt_pk_bf16_f32 v{R[key]+i}, v{t+2*i}, v{t+2*i+1}")


def rowfin(a, rows):
    layernorm(a, rows, "ho")
    for R in rows:
        x, t, s, yp, ho, xo = R["x"], R["t"], R["s"], R["yp"], R["ho"], R["xo"]
        for i in range(4):
            unpack(a, ho + i, t + 2 * i, t + 2 * i + 1)
            unpack(a, yp + i, s, s + 1)
            a(f"v_mul_f32 v{t+2*i}, v{t+2*i}, v{s}\n v_mul_f32 v{t+2*i+1}, v{t+2*i+1}, v{s+1}")
            a(f"v_cvt_pk_bf16_f32 v{s+2}, v{t+2*i}, v{t+2*i+1}")
            unpack(a, s + 2, t + 2 * i, t + 2 * i + 1)
            a(f"v_add_f32 v{x+2*i}, v{x+2*i}, v{t+2*i}\n v_add_f32 v{x+2*i+1}, v{x+2*i+1}, v{t+2*i+1}")
            a(f"v_cvt_pk_bf16_f32 v{xo+i}, v{x+2*i}, v{x+2*i+1}")
            unpack(a, xo + i, x + 2 * i, x + 2 * i + 1)
    layernorm(a, rows, "ho")


def role_pre(a, o):
    KK, KKS = 0x0, 0x1080
    KVR, KVS = 0x5000, 4608
    YS, YR, RS = 0xA000, 0xE000, 1040
    a.srd(12, PTR(1), S * D * 2)
    a.srd(16, PTR(2), S * D * 2)
    a.srd(20, PTR(4), S * D * 2)
    a.srd(24, PTR(0), S * D * 2)
    a(f"s_lshl_b32 s3, s7, 5\n s_load_dwordx8 s[40:47], s[{PTR(3)}:{PTR(3)+1}], s3")
    a(f"s_lshl_b32 s3, s7, 3\n s_load_dwordx2 s[36:37], s[{PTR(5)}:{PTR(5)+1}], s3")
    a("v_and_b32 v1, 63, v0\n v_lshlrev_b32 v2, 4, v1")
    a("v_and_b32 v3, 15, v0\n v_bfe_u32 v4, v0, 4, 2")
    a("v_lshlrev_b32 v6, 13, v0\n v_add_u32 v6, s3, v6")
    a("v_subrev_u32 v5, 3072, v6\n v_add_u32 v7, 4096, v6")
    for i in range(11):
        vo, im = (5, i * 1024) if i < 3 else ((6, (i - 3) * 1024) if i < 7 else (7, (i - 7) * 1024))
        a(f"buffer_load_dwordx2 v[{10+2*i}:{11+2*i}], v{vo}, s[12:15], 0 offen offset:{im}")
    for i in range(8):
        vo, im = (6, i * 1024) if i < 4 else (7, (i - 4) * 1024)
        a(f"buffer_load_dwordx2 v[{32+2*i}:{33+2*i}], v{vo}, s[16:19], 0 offen offset:{im}")
    a("s_lshl_b32 s38, s7, 2\n s_add_u32 s38, s38, s6")
    a("s_lshl_b32 s39, s38, 12")
    a(f"s_mul_i32 s33, s6, {KKS}")
    a(f"s_add_u32 m0, s33, {KK+32}")
    for i in range(4):
        a(f"buffer_load_dwordx4 v2, s[20:23], s39 offen offset:{i*1024} lds")
    a("v_mov_b32 v48, 0\n v_mov_b32 v49, 0")
    a(f"s_mul_i32 s34, s6, {KVS}\n s_add_u32 s34, s34, {KVR}")
    a("v_lshlrev_b32 v8, 3, v1\n v_add_u32 v9, s34, v8")
    a("ds_write_b64 v9, v[48:49] offset:4096")
    a("v_and_b32 v9, 24, v8\n v_add_u32 v9, s33, v9")
    a(f"ds_write_b64 v9, v[48:49] offset:{KK}")
    a("s_waitcnt lgkmcnt(0)")
    for c in range(4):
        for j in range(4):
            src = 40 + 2 * c + (j >> 1)
            a(f"s_lshl_b32 s{48+4*c+j}, s{src}, 16" if j % 2 == 0 else f"s_and_b32 s{48+4*c+j}, s{src}, 0xffff0000")
    a("s_bitcmp1_b32 s6, 1\n s_cselect_b32 s36, s37, s36")
    a("s_lshl_b32 s37, s36, 16\n s_and_b32 s36, s36, 0xffff0000")
    a("s_bitcmp1_b32 s6, 0\n s_cselect_b32 s36, s36, s37")
    a(f"v_lshlrev_b32 v9, 4, v0\n v_sub_u32 v9, {KVR+4080}, v9")
    a("s_waitcnt vmcnt(4)")
    for c in range(4):
        up = (lambda d, s: a(f"v_lshlrev_b32 v{d}, 16, v{s}")) if c % 2 == 0 else (lambda d, s: a(f"v_and_b32 v{d}, 0xffff0000, v{s}"))
        for i in range(11):
            up(50 + i, 10 + 2 * i + (c >> 1))
        for i in range(8):
            up(62 + i, 32 + 2 * i + (c >> 1))
        for i in range(8):
            a(f"v_mul_f32 v{70+i}, s{48+4*c+3}, v{50+i}")
        for tap in (2, 1, 0):
            for i in range(8):
                a(f"v_fmac_f32 v{70+i}, s{48+4*c+tap}, v{50+i+3-tap}")
        for i in range(8):
            a(f"v_mul_f32 v{70+i}, v{70+i}, v{62+i}")
        for j in range(4):
            a(f"v_cvt_pk_bf16_f32 v{80+4*c+j}, v{77-2*j}, v{76-2*j}")
        a(f"ds_write_b128 v9, v[{80+4*c}:{83+4*c}] offset:{c*KVS}")
    a(f"v_lshlrev_b32 v8, 1, v3\n v_lshl_add_u32 v8, v4, 4, v8\n v_add_u32 v8, s33, v8")
    a("s_waitcnt vmcnt(0)")
    for i in range(64):
        a(f"ds_read_b128 a[{4*i}:{4*i+3}], v8 offset:{KK+2+64*i}")
        if i % 8 == 7:
            a("s_waitcnt lgkmcnt(4)")
    a("s_waitcnt lgkmcnt(0)\n s_barrier")
    a(f"v_lshlrev_b32 v8, 5, v3\n v_sub_u32 v8, {4064-64*56}, v8\n v_lshl_add_u32 v8, v4, 4, v8\n v_add_u32 v8, s34, v8")
    ms = list(range(56, -8, -1))
    NB = 6
    BF, ACC = 10, 40
    rd = lambda j: a(f"ds_read_b128 v[{BF+4*(j%NB)}:{BF+4*(j%NB)+3}], v8 offset:{64*(56-ms[j])}")
    for j in range(NB - 1):
        rd(j)
    started = set()
    for j, m in enumerate(ms):
        if j + NB - 1 < len(ms):
            rd(j + NB - 1)
        a(f"s_waitcnt lgkmcnt({min(NB-1, len(ms)-1-j)})")
        for T in range(8):
            ai = 8 * T - m
            if 0 <= ai <= 63:
                c = f"v[{ACC+4*T}:{ACC+4*T+3}]" if T in started else "0"
                started.add(T)
                a(f"v_mfma_f32_16x16x32_bf16 v[{ACC+4*T}:{ACC+4*T+3}], a[{4*ai}:{4*ai+3}], v[{BF+4*(j%NB)}:{BF+4*(j%NB)+3}], {c}")
    a(f"v_lshlrev_b32 v9, 5, v3\n v_lshl_add_u32 v9, v4, 3, v9")
    a(f"v_sub_u32 v8, {4088-7*512}, v9\n v_add_u32 v8, s34, v8")
    for T in range(8):
        a(f"ds_read_b64 v[{80+2*T}:{81+2*T}], v8 offset:{(7-T)*512}")
    a(f"s_add_u32 s39, s39, {OFF_YT}")
    a("s_waitcnt lgkmcnt(0)")
    for T in range(8):
        A = ACC + 4 * T
        unpack(a, 81 + 2 * T, 11, 10)
        unpack(a, 80 + 2 * T, 13, 12)
        for r in range(4):
            a(f"v_mul_f32 v{10+r}, s36, v{10+r}")
        for r in range(0, 4, 2):
            a(f"v_cvt_pk_bf16_f32 v14, v{10+r}, v{11+r}")
            unpack(a, 14, 10 + r, 11 + r)
            a(f"v_cvt_pk_bf16_f32 v14, v{A+r}, v{A+r+1}")
            unpack(a, 14, A + r, A + r + 1)
        for r in range(4):
            a(f"v_add_f32 v{A+r}, v{A+r}, v{10+r}")
        a(f"v_cvt_pk_bf16_f32 v{A}, v{A}, v{A+1}\n v_cvt_pk_bf16_f32 v{A+1}, v{A+2}, v{A+3}")
        a(f"buffer_store_dwordx2 v[{A}:{A+1}], v9, {WS}, s39 offen offset:{T*512} sc1")
    a("s_lshl_b32 s33, s7, 4\n s_lshl_b32 s3, s6, 2\n s_add_u32 s33, s33, s3")
    a("s_lshl_b32 s34, s33, 10")
    XP = 100
    for r in range(4):
        a(f"buffer_load_dwordx4 v[{XP+4*r}:{XP+4*r+3}], v2, s[24:27], s34 offen offset:{r*1024}")
    a("v_mov_b32 v5, 0")
    a("s_waitcnt vmcnt(0)\n s_barrier")
    sk = a.label("Lsk")
    a(f"s_cmp_lg_u32 s6, 0\n s_cbranch_scc1 {sk}")
    count_arrive(a, 6, 5, 128)
    a(f"{sk}:")
    wait_counter(a, 6, 5, 128, 128)
    if not o.get("staged"):
        wait_counter(a, 6, 5, 0, 32)
    a("v_lshrrev_b32 v6, 1, v1\n v_lshlrev_b32 v6, 12, v6\n v_and_b32 v7, 1, v1\n v_lshl_add_u32 v6, v7, 4, v6")
    a(f"s_lshl_b32 s35, s7, 5\n s_add_u32 s35, s35, {OFF_YT}\n s_lshl_b32 s3, s6, 19\n s_add_u32 s35, s35, s3")
    a(f"s_lshl_b32 s37, s6, 12\n s_add_u32 s37, s37, {YS}")
    for i in range(4):
        a(f"s_add_u32 m0, s37, {i*1024}")
        a(f"buffer_load_dwordx4 v6, {WS}, s35 offen sc1 lds")
        a(f"s_add_u32 s35, s35, {32*4096}")
    a("v_lshl_add_u32 v6, v1, 3, s37")
    a(f"v_mul_u32_u24 v7, {RS}, v3\n v_lshl_add_u32 v7, v4, 3, v7\n s_lshl_b32 s3, s6, 8\n v_add_u32 v7, s3, v7")
    a("s_waitcnt vmcnt(0)")
    for i in range(8):
        a(f"ds_read_b64_tr_b16 v[{10+2*i}:{11+2*i}], v6 offset:{i*512}")
    for i in range(8):
        a(f"s_waitcnt lgkmcnt(7)")
        a(f"ds_write_b64 v7, v[{10+2*i}:{11+2*i}] offset:{YR+32*i}")
    a("s_waitcnt lgkmcnt(0)\n s_barrier")
    a(f"s_mul_i32 s3, s6, {4*RS}\n v_add_u32 v7, s3, v2")
    rows = []
    for r in range(4):
        b = 120 + 32 * r
        rows.append(dict(x=b, t=b + 8, s=b + 16, yp=b + 20, xo=b + 24, ho=b + 28))
        a(f"ds_read_b128 v[{b+20}:{b+23}], v7 offset:{YR+r*RS}")
        for i in range(4):
            unpack(a, XP + 4 * r + i, b + 2 * i, b + 2 * i + 1)
    a("s_waitcnt lgkmcnt(0)")
    a(f"s_add_u32 s35, s34, {OFF_Y}")
    for r in range(4):
        a(f"buffer_store_dwordx4 v[{rows[r]['yp']}:{rows[r]['yp']+3}], v2, {WS}, s35 offen offset:{r*1024} sc1")
    rowfin(a, rows)
    a(f"s_add_u32 s35, s34, {OFF_X}\n s_add_u32 s36, s34, {OFF_H}")
    for r in range(4):
        a(f"s_add_u32 s3, s33, {r}\n s_and_b32 s3, s3, 15\n s_lshl_b32 s3, s3, 4")
        a(f"v_xor_b32 v{10+r}, s3, v2")
        a(f"buffer_store_dwordx4 v[{rows[r]['ho']}:{rows[r]['ho']+3}], v{10+r}, {WS}, s36 offen offset:{r*1024} sc1")
        a(f"buffer_store_dwordx4 v[{rows[r]['xo']}:{rows[r]['xo']+3}], v2, {WS}, s35 offen offset:{r*1024} sc1")
    a(f"s_lshl_b32 s35, s33, 2\n s_add_u32 s35, s35, {FH}")
    a("v_mov_b32 v6, 1\n v_lshlrev_b32 v7, 2, v1")
    a("s_waitcnt vmcnt(0)")
    a("s_mov_b64 exec, 15")
    a(f"buffer_store_dword v6, v7, {WS}, s35 offen sc1")
    a("s_mov_b64 exec, -1")
    a("s_barrier")


def build(o):
    from roles import role_qkv, role_chain, role_ao
    roles = o["roles"]
    a = Asm()
    a("s_cmp_ge_u32 s2, 256\n s_cbranch_scc1 L_end")
    a("s_load_dwordx16 s[64:79], s[0:1], 0\n s_load_dwordx16 s[80:95], s[0:1], 64")
    a("s_and_b32 s4, s2, 7\n s_lshr_b32 s5, s2, 3")
    a("v_lshrrev_b32 v1, 6, v0\n s_nop 0\n v_readfirstlane_b32 s6, v1")
    a(f"s_mov_b32 {TMO}, {o.get('tmo', 1 << 20)}")
    a("s_waitcnt lgkmcnt(0)")
    a.srd(8, PTR(15), WS_BYTES)
    a.srd(28, PTR(14), 256)
    if "pre" in roles:
        a("s_mov_b32 s7, 0")
        for t, slot in PRE_SLOT.items():
            a(f"s_cmp_eq_u32 s4, {t}\n s_cbranch_scc1 L_pre")
            a("s_add_u32 s7, s7, 32")
        a("s_branch L_main")
        a("L_pre:")
        a("s_add_u32 s7, s7, s5")
        role_pre(a, o)
    a("L_main:")
    a("s_lshr_b32 s7, s4, 2")
    for l in (0, 1):
        if f"chain{l}" in roles:
            a(f"s_cmp_eq_u32 s4, {T_CHAIN[l]}\n s_cbranch_scc1 L_chain")
        if f"ao{l}" in roles:
            a(f"s_cmp_eq_u32 s4, {T_AO[l]}\n s_cbranch_scc1 L_ao")
        if f"qkv{l}" in roles:
            for t in T_QKV[l]:
                a(f"s_cmp_eq_u32 s4, {t}\n s_cbranch_scc1 L_qkv")
    a("L_end:\n s_endpgm")
    if roles & {"qkv0", "qkv1"}:
        a("L_qkv:")
        role_qkv(a, o)
        a("s_endpgm")
    if roles & {"ao0", "ao1"}:
        a("L_ao:")
        role_ao(a, o)
        a("s_endpgm")
    if roles & {"chain0", "chain1"}:
        a("L_chain:")
        role_chain(a, o)
        a("s_endpgm")
    body = hazard.fix(a.text())
    errs = hazard.check(body)
    if errs:
        raise SystemExit("hazards:\n" + "\n".join(errs))
    name = KNAME + "_kernel"
    hdr = open("header.txt").read()
    hdr += "; @launch grid=(256,1,1) block=(256,1,1) lds=163840\n.amdgcn_target \"amdgcn-amd-amdhsa--gfx950\"\n"
    return hdr + kernel_header(name) + body + "\n" + kernel_desc(name, 512, 256), name


ALL = {"pre", "qkv0", "qkv1", "chain0", "chain1", "ao0", "ao1"}

if __name__ == "__main__":
    txt, name = build(dict(roles=ALL))
    open(f"cdna_kernels/{KNAME}.s", "w").write(txt)
    print("written", len(txt), "bytes")
```

```python
S, D, H, DH, M, SEG, NS = 2048, 512, 32, 128, 8, 32, 64
WS_BYTES = 268435456
FLAG_BYTES = 0x60000
FB = 0x0
FH = 0x40000
FP = 0x44000
FTEAM = 0x4C000
OFF_YT = 0x100000
OFF_KVR = 0x9000000
OFF_Y = 0x300000
OFF_X = 0x500000
OFF_H = 0x900000
OFF_M = 0xD00000
OFF_P1 = 0xF00000
OFF_KM = 0x1000000
OFF_P2 = 0x2000000
OFF_QKV = 0x3000000
QKV_LAYER = 0x3000000
KNAME = "interleave_layers__ssm_conv_h3__memory_aug_recurrent_mem_tr__prompt"
T_CHAIN = (0, 4)
T_AO = (1, 5)
T_QKV = ((2, 3), (6, 7))
PRE_SLOT = {1: 0, 5: 1, 6: 2, 7: 3}
OFF_TR = 0xA000000
```

```python
from asmlib import *
from layout import *
from gen import PTR, WS, DBG, TMO, wait_flags, wait_counter, count_arrive, poll_tail, unpack, rowfin, allreduce, trace


def stage_weights(a, srds, trfn, vsrc, nslot=8, perm=False, tail=None):
    a(f"v_bfe_u32 v{vsrc}, v0, 2, 2")
    if perm:
        a(f"v_and_b32 v{vsrc+1}, 2, v{vsrc}\n v_add_u32 v{vsrc}, v{vsrc}, v{vsrc+1}")
    a(f"v_lshlrev_b32 v{vsrc}, 13, v{vsrc}")
    a(f"v_bfe_u32 v{vsrc+1}, v0, 4, 2\n v_lshl_add_u32 v{vsrc}, v{vsrc+1}, 6, v{vsrc}")
    a(f"v_and_b32 v{vsrc+1}, 3, v0\n v_lshl_add_u32 v{vsrc}, v{vsrc+1}, 4, v{vsrc}")
    a(f"s_lshl_b32 s40, s5, 8\n v_add_u32 v{vsrc}, s40, v{vsrc}")
    if perm:
        a("s_and_b32 s40, s6, 1\n s_lshl_b32 s40, s40, 5\n s_and_b32 s41, s6, 2\n s_add_u32 s40, s40, s41\n s_lshl_b32 s40, s40, 13")
    else:
        a("s_lshl_b32 s40, s6, 17")
    a("s_lshl_b32 s41, s6, 12")
    chunks = [(m, c) for m in range(len(srds)) for c in range(8)]

    def issue(j):
        m, c = chunks[j]
        for b in range(4):
            a(f"s_add_u32 m0, s41, {(j % nslot) * 16384 + b * 1024}")
            a(f"s_add_u32 s42, s40, {(64 * c + (8 if perm else 4) * b) * 8192}")
            a(f"buffer_load_dwordx4 v{vsrc}, {srds[m]}, s42 offen lds")

    issued = 0
    for j in range(min(nslot, len(chunks))):
        issue(j); issued += 1
    for j, (m, c) in enumerate(chunks):
        a(f"s_waitcnt vmcnt({4 * (issued - j - 1)})\n s_barrier")
        if j >= 1 and issued < len(chunks):
            issue(issued); issued += 1
        trfn(m, c, (j % nslot) * 16384)
        a("s_waitcnt lgkmcnt(0)")
    a("s_barrier")


def flag_store(a, vone, vz, soff, imm=0):
    a("s_mov_b64 exec, 1")
    a(f"buffer_store_dword v{vone}, v{vz}, {WS}, {soff} offen offset:{imm} sc1")
    a("s_mov_b64 exec, -1")


def role_qkv(a, o):
    a.srd(12, PTR(9), D * H * DH * 2)
    a.srd(16, PTR(10), D * H * DH * 2)
    a.srd(20, PTR(8), D * H * DH * 2)
    WREG = lambda m, ks: (f"a[{128*m+4*ks}:{128*m+4*ks+3}]" if m < 2 else f"v[{128+4*ks}:{128+4*ks+3}]")
    VL16, VZ, VONE, VF, VFO = 1, 2, 3, 4, 5
    AK, AV, AQ, HF, NB, PK, VA = 16, 32, 48, 64, 6, 88, 104
    a(f"v_and_b32 v{VL16}, 63, v0\n v_lshlrev_b32 v{VL16}, 4, v{VL16}")
    a(f"v_mov_b32 v{VZ}, 0\n v_mov_b32 v{VONE}, 1")
    a(f"v_and_b32 v{VFO}, 31, v0\n v_lshlrev_b32 v{VFO}, 2, v{VFO}")
    a("v_bfe_u32 v8, v0, 5, 1\n v_lshlrev_b32 v8, 11, v8")
    a("v_bfe_u32 v9, v0, 2, 2\n v_lshl_add_u32 v8, v9, 6, v8")
    a("v_bfe_u32 v9, v0, 4, 1\n v_lshl_add_u32 v8, v9, 5, v8")
    a("v_and_b32 v9, 3, v0\n v_lshl_add_u32 v8, v9, 3, v8")
    a("s_lshl_b32 s3, s6, 8\n v_add_u32 v8, s3, v8\n v_add_u32 v9, 0x10000, v8")

    def tr(m, c, base):
        for kk in range(4):
            for u in range(2):
                r = 4 * (4 * c + kk) + 2 * u
                dst = f"a[{128*m+r}:{128*m+r+1}]" if m < 2 else f"v[{128+r}:{128+r+1}]"
                off = base + kk * 4096 + u * 1024
                a(f"ds_read_b64_tr_b16 {dst}, v{8 + (off >> 16)} offset:{off & 0xffff}")

    stage_weights(a, ["s[12:15]", "s[16:19]", "s[20:23]"], tr, 10)
    if not o.get("staged"):
        wait_counter(a, VF, VZ, 0, 32)
    a("v_and_b32 v8, 31, v0\n v_bfe_u32 v9, v0, 5, 1\n v_and_b32 v10, 15, v0\n v_xor_b32 v9, v9, v10")
    a("v_lshlrev_b32 v9, 4, v9\n v_lshl_add_u32 v8, v8, 10, v9")
    for j in range(8):
        a(f"v_xor_b32 v{VA+j}, {j << 5}, v8")
    a("s_and_b32 s44, s4, 1")
    a(f"s_lshl_b32 s3, s7, 6\n s_add_u32 s3, s3, s44")
    a(f"s_lshl_b32 s45, s3, 7\n s_add_u32 s45, s45, {FH}")
    a(f"s_lshl_b32 s46, s3, 15\n s_add_u32 s46, s46, {OFF_H}\n s_lshl_b32 s53, s6, 13\n s_add_u32 s46, s46, s53")
    a(f"s_lshl_b32 s3, s3, 5\n s_add_u32 s3, s3, s5")
    a(f"s_lshl_b32 s50, s3, 6\n s_lshl_b32 s47, s6, 2\n s_add_u32 s50, s50, s47")
    a(f"s_mul_i32 s47, s3, 24576\n s_add_u32 s47, s47, {OFF_QKV}\n s_lshl_b32 s3, s6, 11\n s_add_u32 s47, s47, s3")

    def dma():
        a("s_mov_b32 m0, s53")
        for i in range(4):
            a(f"buffer_load_dwordx4 v{VL16}, {WS}, s46 offen offset:{i*1024} sc1 lds")
        a("s_add_u32 m0, s53, 4096\n s_add_u32 s3, s46, 4096")
        for i in range(4):
            a(f"buffer_load_dwordx4 v{VL16}, {WS}, s3 offen offset:{i*1024} sc1 lds")
        a("s_add_u32 s45, s45, 256\n s_add_u32 s46, s46, 65536\n s_xor_b32 s53, s53, 0x8000")

    def epi(acc, pk, soff):
        vq = lambda i: acc + 4 * (i >> 2) + 8 * ((i >> 1) & 1) + 2 * (i & 1)
        pair = (lambda i: (vq(i), vq(i) + 1)) if acc == AV else (lambda i: (acc + 8 * (i >> 2) + (i & 3), acc + 8 * (i >> 2) + (i & 3) + 4))
        L = []
        for hh in range(2):
            if acc == AQ:
                L += [f"v_mul_f32 v{r}, s55, v{r}" for r in range(acc + 8 * hh, acc + 8 * hh + 8)]
            L += [f"v_cvt_pk_bf16_f32 v{pk+i}, v{pair(i)[0]}, v{pair(i)[1]}" for i in range(4 * hh, 4 * hh + 4)]
            L.append(f"buffer_store_dwordx4 v[{pk+4*hh}:{pk+4*hh+3}], v{VL16}, {WS}, {soff} offen offset:{hh*1024} sc1")
        return L

    a("s_mov_b32 s55, 0x3e0293ee")
    trace(a, o, 6, VZ, 6)
    wait_flags(a, VF, VFO, "s45")
    dma()
    a("s_waitcnt vmcnt(0)\n s_barrier")
    a("s_mov_b32 s54, 0")
    a("L_qkv_loop:")
    trace(a, o, 6, VZ, 7)
    a("s_add_u32 s48, s47, 8192")
    a("s_add_u32 s3, s44, 2\n s_cmp_ge_u32 s3, 64\n s_cselect_b32 s52, 1, 0")
    a(f"buffer_load_dword v{VF}, v{VFO}, {WS}, s45 offen sc1")
    hf = lambda j: f"v[{HF+4*(j%NB)}:{HF+4*(j%NB)+3}]"
    rd = lambda j: a(f"ds_read_b128 {hf(j)}, v{VA+(j&7)} offset:{((j&31)>>3)*256}")
    for j in range(NB - 1):
        rd(j)
    for j in range(64):
        if j + NB - 1 < 64:
            rd(j + NB - 1)
        a(f"s_waitcnt lgkmcnt({min(NB-1, 63-j)})")
        ks = j & 31
        if j < 32:
            a(f"v_mfma_f32_32x32x16_bf16 v[{AK}:{AK+15}], {WREG(0,ks)}, {hf(j)}, " + (f"v[{AK}:{AK+15}]" if ks else "0"))
            a(f"v_mfma_f32_32x32x16_bf16 v[{AV}:{AV+15}], {hf(j)}, {WREG(1,ks)}, " + (f"v[{AV}:{AV+15}]" if ks else "0"))
            if j == 1:
                sk = a.label("Lq")
                a(f"s_cmp_eq_u32 s54, 0\n s_cbranch_scc1 {sk}")
                for x in epi(AQ, PK, "s49"):
                    a(x)
                a(f"{sk}:")
            if j == 22:
                sk, s2 = a.label("Lq"), a.label("Lq")
                a("s_waitcnt vmcnt(0)")
                a(f"s_cmp_eq_u32 s54, 0\n s_cbranch_scc1 {sk}")
                flag_store(a, VONE, VZ, "s51", 16)
                a(f"{sk}:")
                a(f"s_cmp_lg_u32 s52, 0\n s_cbranch_scc1 {s2}")
                a(f"v_cmp_eq_u32 vcc, 0, v{VF}\n s_cbranch_vccnz {s2}")
                dma()
                a("s_mov_b32 s52, 1")
                a(f"{s2}:")
        else:
            a(f"v_mfma_f32_32x32x16_bf16 v[{AQ}:{AQ+15}], {WREG(2,ks)}, {hf(j)}, " + (f"v[{AQ}:{AQ+15}]" if ks else "0"))
            E = epi(AK, PK, "s47") + epi(AV, PK + 8, "s48")
            if 2 <= ks < 7:
                for x in E[4 * (ks - 2):4 * (ks - 1)]:
                    a(x)
    a("s_waitcnt vmcnt(0)")
    flag_store(a, VONE, VZ, "s50", 0)
    trace(a, o, 6, VZ, 8)
    a(f"s_add_u32 s49, s47, 16384\n s_mov_b32 s51, s50\n s_mov_b32 s54, 1")
    sk = a.label("Lq")
    a(f"s_cmp_lg_u32 s52, 0\n s_cbranch_scc1 {sk}")
    for x in epi(AQ, PK, "s49"):
        a(x)
    a(f"buffer_load_dword v{VF}, v{VFO}, {WS}, s45 offen sc1")
    a("s_waitcnt vmcnt(0)")
    flag_store(a, VONE, VZ, "s51", 16)
    a("s_mov_b32 s54, 0")
    s2 = a.label("Lq")
    a(f"v_cmp_eq_u32 vcc, 0, v{VF}\n s_cbranch_vccz {s2}")
    wait_flags(a, VF, VFO, "s45")
    a(f"{s2}:")
    dma()
    a("s_waitcnt vmcnt(0)")
    a(f"{sk}:")
    for j in range(8):
        a(f"v_xor_b32 v{VA+j}, 0x8000, v{VA+j}")
    a(f"s_add_u32 s47, s47, {2*32*24576}\n s_add_u32 s50, s50, {2*32*64}\n s_add_u32 s44, s44, 2")
    a("s_barrier")
    a("s_cmp_lt_u32 s44, 64\n s_cbranch_scc1 L_qkv_loop")
    for x in epi(AQ, PK, "s49"):
        a(x)
    a("s_waitcnt vmcnt(0)")
    flag_store(a, VONE, VZ, "s51", 16)


def team_publish(a, vtmp, vz):
    sk = a.label("Ltp")
    a(f"s_cmp_lg_u32 s6, 0\n s_cbranch_scc1 {sk}")
    a("s_getreg_b32 s3, hwreg(HW_REG_XCC_ID)\n s_and_b32 s3, s3, 15\n s_add_u32 s3, s3, 1")
    a(f"v_mov_b32 v{vtmp}, s3")
    a(f"s_lshl_b32 s3, s4, 7\n s_lshl_b32 s40, s5, 2\n s_add_u32 s3, s3, s40\n s_add_u32 s3, s3, {FTEAM}")
    flag_store(a, vtmp, vz, "s3")
    a(f"{sk}:")


def team_wait(a, vtmp, voff, mixed_label):
    a(f"v_and_b32 v{voff}, 31, v0\n v_lshlrev_b32 v{voff}, 2, v{voff}")
    a(f"s_lshl_b32 s40, s4, 7\n s_add_u32 s40, s40, {FTEAM}")
    wait_flags(a, vtmp, voff, "s40")
    a(f"v_readfirstlane_b32 s3, v{vtmp}")
    a(f"v_cmp_ne_u32 vcc, s3, v{vtmp}")
    a(f"s_cbranch_vccnz {mixed_label}")


def nops(a, cyc):
    n = cyc // 4
    while n > 0:
        k = min(n, 16)
        a(f"s_nop {k-1}")
        n -= k


def role_chain(a, o):
    MX, OX, KX, QX = 0x20000, 0x22000, 0x24000, 0x26000
    VL16, VIDX, VMX, VQW, VQR, VKX, VVX, VPF, VWO, VP1S, VKMS, VMS, VOR, VL8, VF = range(1, 16)
    RM, RK, AQ, AK, AV, QF, VX = 16, 48, 80, 88, 96, 104, 120
    SENT = 0xff81ff81
    prof = o.get("prof")
    CLK = "s_memrealtime" if o.get("rt") else "s_memtime"
    a.srd(12, PTR(8), D * H * DH * 2)
    a.srd(16, PTR(9), D * H * DH * 2)
    a.srd(20, PTR(10), D * H * DH * 2)
    a.srd(24, PTR(11), D * H * DH * 2)
    a.srd(32, PTR(7), M * D * 2)
    a(f"v_and_b32 v{VL16}, 63, v0\n v_lshlrev_b32 v{VL16}, 4, v{VL16}")
    a("v_and_b32 v20, 15, v0\n v_bfe_u32 v21, v0, 4, 2\n v_mov_b32 v22, 0")
    a(f"s_mov_b32 s62, {SENT:#x}")
    for r in range(24, 28):
        a(f"v_mov_b32 v{r}, s62")
    if not o.get("staged"):
        sk = a.label("Lnc")
        a(f"s_cmp_lg_u32 s4, {T_CHAIN[1]}\n s_cbranch_scc1 {sk}")
        for r in range(28, 32):
            a(f"v_mov_b32 v{r}, 0")
        a("s_lshl_b32 s3, s5, 2\n s_add_u32 s3, s3, s6\n s_mul_i32 s3, s3, 3072")
        for i in range(3):
            a(f"buffer_store_dwordx4 v[28:31], v{VL16}, {WS}, s3 offen offset:{i*1024} sc1")
        a("s_waitcnt vmcnt(0)\n s_barrier")
        s2 = a.label("Lnc")
        a(f"s_cmp_lg_u32 s6, 0\n s_cbranch_scc1 {s2}")
        count_arrive(a, 23, 22, 0)
        a(f"{s2}:")
        a(f"{sk}:")
    a(f"s_lshl_b32 s46, s7, 20\n s_add_u32 s46, s46, {OFF_M}")
    a(f"s_lshl_b32 s47, s7, 19\n s_add_u32 s47, s47, {OFF_P1}")
    a("s_lshl_b32 s43, s5, 2\n s_add_u32 s43, s43, s6")
    a("s_lshl_b32 s52, s43, 11\n s_add_u32 s52, s52, s47")
    for i in range(2):
        a(f"buffer_store_dwordx4 v[24:27], v{VL16}, {WS}, s52 offen offset:{i*1024} sc1")
    a("v_lshlrev_b32 v23, 13, v21\n v_lshl_add_u32 v23, v20, 4, v23")
    a("s_lshl_b32 s3, s6, 17\n s_add_u32 s3, s3, s46\n s_lshl_b32 s40, s5, 8\n s_add_u32 s3, s3, s40\n s_add_u32 s3, s3, 8192")
    for i in range(4):
        a(f"buffer_store_dwordx4 v[24:27], v23, {WS}, s3 offen sc1")
        a("s_add_u32 s3, s3, 0x8000")
    a(f"v_lshlrev_b32 v{VMS}, 4, v21\n v_and_b32 v28, 3, v20\n v_lshl_add_u32 v{VMS}, v28, 2, v{VMS}")
    a(f"s_lshl_b32 s3, s43, 6\n v_add_u32 v{VMS}, s3, v{VMS}")
    a("v_and_b32 v23, 1, v21\n v_lshlrev_b32 v23, 10, v23\n v_lshl_add_u32 v23, v28, 4, v23\n v_and_b32 v29, 2, v21\n v_lshl_add_u32 v23, v29, 2, v23")
    a("s_lshl_b32 s3, s6, 11\n s_lshr_b32 s40, s5, 2\n s_lshl_b32 s40, s40, 7\n s_add_u32 s3, s3, s40")
    a("s_and_b32 s40, s5, 1\n s_lshl_b32 s40, s40, 6\n s_add_u32 s3, s3, s40\n s_and_b32 s40, s5, 2\n s_lshl_b32 s40, s40, 1\n s_add_u32 s3, s3, s40")
    a("buffer_load_dword v28, v23, s[32:35], s3 offen")
    a("s_waitcnt vmcnt(0)\n v_or_b32 v29, 64, v28\n v_cmp_eq_u32 vcc, s62, v28\n v_cndmask_b32 v28, v28, v29, vcc")
    a(f"buffer_store_dword v28, v{VMS}, {WS}, s46 offen sc1")
    a("s_waitcnt vmcnt(0)")
    a("v_lshlrev_b32 v8, 11, v21\n v_bfe_u32 v9, v0, 2, 2\n v_lshl_add_u32 v8, v9, 6, v8")
    a("s_lshl_b32 s3, s6, 8\n v_add_u32 v8, s3, v8")
    a("v_and_b32 v9, 1, v0\n v_lshl_add_u32 v6, v9, 3, v8\n v_and_b32 v9, 2, v0\n v_lshl_add_u32 v6, v9, 4, v6\n v_add_u32 v7, 0x10000, v6")
    a("v_and_b32 v9, 3, v0\n v_lshl_add_u32 v8, v9, 3, v8\n v_add_u32 v9, 0x10000, v8")

    def wreg(m, t, j, lo=0, n=8):
        b = (t * 8 + j) * 8 + lo
        return f"a[{128*m+b}:{128*m+b+n-1}]" if m < 2 else f"v[{128+b}:{128+b+n-1}]"

    def tr(m, c, base):
        L = [a.label("Lt") for _ in range(5)]
        a(f"s_cmp_eq_u32 s6, 1\n s_cbranch_scc1 {L[1]}\n s_cmp_eq_u32 s6, 2\n s_cbranch_scc1 {L[2]}\n s_cmp_eq_u32 s6, 3\n s_cbranch_scc1 {L[3]}")
        for w in range(4):
            if w:
                a(f"{L[w]}:")
            for t in range(2):
                for q in range(4):
                    off = base + (q >> 1) * 8192 + (q & 1) * 1024 + t * (32 if m == 2 else 16)
                    a(f"ds_read_b64_tr_b16 {wreg(m, t, c ^ (2 * w), 2 * q, 2)}, v{(8 if m == 2 else 6) + (off >> 16)} offset:{off & 0xffff}")
            if w < 3:
                a(f"s_branch {L[4]}")
        a(f"{L[4]}:")

    stage_weights(a, ["s[12:15]", "s[16:19]", "s[20:23]"], tr, 10, perm=True)
    if not o.get("staged"):
        wait_counter(a, 23, 22, 0, 32)
    team_publish(a, 23, 22)
    trace(a, o, 23, VL16, 6)
    a(f"s_lshl_b32 s3, s6, 15\n v_add_u32 v{VWO}, s3, v{VL16}")
    a("v_and_b32 v8, 1, v21\n v_lshlrev_b32 v8, 14, v8\n v_lshrrev_b32 v10, 1, v21\n v_lshl_add_u32 v8, v10, 12, v8")
    a("v_lshl_add_u32 v8, v20, 3, v8\n s_lshl_b32 s3, s6, 8\n v_add_u32 v8, s3, v8")
    a("s_mov_b32 s60, 0x05040100\n s_mov_b32 s61, 0x07060302\n s_lshl_b32 s41, s5, 17")
    groups = [(jc, i) for jc in range(4) for i in range(2)]
    RES = {(1, 2): 0, (1, 3): 64, (2, 2): 8, (2, 3): 72}
    LD = lambda gi: 32 + 16 * (gi % 4)

    def wo_issue(gi):
        jc, i = groups[gi]
        a(f"s_xor_b32 s3, s6, {jc}\n s_lshl_b32 s3, s3, 15\n s_add_u32 s3, s3, s41\n s_add_u32 s3, s3, {i*128}\n s_add_u32 s40, s3, 8192")
        for u in range(2):
            for v in range(2):
                for e in range(2):
                    r = LD(gi) + 8 * u + 4 * v + 2 * e
                    a(f"buffer_load_dwordx2 v[{r}:{r+1}], v8, s[24:27], {'s40' if u else 's3'} offen offset:{(2*v+e)*1024}")

    for gi in range(3):
        wo_issue(gi)
    for gi, (jc, i) in enumerate(groups):
        if gi + 3 < 8:
            wo_issue(gi + 3)
        a(f"s_waitcnt vmcnt({8*min(3, 7-gi)})")
        for sel in range(2):
            for u in range(2):
                for v in range(2):
                    for z in range(2):
                        r = LD(gi) + 8 * u + 4 * v + sel
                        a(f"v_perm_b32 v{96+8*sel+4*u+2*v+z}, v{r+2}, v{r}, s{60+z}")
        for sel in range(2):
            res = RES.get((jc, 2 * i + sel))
            for hh in range(2):
                src = f"v[{96+8*sel+4*hh}:{99+8*sel+4*hh}]" if res is None else f"a[{res+4*hh}:{res+4*hh+3}]"
                a(f"ds_write_b128 v{VWO}, {src} offset:{(jc*4+2*i+sel)*2048+hh*1024}")
        a("s_waitcnt lgkmcnt(0)")
        for sel in range(2):
            res = RES.get((jc, 2 * i + sel))
            if res is not None:
                for r in range(8):
                    a(f"v_accvgpr_write_b32 a{res+r}, v{96+8*sel+r}")
    a(f"v_mov_b32 v{VIDX}, 0x4444\n v_bfe_u32 v23, v20, 1, 1\n v_mul_u32_u24 v23, 0xaaaa, v23\n v_or_b32 v{VIDX}, v{VIDX}, v23")
    a(f"s_lshl_b32 s3, s6, 11\n s_add_u32 s3, s3, {MX}\n v_add_u32 v{VMX}, s3, v{VL16}")
    a(f"v_mul_u32_u24 v23, 1088, v21\n v_lshl_add_u32 v23, v20, 2, v23\n s_lshl_b32 s3, s6, 6\n s_add_u32 s3, s3, {QX}\n v_add_u32 v{VQW}, s3, v23")
    a(f"v_mul_u32_u24 v23, 272, v20\n v_lshl_add_u32 v23, v21, 4, v23\n v_add_u32 v{VQR}, {QX}, v23")
    a(f"v_and_b32 v23, 1, v21\n v_lshlrev_b32 v23, 5, v23\n v_or_b32 v{VOR}, 32, v{VMX}\n v_xor_b32 v{VOR}, v{VOR}, v23\n v_lshrrev_b32 v{VL8}, 1, v{VL16}")
    a(f"v_lshlrev_b32 v23, 9, v21\n v_lshl_add_u32 v{VVX}, v20, 4, v23\n v_add_u32 v{VKX}, {KX}, v{VVX}")
    a(f"v_lshrrev_b32 v23, 3, v20\n v_lshl_add_u32 v23, v23, 2, v21\n v_lshlrev_b32 v23, 11, v23\n v_and_b32 v25, 7, v20\n v_lshl_add_u32 v23, v25, 3, v23")
    a(f"s_lshl_b32 s3, s6, 16\n s_lshl_b32 s40, s5, 6\n s_add_u32 s3, s3, s40\n v_add_u32 v{VP1S}, s3, v23")
    a(f"v_and_b32 v23, 12, v20\n v_bfe_u32 v25, v20, 1, 1\n v_add_u32 v23, v23, v25\n v_mul_u32_u24 v23, 272, v23\n v_lshl_add_u32 v23, v21, 4, v23")
    a(f"v_and_b32 v25, 1, v20\n v_lshl_add_u32 v23, v25, 3, v23\n s_lshl_b32 s3, s6, 6\n s_add_u32 s3, s3, {QX}\n v_add_u32 v{VKMS}, s3, v23")
    a(f"v_lshlrev_b32 v{VPF}, 7, v20\n v_lshl_add_u32 v{VPF}, v21, 13, v{VPF}")
    a(f"v_and_b32 v23, 3, v20\n v_lshlrev_b32 v23, 2, v23\n v_cmp_eq_u32 vcc, 2, v21\n v_cndmask_b32 v{VPF}, v{VPF}, v23, vcc")
    a(f"v_cmp_eq_u32 vcc, 3, v21\n v_cndmask_b32 v{VPF}, v{VPF}, v{VMS}, vcc")
    a("s_lshl_b32 s3, s7, 11\n s_add_u32 s3, s3, s5")
    a(f"s_mul_i32 s48, s3, 24576\n s_add_u32 s48, s48, {OFF_QKV}\n s_lshl_b32 s40, s6, 11\n s_add_u32 s48, s48, s40")
    a("s_lshl_b32 s49, s3, 6")
    a(f"s_lshl_b32 s50, s3, 12\n s_add_u32 s50, s50, {OFF_KM}\n s_lshl_b32 s63, s6, 9\n s_add_u32 s50, s50, s63\n s_lshl_b32 s63, s6, 6")
    a("s_lshl_b32 s41, s6, 29\n s_add_u32 s59, s49, s41\n s_add_u32 s59, s59, 32\n s_add_u32 s51, s59, 16")
    a(f"s_add_u32 s45, s46, s40\n s_add_u32 s46, s46, 8192\n s_add_u32 m0, s40, {KX}")
    a("s_mov_b32 s44, 0\n s_mov_b32 s54, 0x3e0293ee")
    a("s_mov_b32 s56, 0\n s_mov_b32 s57, 0xffff\n s_mov_b32 s36, 0\n s_mov_b32 s37, 0xffff0000")
    for d in range(4):
        m = (3 << (4 * d)) * 0x00010001
        a(f"s_mov_b32 s{64+2*d}, {m:#x}\n s_mov_b32 s{65+2*d}, {m:#x}")
    a("s_mov_b32 s72, 0x000f000f\n s_mov_b32 s73, 0x000f000f\n s_mov_b32 s74, 0xcccccccc\n s_mov_b32 s75, 0xcccccccc")
    a("s_mov_b32 s38, 0x3f803f80\n s_mov_b32 s39, 0x3f803f80\n s_add_u32 s58, s47, 0x4000\n s_add_u32 s60, s47, 0x8000\n s_add_u32 s61, s47, 0xc000")

    trace(a, o, 23, VL16, 9)
    a("v_and_b32 v23, 3, v0\n v_lshlrev_b32 v23, 2, v23")
    wait_flags(a, VF, 23, "s49")
    a(f"s_add_u32 s49, s49, 2048\n v_mov_b32 v{VF}, 0")
    team_wait(a, 24, 25, "L_chain_mixed_pre")
    a("s_branch L_chain_pure_pre")

    def sm(acc, A, B, mod=""):
        a(f"v_smfmac_f32_16x16x64_bf16 v[{acc}:{acc+3}], v[{A}:{A+3}], {B}, v{VIDX}{mod}")

    def proj(m, t, j):
        B = f"v[{RK+16*j+8*t}:{RK+16*j+8*t+7}]" if m == 0 and j < 2 else wreg(m, t, j)
        sm((AQ, AK, AV)[m] + 4 * t, RM + 4 * j, B)

    def early():
        for j in range(2):
            for t in range(2):
                for hh in range(2):
                    r = RK + 16 * j + 8 * t + 4 * hh
                    a(f"ds_read_b128 v[{r}:{r+3}], v{VWO} offset:{(j*4+6+t)*2048+hh*1024}")

    def halves(acc):
        return [f"v_add_f32 v{acc}, v{acc}, v{acc+2}", f"v_add_f32 v{acc+1}, v{acc+1}, v{acc+3}",
                f"v_add_f32 v{acc+4}, v{acc+4}, v{acc+6}", f"v_add_f32 v{acc+5}, v{acc+5}, v{acc+7}",
                f"v_cvt_pk_bf16_f32 v{acc+2}, v{acc}, v{acc+1}", f"v_cvt_pk_bf16_f32 v{acc+3}, v{acc+4}, v{acc+5}"]

    def poll(dst, voff, soff):
        return lambda: (a(f"buffer_load_dwordx4 v[{dst}:{dst+3}], v{voff}, {WS}, {soff} offen sc1"),
                        a(f"buffer_load_dwordx4 v[{dst+4}:{dst+7}], v{voff}, {WS}, {soff} offen offset:1024 sc1"))

    def stamp(i):
        if prof and (prof >> i) & 1:
            a(f"{CLK} s[76:77]\n s_waitcnt lgkmcnt(0)\n s_sub_u32 s3, s76, s78\n s_add_u32 s{80+i}, s{80+i}, s3\n s_mov_b32 s78, s76")

    def check2(R, t0):
        a(f"v_max_u32 v{t0}, v{R}, v{R+4}\n v_cmp_eq_u32 vcc, s62, v{t0}")

    def check1(R, t0):
        a(f"v_bitop3_b32 v{t0}, v{R}, v{R+2}, s53 bitop3:0x7e\n v_bitop3_b32 v{t0+1}, v{R+4}, v{R+6}, s53 bitop3:0x7e")
        a(f"v_bitop3_b32 v{t0}, v{t0}, v{t0+1}, 1 bitop3:0xa8\n v_cmp_ne_u32 vcc, 0, v{t0}")

    def warm(n, r):
        wm = o.get("wm", 0)
        for i in range(n):
            a(f"v_mov_b32 v{r}, 0" if wm == 0 or (wm == 2 and i % 4 == 3) else "s_nop 0")

    LAND = [RM, RM + 8, RM + 16, RM + 24, RK, RK + 8, RK + 16, RK + 24, VX, QF + 8]
    WACC = [QF, QF + 4, AV, AV + 4]
    order = [(0, np_) for np_ in range(4)] + [(jc, np_) for np_ in range(4) for jc in (1, 2, 3)]
    slot_of = [0, 1, 2, 3, 4, 5, 6, 7, 8, 9, None, None, 0, None, None, 1]

    def landl(k):
        jc, np_ = order[k]
        r = LAND[slot_of[k]]
        return [f"ds_read_b128 v[{r}:{r+3}], v{VWO} offset:{(jc*4+np_)*2048}", f"ds_read_b128 v[{r+4}:{r+7}], v{VWO} offset:{(jc*4+np_)*2048+1024}"]

    def land(k):
        for x in landl(k):
            a(x)

    def wo(k):
        jc, np_ = order[k]
        B = f"a[{RES[order[k]]}:{RES[order[k]]+7}]" if order[k] in RES else f"v[{LAND[slot_of[k]]}:{LAND[slot_of[k]]+7}]"
        sm(WACC[np_], AQ + 4 * jc, B)

    def loop(mode):
        st = "" if mode == "pure" else " sc1"
        T = f"chain_{mode}"
        outl = []
        PR = (12, 14, 16, 18, 20, 22, 24, 26)
        XS = "" if o.get("x_plain") else " sc1"

        KR = [f"ds_read_b128 v[{RK+4*i}:{RK+4*i+3}], v{VKX} offset:{(i>>1)*2048+(i&1)*256}" for i in range(8)]

        def prep_b():
            a("s_add_u32 s42, s48, 8192\n s_mov_b32 s55, s48")
            a(f"s_cmp_lt_u32 s44, 62\n s_cselect_b32 s40, {0 if o.get('x_same') else 32*24576}, 0\n s_add_u32 s48, s48, s40")
            a(f"s_cmp_lt_u32 s44, 61\n s_cselect_b32 s40, 2048, 0\n s_add_u32 s49, s49, s40\n s_add_u32 s3, s46, 8192")
            a(f"v_mov_b32 v{QF}, s48\n v_mov_b32 v{QF+8}, s49\n v_mov_b32 v{QF+9}, s3")
            a(f"v_cndmask_b32 v{QF}, v{QF}, v{QF+8}, s[56:57]\n v_cndmask_b32 v{QF}, v{QF}, v{QF+9}, s[36:37]\n v_add_u32 v{QF}, v{QF}, v{VPF}")
            for jj in (1, 2, 3):
                a(f"v_xor_b32 v{QF+jj}, {jj << 11}, v{VMX}")
            a("s_and_b32 s53, s44, 1")

        a(f"L_{T}_pre:")
        a(f"v_mov_b32 v0, 0x3f80\n v_mov_b32 v23, 0x3f800000\n s_mov_b32 s40, 0xaaaaaaaa\n s_mov_b32 s41, 0xaaaaaaaa")
        a("v_cndmask_b32 v0, v0, v23, s[40:41]")
        early()
        if prof:
            for i in range(16):
                a(f"s_mov_b32 s{80+i}, 0")
            a(f"{CLK} s[78:79]\n s_waitcnt lgkmcnt(0)")
        a(f"s_branch L_{T}\n .p2align 6")
        for _ in range(o.get("sh", 0)):
            a("s_nop 0")
        a(f"L_{T}:")
        a(f"v_cmp_eq_u32 vcc, 0, v{VF}\n s_and_b64 vcc, vcc, s[56:57]\n s_cbranch_scc1 L_{T}_kvw")
        a(f"L_{T}_kvr:")
        prep_b()
        warm(o.get("d2", 32), QF + 4)
        poll(RM, VL16, "s45")()
        for r in range(AQ, AQ + 24, 2):
            a(f"v_mov_b64 v[{r}:{r+1}], 0")
        warm(o.get("g2", 24), QF + 4)
        poll(QF + 8, VL16, "s45")()
        warm(o.get("w2", 0), QF + 4)
        a("s_waitcnt vmcnt(2) lgkmcnt(0)")
        check2(RM, QF + 4)
        a(f"s_cbranch_vccnz L_{T}_h2r")
        a(f"L_{T}_h2:")
        outl.append((f"L_{T}_h2r", f"L_{T}_h2", RM, QF + 8, VX, "s45", lambda R: check2(R, QF + 4), 90))
        stamp(0)
        mark = len(a.lines)
        a(f"ds_write_b128 v{VMX}, v[{RM}:{RM+3}]\n ds_write_b128 v{VMX}, v[{RM+4}:{RM+7}] offset:1024")
        proj(0, 0, 0)
        a("s_waitcnt lgkmcnt(0)\n s_barrier")
        P = [(m, t, j) for m in range(2) for j in range(2) for t in range(2)][1:]
        P += [(m, t, j) for m in range(2) for j in range(2, 8) for t in range(2)] + [(2, t, j) for j in range(8) for t in range(2)]
        F = {}
        for j in range(2, 8):
            F[j - 2] = [f"ds_read_b128 v[{RM+4*j}:{RM+4*j+3}], v{QF+(j>>1)} offset:{(j&1)*1024}"]
        F[7] = ["s_waitcnt lgkmcnt(4)"]
        F[11] = ["s_waitcnt lgkmcnt(2)"]
        F[15] = ["s_waitcnt lgkmcnt(0)"]
        F[10] = [f"buffer_load_dwordx4 v[{VX}:{VX+3}], v{VVX}, {WS}, s42 offen sc1"]
        F[12] = [f"buffer_load_dwordx4 v[{VX+4}:{VX+7}], v{VVX}, {WS}, s42 offen offset:256 sc1"]
        F[o.get("fpos", 18)] = [f"buffer_store_dword v{VIDX}, off, {WS}, s51 sc1"]
        F[6] = [f"buffer_load_dwordx4 v{VL16}, {WS}, s55 offen sc1 lds"]
        F[8] = [f"buffer_load_dwordx4 v{VL16}, {WS}, s55 offen offset:1024 sc1 lds"]
        F[19] = [f"buffer_load_dword v{VF}, v{QF}, {WS}, 0 offen sc1"]
        F[20] = ["s_mov_b32 s51, s59"]
        F[21] = ["s_add_u32 s45, s45, 8192"]
        F[22] = ["s_add_u32 s59, s59, 2048"]
        Eq = [f"v_add_f32 v{AQ+r}, v{AQ+r}, v{AQ+r+2}" for r in (0, 1, 4, 5)] + [f"v_mul_f32 v{AQ+r}, s54, v{AQ+r}" for r in (0, 1, 4, 5)]
        Eq += [f"v_cvt_pk_bf16_f32 v{AQ+2}, v{AQ}, v{AQ+4}", f"v_cvt_pk_bf16_f32 v{AQ+3}, v{AQ+1}, v{AQ+5}",
               f"ds_write2_b32 v{VQW}, v{AQ+2}, v{AQ+3} offset0:136 offset1:204"]
        Ek = [f"v_add_f32 v{AK+r}, v{AK+r}, v{AK+r+2}" for r in (0, 1, 4, 5)]
        Ek += [f"v_cvt_pk_bf16_f32 v{AK+2}, v{AK}, v{AK+4}", f"v_cvt_pk_bf16_f32 v{AK+3}, v{AK+1}, v{AK+5}",
               f"ds_write2_b32 v{VQW}, v{AK+2}, v{AK+3} offset1:68"]
        for i, x in enumerate(Eq):
            F[23 + i] = [x]
        F[34] = [f"s_waitcnt vmcnt({3 if o.get('trace') else 2})"]
        F[35] = Ek[0:4]; F[36] = Ek[4:7]
        qb = o.get("qb", 40)
        QR = [f"ds_read_b128 v[{QF+4*k}:{QF+4*k+3}], v{VQR} offset:{k*64}" for k in range(4)]
        RD = [x for k in range(4) for x in (QR[k], KR[2 * k], KR[2 * k + 1])]
        LL = [x for k in range(9) for x in landl(k)]
        F[37] = [LL[0]]; F[38] = [LL[1]]; F[39] = [LL[2]]
        F[qb] = ["s_waitcnt lgkmcnt(3)", "s_barrier"] + RD[0:2]
        for i in range(qb + 1, 47):
            F[i] = [RD[i - qb + 1]]
        RD = RD[48 - qb:]
        for i, p in enumerate(P):
            if i == 21:
                trace(a, o, QF + 6, VL16, 7)
            for x in F.get(i, []):
                a(x)
            proj(*p)
        stamp(2)
        MXR, TMP = AK + 4, AK + 5
        Ev = [f"v_add_f32 v{AV+r}, v{AV+r}, v{AV+r+2}" for r in (0, 1, 4, 5)]
        Ev += [f"v_cvt_pk_bf16_f32 v{AV+2}, v{AV}, v{AV+1}", f"v_cvt_pk_bf16_f32 v{AV+3}, v{AV+4}, v{AV+5}",
               f"v_mov_b64 v[{AV+4}:{AV+5}], s[38:39]"]
        assert len(RD) == 4
        G = {0: [RD[0], "s_waitcnt lgkmcnt(6)"], 1: [RD[1]], 2: [RD[2]], 3: [RD[3], "s_waitcnt lgkmcnt(6)"],
             4: [f"ds_read_b64 v[{AK+6}:{AK+7}], v{VKMS}", Ev[0]], 5: [LL[3], Ev[1]], 6: ["s_waitcnt lgkmcnt(5)", Ev[2]],
             7: [LL[4], Ev[3]], 8: [LL[5], Ev[4]], 9: ["s_waitcnt lgkmcnt(3)", Ev[5]], 10: [LL[6], Ev[6]],
             11: [f"buffer_store_dwordx2 v[{AK+6}:{AK+7}], v{VL8}, {WS}, s50 offen{XS}"]}
        i = 0
        for kst in range(4):
            B = f"v[{QF+4*kst}:{QF+4*kst+3}]"
            for kt in (2, 0, 1):
                A = f"v[{RK+8*kst+4*kt}:{RK+8*kst+4*kt+3}]" if kt < 2 else B
                for x in G.get(i, []):
                    a(x)
                a(f"v_mfma_f32_16x16x32_bf16 v[{AQ+4*kt}:{AQ+4*kt+3}], {A}, {B}, " + (f"v[{AQ+4*kt}:{AQ+4*kt+3}]" if kst else "0"))
                i += 1
        a(LL[7])
        a(f"buffer_store_dwordx2 v[{AV+2}:{AV+3}], v{VL8}, {WS}, s50 offen offset:2048{XS}")
        a(f"s_cmp_eq_u32 s44, 63\n s_cbranch_scc1 L_chain_done")
        a(f"v_mov_b64 v[{AV+6}:{AV+7}], s[38:39]")
        a(LL[8])
        stamp(3)
        a(f"v_max3_f32 v{MXR}, v{AK}, v{AK+1}, v{AQ}\n v_max3_f32 v{MXR}, v{MXR}, v{AQ+1}, v{AQ+2}")
        a(f"v_max3_f32 v{TMP}, v{AQ+4}, v{AQ+5}, v{AQ+6}\n v_max3_f32 v{MXR}, v{MXR}, v{AQ+3}, v{AQ+7}\n v_max_f32 v{MXR}, v{MXR}, v{TMP}")
        a(f"v_mov_b32 v{TMP}, v{MXR}\n v_mov_b32 v{QF+5}, 0")
        a(LL[9])
        a(f"v_permlane16_swap_b32 v{TMP}, v{MXR}\n v_max_f32 v{MXR}, v{MXR}, v{TMP}\n v_mov_b32 v{TMP}, v{MXR}\n v_mov_b32 v{QF+6}, 0")
        a(LL[10])
        a(f"v_permlane32_swap_b32 v{TMP}, v{MXR}\n v_max_f32 v{MXR}, v{MXR}, v{TMP}")
        for r in (AK, AQ, AQ + 2, AQ + 4, AQ + 6):
            a(f"v_pk_add_f32 v[{r}:{r+1}], v[{r}:{r+1}], v[{MXR}:{MXR+1}] op_sel_hi:[1,0] neg_lo:[0,1] neg_hi:[0,1]")
        OA, SA = QF + 8, AK + 4
        ex = lambda r: a(f"v_exp_f32 v{r}, v{r}")
        cv = lambda i: a(f"v_cvt_pk_bf16_f32 v{QF+i}, v{AQ+2*i}, v{AQ+2*i+1}")
        ex(AK); ex(AK + 1); ex(AQ)
        a(f"v_cvt_pk_bf16_f32 v{QF+4}, v{AK}, v{AK+1}\n v_cvt_pk_bf16_f32 v{QF+7}, v{AK}, v{AK+1}")
        ex(AQ + 1)
        a(f"v_mfma_f32_16x16x16_bf16 v[{SA}:{SA+3}], v[{AV+4}:{AV+5}], v[{QF+4}:{QF+5}], 0")
        ex(AQ + 2)
        a(f"v_mfma_f32_16x16x16_bf16 v[{OA}:{OA+3}], v[{AV+2}:{AV+3}], v[{QF+4}:{QF+5}], 0")
        ex(AQ + 3)
        a(f"v_mfma_f32_16x16x16_bf16 v[{OA+4}:{OA+7}], v[{AV+2}:{AV+3}], v[{QF+6}:{QF+7}], 0")
        for r in range(AQ + 4, AQ + 8):
            ex(r)
        for i in range(4):
            cv(i)
        a(LL[11]); a(LL[12])
        a(f"v_mfma_f32_16x16x32_bf16 v[{SA}:{SA+3}], v[{AV+4}:{AV+7}], v[{QF}:{QF+3}], v[{SA}:{SA+3}]")
        a(LL[13]); a("s_add_u32 s44, s44, 1")
        a(f"v_mfma_f32_16x16x32_bf16 v[{OA}:{OA+3}], v[{VX}:{VX+3}], v[{QF}:{QF+3}], v[{OA}:{OA+3}]")
        a(LL[14]); a(LL[15])
        a(f"v_mfma_f32_16x16x32_bf16 v[{OA+4}:{OA+7}], v[{VX+4}:{VX+7}], v[{QF}:{QF+3}], v[{OA+4}:{OA+7}]")
        Z = [f"v_mov_b64 v[{r}:{r+1}], 0" for r in list(range(QF, QF + 8, 2)) + list(range(AV, AV + 8, 2))]
        a(Z[0]); a(Z[1])
        a(f"v_rcp_f32 v{SA}, v{SA}")
        a(Z[2]); a(Z[3])
        stamp(4)
        pm = lambda r: a(f"v_pk_mul_f32 v[{OA+r}:{OA+r+1}], v[{OA+r}:{OA+r+1}], v[{SA}:{SA+1}] op_sel_hi:[1,0]")
        co = lambda i: a(f"v_cvt_pk_bf16_f32 v{AQ+i}, v{OA+2*i}, v{OA+2*i+1}")
        pm(0); pm(2); co(0); pm(4); pm(6); co(1); co(2); co(3)
        a("s_mov_b64 exec, s[74:75]")
        a(f"ds_write_b128 v{VOR}, v[{AQ}:{AQ+3}] offset:{OX-MX}")
        a("s_mov_b64 exec, -1")
        for i in range(4):
            a(f"v_mov_b32_dpp v{AQ+i}, v{AQ+i} quad_perm:[2,3,2,3] row_mask:0xf bank_mask:0xf")
        for jc in (1, 2, 3):
            a(f"v_xor_b32 v{AQ+4*jc}, {jc << 11}, v{VOR}")
        a("s_waitcnt lgkmcnt(1)")
        wo(0); a(Z[4]); wo(1); a(Z[5])
        a("s_waitcnt lgkmcnt(0)\n s_barrier")
        for jc in (1, 2, 3):
            a(f"ds_read_b128 v[{AQ+4*jc}:{AQ+4*jc+3}], v{AQ+4*jc} offset:{OX-MX}")
        a(Z[6]); a(Z[7])
        stamp(5)
        L = LL[16:18] + landl(9) + landl(12) + landl(15)

        def pub(np_):
            A = WACC[np_]
            return [f"v_cvt_pk_bf16_f32 v{A}, v{A}, v{A+2}", f"v_cvt_pk_bf16_f32 v{A+1}, v{A+1}, v{A+3}", f"v_bfi_b32 v{A}, 1, s53, v{A}",
                    f"buffer_store_dwordx2 v[{A}:{A+1}], v{VP1S}, {WS}, {('s47', 's58', 's60', 's61')[np_]} offen{st}"]

        W = {4: 6, 5: 4, 8: 2, 12: 0}
        X = {2: L[0:2], 3: L[2:4], 5: L[4:5], 6: L[5:6], 8: L[6:7], 9: L[7:8], 10: pub(0)[0:2], 11: pub(0)[2:4], 12: pub(1)[0:1],
             13: pub(1)[1:3], 14: pub(1)[3:4], 15: [f"s_add_u32 s50, s50, {0 if o.get('x_plain') else 0x20000}"] + pub(2)}
        for k in range(2, 16):
            if k in W:
                a(f"s_waitcnt lgkmcnt({W[k]})")
            wo(k)
            for x in X.get(k, []):
                a(x)
        for d in range(3):
            a(f"v_cndmask_b32 v{QF+4+d}, 0, v0, s[{64+2*d}:{65+2*d}]")
        for x in pub(3):
            a(x)
        a(f"v_cndmask_b32 v{QF+7}, 0, v0, s[70:71]")
        stamp(6)
        early()
        warm(o.get("d1", 20), AQ)
        poll(RM + 8, VL16, "s52")()
        warm(o.get("g1", 40), AQ)
        poll(RM + 16, VL16, "s52")()
        warm(o.get("w1", 0), AQ)
        a("s_waitcnt vmcnt(2)")
        a(f"L_{T}_h1:")
        a(f"v_mfma_f32_16x16x32_bf16 v[{AV}:{AV+3}], v[{QF+4}:{QF+7}], v[{RM+8}:{RM+11}], 0")
        a(f"v_mfma_f32_16x16x32_bf16 v[{AV}:{AV+3}], v[{QF+4}:{QF+7}], v[{RM+12}:{RM+15}], v[{AV}:{AV+3}]")
        check1(RM + 8, AQ)
        a(f"s_cbranch_vccnz L_{T}_h1r")
        outl.append((f"L_{T}_h1r", f"L_{T}_h1", RM + 8, RM + 16, RM + 24, "s52", lambda R: check1(R, AQ), 91))
        stamp(7)
        for rot in (4, 8):
            for r in (AV, AV + 1):
                a(f"v_add_f32_dpp v{r}, v{r}, v{r} row_ror:{rot} row_mask:0xf bank_mask:0xf")
        a("s_mov_b64 exec, s[72:73]")
        a(f"v_cvt_pk_bf16_f32 v{AQ+2}, v{AV}, v{AV+1}")
        a(f"buffer_store_dword v{AQ+2}, v{VMS}, {WS}, s46 offen{st}")
        a("s_mov_b64 exec, -1\n s_add_u32 s46, s46, 8192")
        if "probe" in o:
            for i, k in enumerate(sorted(o["probe"], reverse=True)):
                a.lines.insert(mark + k, f"    s_memtime s[{PR[i]}:{PR[i]+1}]")
            a.lines.insert(mark, "    s_memtime s[94:95]")
            a("s_waitcnt lgkmcnt(0)")
            for i in range(len(o["probe"])):
                a(f"s_sub_u32 s3, s{PR[i]}, s94\n s_add_u32 s{80+i}, s{80+i}, s3")
        stamp(8)
        a(f"s_branch L_{T}")
        for lab, back, A, B, C, soff, chk, cnt in outl:
            a(f"{lab}:")
            for src, nxt in ((B, C), (C, B)):
                a("s_mov_b64 exec, vcc")
                poll(nxt, VL16, soff)()
                if prof:
                    a(f"s_add_u32 s{cnt}, s{cnt}, 1")
                if src == C:
                    a(f"s_sub_u32 {TMO}, {TMO}, 1\n s_cbranch_scc1 L_end")
                a("s_waitcnt vmcnt(2)")
                chk(src)
                for r in range(0, 8, 2):
                    a(f"v_mov_b64 v[{A+r}:{A+r+1}], v[{src+r}:{src+r+1}]")
                a("s_mov_b64 exec, -1")
                a(f"s_cbranch_vccz {back}")
            a(f"s_branch {lab}")
        a(f"L_{T}_kvw:")
        a(f"v_bfe_u32 v{QF+8}, v{VL16}, 2, 4")
        wait_flags(a, VF, QF + 8, "s49", sleep=0)
        a(f"s_branch L_{T}_kvr")

    loop("pure")
    loop("mixed")
    a("L_chain_done:")
    a("s_waitcnt vmcnt(0)\n s_barrier")
    a(f"buffer_store_dword v{VIDX}, off, {WS}, s51 sc1")
    if prof:
        sk = a.label("Lp")
        a(f"s_cmp_lg_u32 s43, {o.get('who', 0)}\n s_cbranch_scc1 {sk}")
        a("s_lshl_b32 s3, s7, 6\n s_add_u32 s3, s3, 4\n s_mov_b64 exec, 1")
        for i in range(12):
            a(f"v_mov_b32 v{RM+i}, s{80+i}\n buffer_store_dword v{RM+i}, v{VL16}, {DBG}, s3 offen offset:{4*i}")
        a(f"{sk}:")


def role_ao(a, o):
    VL16, VZ, VONE, VF, VL4, VOB, VKM, SEL, VP2S, VP2L, VVM, VHS = 1, 2, 3, 4, 5, 6, 7, 8, 12, 13, 14, 15
    MB, SX, SM, RQ, RK, RV, KM, VM, PF, PM, OA = 16, 32, 48, 64, 96, 128, 160, 192, 200, 208, 212
    AFR, NB, XP, YP = (200, 204, 208), 3, 128, 132
    MXR, TMP, SUM, VFO, VRW = 252, 253, 254, 0, 244
    a.srd(24, PTR(11), D * H * DH * 2)
    a.srd(12, PTR(13), S * D * 2)
    a(f"v_and_b32 v40, 63, v0\n v_lshlrev_b32 v{VL16}, 4, v40\n v_lshlrev_b32 v{VL4}, 2, v40")
    a(f"v_mov_b32 v{VZ}, 0\n v_mov_b32 v{VONE}, 1")
    a("v_and_b32 v41, 15, v0\n v_bfe_u32 v42, v0, 4, 1\n v_bfe_u32 v43, v0, 5, 1\n v_and_b32 v44, 31, v0")
    a("s_and_b32 s56, s5, 15\n s_lshr_b32 s57, s5, 4")
    a("v_lshlrev_b32 v45, 12, v43\n v_lshl_add_u32 v45, v44, 3, v45")
    a("s_mov_b32 s60, 0x05040100\n s_mov_b32 s61, 0x07060302")
    a("s_lshl_b32 s41, s56, 18\n s_lshl_b32 s3, s6, 8\n s_add_u32 s41, s41, s3")
    DEPTH = 7
    LD = lambda ks: 80 + 16 * (ks % (DEPTH + 1))

    def wo_issue(ks):
        a(f"s_add_u32 s3, s41, {ks*16384}\n s_add_u32 s40, s3, 8192")
        for j in range(8):
            r = LD(ks) + 2 * j
            a(f"buffer_load_dwordx2 v[{r}:{r+1}], v45, s[24:27], {'s40' if j >> 2 else 's3'} offen offset:{(j&3)*1024}")

    for ks in range(DEPTH):
        wo_issue(ks)
    for ks in range(16):
        a(f"s_waitcnt vmcnt({8*min(DEPTH-1, 15-ks)})")
        if ks + DEPTH < 16:
            wo_issue(ks + DEPTH)
        for T in range(4):
            for i in range(4):
                r = LD(ks) + 4 * i + (T >> 1)
                a(f"v_perm_b32 v{48+4*T+i}, v{r+2}, v{r}, s{60+(T&1)}")
        for i in range(16):
            a(f"v_accvgpr_write_b32 a{16*ks+i}, v{48+i}")
    if not o.get("staged"):
        wait_counter(a, VF, VZ, 0, 32)
    team_publish(a, VF, VZ)
    a("v_mov_b32 v48, 0xf149f2ca\n v_lshlrev_b32 v49, 2, v43")
    for r in range(16):
        a(f"v_add_u32 v50, {8*(r>>2)+(r&3)}, v49\n v_cmp_gt_u32 vcc, v50, v44\n v_cndmask_b32 v{MB+r}, 0, v48, vcc")
    a("v_mov_b32 v48, 0x3f80\n v_and_b32 v49, 1, v0\n v_lshlrev_b32 v49, 4, v49\n v_lshlrev_b32 v48, v49, v48")
    a("v_lshrrev_b32 v49, 1, v41\n v_lshlrev_b32 v50, 2, v43\n v_sub_u32 v49, v49, v50")
    for d in range(4):
        a(f"v_cmp_eq_u32 vcc, {d}, v49\n v_cndmask_b32 v{SEL+d}, 0, v48, vcc")
    a(f"v_and_b32 v48, 7, v0\n v_lshlrev_b32 v{VKM}, 4, v48\n v_lshl_add_u32 v{VKM}, v43, 7, v{VKM}")
    a(f"v_lshlrev_b32 v{VVM}, 8, v43\n v_lshl_add_u32 v{VVM}, v41, 3, v{VVM}\n v_lshl_add_u32 v{VVM}, v42, 2, v{VVM}")
    a(f"v_lshlrev_b32 v{VP2S}, 12, v43\n v_lshl_add_u32 v{VP2S}, v44, 2, v{VP2S}\n s_lshl_b32 s3, s6, 8\n s_lshl_b32 s40, s56, 15\n s_add_u32 s3, s3, s40\n v_add_u32 v{VP2S}, s3, v{VP2S}")
    a("s_and_b32 s58, s6, 1\n s_lshl_b32 s3, s56, 1\n s_add_u32 s58, s58, s3")
    a(f"v_lshlrev_b32 v{VP2L}, 15, v42\n v_lshl_add_u32 v{VP2L}, v43, 9, v{VP2L}\n v_lshl_add_u32 v{VP2L}, v48, 4, v{VP2L}\n v_bfe_u32 v48, v0, 3, 1\n v_lshl_add_u32 v{VP2L}, v48, 8, v{VP2L}")
    a(f"v_lshlrev_b32 v48, 9, v43\n v_lshl_add_u32 v48, v41, 5, v48\n v_lshl_add_u32 v48, v42, 4, v48")
    a(f"v_mov_b32 v{VRW}, v48")
    a(f"s_lshl_b32 s3, s58, 10\n v_add_u32 v{VP2L}, s3, v{VP2L}")
    a(f"s_and_b32 s3, s58, 15\n s_lshl_b32 s3, s3, 4\n v_xor_b32 v{VHS}, s3, v{VRW}\n v_mov_b32 v{VOB}, v{VL16}")
    a("s_mov_b32 s44, s57\n s_lshl_b32 s3, s7, 6\n s_add_u32 s3, s3, s44")
    a(f"s_lshl_b32 s49, s3, 8\n s_add_u32 s49, s49, {FP}")
    a("s_lshl_b32 s3, s3, 5\n s_add_u32 s3, s3, s58\n s_lshl_b32 s45, s3, 6")
    a(f"s_mul_i32 s46, s3, 24576\n s_add_u32 s46, s46, {OFF_QKV}\n s_lshl_b32 s47, s3, 12\n s_add_u32 s47, s47, {OFF_KM}")
    a(f"s_lshl_b32 s48, s7, 23\n s_lshl_b32 s3, s57, 20\n s_add_u32 s48, s48, s3\n s_add_u32 s48, s48, {OFF_P2}")
    a("s_lshl_b32 s50, s44, 5\n s_add_u32 s50, s50, s58\n s_lshl_b32 s50, s50, 10")
    a(f"s_lshl_b32 s51, s7, 21\n s_add_u32 s51, s51, {OFF_X}\n s_mov_b32 s52, 0\n s_mov_b32 s39, 0\n s_mov_b32 s63, 0x20000000")
    a("s_lshl_b32 s53, s56, 4\n s_lshl_b32 s3, s6, 2\n s_add_u32 s53, s53, s3\n s_lshl_b32 s59, s6, 13")
    if o.get("trace"):
        for r in range(245, 252):
            a(f"v_mov_b32 v{r}, 0")
    a("s_mov_b32 s62, 0")
    team_wait(a, VF, 40, "L_ao_mx")
    a("s_mov_b32 s62, 1")
    a("L_ao_mx:")
    a(f"v_mov_b32 v40, 32\n v_and_b32 v41, 28, v{VL4}\n v_add_u32 v41, 4096, v41")
    a(f"v_cmp_eq_u32 vcc, 1, v43\n v_cndmask_b32 v{VFO}, v40, v41, vcc")
    a("s_cmp_eq_u32 s62, 0\n s_cbranch_scc1 L_ao_mixed")

    TSLOT = {7: 0, 8: 1, 9: 2, 12: 1, 13: 2, 14: 3, 10: 4, 11: 5, 15: 6}

    def ltrace(tag):
        if o.get("trace"):
            a(("s_memtime" if o.get("cyc") else "s_memrealtime") + " s[96:97]\n s_waitcnt lgkmcnt(0)")
            a(f"s_and_b32 s96, s96, 0x0fffffff\n s_or_b32 s96, s96, {tag << 28:#x}\n s_mov_b32 m0, s44")
            a(f"v_writelane_b32 v{245+TSLOT[tag]}, s96, m0")

    NT = " nt" if o.get("nt", 1) else ""

    def qkv_list(which, so):
        return [f"buffer_load_dwordx4 v[{dst+4*i}:{dst+4*i+3}], v{VL16}, {WS}, {so(m, i >> 2)} offen offset:{(i&3)*1024} sc1{NT}"
                for m, dst in which for i in range(8)]

    def qkv_loads(which):
        for m, dst in which:
            a(f"s_add_u32 s3, s46, {m*8192}\n s_add_u32 s40, s46, {m*8192+4096}")
            for x in qkv_list(((m, dst),), lambda m_, hh: ("s3", "s40")[hh]):
                a(x)

    def km_list(so):
        L = [f"buffer_load_dwordx4 v[{KM+4*i}:{KM+4*i+3}], v{VKM}, {WS}, {so} offen offset:{i*256} sc1" for i in range(8)]
        L += [f"buffer_load_dword v{VM+2*ct+j}, v{VVM}, {WS}, {so} offen offset:{2048+ct*512+j*128} sc1" for ct in range(4) for j in range(2)]
        return L

    def loop(mode):
        st = "" if mode == "pure" else " sc1"
        T_ = f"ao_{mode}"
        a(f"L_{T_}:")
        ltrace(7)
        a(f"s_cmp_ge_u32 s6, 2\n s_cbranch_scc1 L_{T_}_bar")
        a(f"s_and_b32 s3, s52, s39\n s_cbranch_scc1 L_{T_}_have")
        a(f"s_cmp_lt_u32 s44, 2\n s_cbranch_scc1 L_{T_}_nob\n s_barrier")
        a(f"L_{T_}_nob:")
        a(f"s_cmp_lg_u32 s52, 0\n s_cbranch_scc1 L_{T_}_have")
        a(f"v_and_b32 v{TMP}, 28, v{VL4}")
        wait_flags(a, VF, TMP, "s45")
        qkv_loads(((0, RK), (2, RQ), (1, RV)))
        a("s_waitcnt vmcnt(8)")
        a(f"L_{T_}_have:")
        for i in range(8):
            a(f"v_mfma_f32_32x32x16_bf16 v[{SX}:{SX+15}], v[{RK+4*i}:{RK+4*i+3}], v[{RQ+4*i}:{RQ+4*i+3}], " + (f"v[{SX}:{SX+15}]" if i else f"v[{MB}:{MB+15}]"))
        ltrace(8)
        a(f"s_and_b32 s33, s52, s39\n s_cbranch_scc1 L_{T_}_km")
        a(f"L_{T_}_kw:")
        a(f"buffer_load_dword v{VF}, v{VFO}, {WS}, s45 offen sc1")
        a(f"s_waitcnt vmcnt(0)\n v_cmp_eq_u32 vcc, 0, v{VF}\n s_cmp_eq_u32 vcc_lo, 0\n s_cbranch_scc1 L_{T_}_kl")
        poll_tail(a, f"L_{T_}_kw")
        a(f"L_{T_}_kl:")
        for x in km_list("s47"):
            a(x)
        a(f"L_{T_}_km:")
        ltrace(9)
        a(f"v_cmp_eq_u32 vcc, 0, v{VF}")
        a(f"s_cmp_eq_u32 vcc_hi, 0\n s_cselect_b32 s52, 1, 0\n s_cmp_ge_u32 s44, 62\n s_cselect_b32 s52, 0, s52\n s_add_u32 s46, s46, {2*32*24576}")
        a("s_nop 3")
        a(f"v_max3_f32 v{MXR}, v{SX}, v{SX+1}, v{SX+2}\n v_max3_f32 v{TMP}, v{SX+3}, v{SX+4}, v{SX+5}")
        for r in range(6, 14, 4):
            a(f"v_max3_f32 v{MXR}, v{MXR}, v{SX+r}, v{SX+r+1}\n v_max3_f32 v{TMP}, v{TMP}, v{SX+r+2}, v{SX+r+3}")
        a(f"v_max3_f32 v{MXR}, v{MXR}, v{SX+14}, v{SX+15}")
        for i in range(8):
            a(f"s_waitcnt vmcnt({15-i})")
            a(f"v_mfma_f32_32x32x16_bf16 v[{SM}:{SM+15}], v[{KM+4*i}:{KM+4*i+3}], v[{RQ+4*i}:{RQ+4*i+3}], " + (f"v[{SM}:{SM+15}]" if i else "0"))
        a(f"s_add_u32 s45, s45, {2*32*64}\n s_add_u32 s47, s47, {2*32*4096}")
        a(f"s_cmp_lg_u32 s52, 0\n s_cselect_b32 s64, s46, s63")
        for i in range(1, 6):
            a(f"s_add_u32 s{64+i}, s64, {i*4096}")
        a(f"v_max3_f32 v{TMP}, v{TMP}, v{SM}, v{SM+1}\n v_max3_f32 v{MXR}, v{MXR}, v{SM+2}, v{SM+3}\n v_max_f32 v{MXR}, v{MXR}, v{TMP}")
        a(f"v_mov_b32 v{TMP}, v{MXR}\n v_permlane32_swap_b32 v{TMP}, v{MXR}\n v_max_f32 v{MXR}, v{MXR}, v{TMP}")
        for r in range(SX, SX + 20, 2):
            a(f"v_pk_add_f32 v[{r}:{r+1}], v[{r}:{r+1}], v[{MXR}:{MXR+1}] op_sel_hi:[1,0] neg_lo:[0,1] neg_hi:[0,1]")
        for r in range(SX, SX + 20):
            a(f"v_exp_f32 v{r}, v{r}")
        a(f"v_pk_add_f32 v[{SUM}:{SUM+1}], v[{SX}:{SX+1}], v[{SX+2}:{SX+3}]\n v_pk_add_f32 v[{MXR}:{MXR+1}], v[{SX+4}:{SX+5}], v[{SX+6}:{SX+7}]")
        for r in range(SX + 8, SX + 20, 4):
            a(f"v_pk_add_f32 v[{SUM}:{SUM+1}], v[{SUM}:{SUM+1}], v[{r}:{r+1}]\n v_pk_add_f32 v[{MXR}:{MXR+1}], v[{MXR}:{MXR+1}], v[{r+2}:{r+3}]")
        a(f"v_pk_add_f32 v[{SUM}:{SUM+1}], v[{SUM}:{SUM+1}], v[{MXR}:{MXR+1}]\n v_add_f32 v{SUM}, v{SUM}, v{SUM+1}")
        a(f"v_mov_b32 v{TMP}, v{SUM}\n v_permlane32_swap_b32 v{TMP}, v{SUM}\n v_add_f32 v{SUM}, v{SUM}, v{TMP}\n v_rcp_f32 v{SUM}, v{SUM}")
        a(f"v_add_u32 v{TMP}, s59, v{VOB}")
        for r in range(SX, SX + 20, 2):
            a(f"v_pk_mul_f32 v[{r}:{r+1}], v[{r}:{r+1}], v[{SUM}:{SUM+1}] op_sel_hi:[1,0]")
        for i in range(10):
            r = SX + (4 * (i >> 2) + 8 * ((i >> 1) & 1) + 2 * (i & 1) if i < 8 else 2 * i)
            a(f"v_cvt_pk_bf16_f32 v{PF+i}, v{r}, v{r+1}")
        sk = a.label("Lb")
        a(f"s_waitcnt vmcnt(0)\n s_cmp_eq_u32 s33, 0\n s_cbranch_scc1 {sk}\n s_barrier")
        a(f"{sk}:")
        oacc = [OA, OA + 16, SX, SM]
        KQ = qkv_list(((0, RK), (2, RQ)), lambda m, hh: f"s{64+2*m+hh}")
        npv = o.get("npv", 8)

        def oepi(ct):
            A = oacc[ct]
            L = []
            for i in range(8):
                L.append(f"v_cvt_pk_bf16_f32 v{KM+8*ct+i}, v{A+2*i}, v{A+2*i+1}")
                if i & 3 == 3:
                    L.append(f"ds_write_b128 v{TMP}, v[{KM+8*ct+i-3}:{KM+8*ct+i}] offset:{(2*ct+(i>>2))*1024}")
            return L

        k = 0
        for ct in range(4):
            A = oacc[ct]
            E = oepi(ct - 1) if ct >= 1 else []
            for f in range(3):
                if f < 2:
                    a(f"v_mfma_f32_32x32x16_bf16 v[{A}:{A+15}], v[{RV+8*ct+4*f}:{RV+8*ct+4*f+3}], v[{PF+4*f}:{PF+4*f+3}], " + (f"v[{A}:{A+15}]" if f else "0"))
                else:
                    a(f"v_mfma_f32_32x32x8_bf16 v[{A}:{A+15}], v[{VM+2*ct}:{VM+2*ct+1}], v[{PM}:{PM+1}], v[{A}:{A+15}]")
                if (ct == 0 or f == 0) and k < npv:
                    a(KQ[k]); k += 1
                    if ct == 0 and k < npv:
                        a(KQ[k]); k += 1
                if f >= 1:
                    for x in E[5 * (f - 1):5 * f]:
                        a(x)
        a(f"buffer_load_dword v{VF}, v{VFO}, {WS}, s45 offen sc1")
        for x in oepi(3):
            a(x)
        a("s_waitcnt lgkmcnt(0)")
        a(f"L_{T_}_bar:")
        a("s_add_u32 s36, s48, 8192\n s_add_u32 s37, s48, 16384\n s_add_u32 s38, s48, 24576\n s_mov_b32 s39, 0")
        ltrace(10)
        a("s_barrier")
        af = lambda j: f"v[{AFR[j%NB]}:{AFR[j%NB]+3}]"
        rd = lambda j: a(f"ds_read_b128 {af(j)}, v{VOB} offset:{(j&15)*1024}")
        acc = [SX, SM, OA, OA + 16]
        pack = lambda p: [f"v_cvt_pk_bf16_f32 v{acc[2*p]+r}, v{acc[2*p]+r}, v{acc[2*p+1]+r}\n buffer_store_dword v{acc[2*p]+r}, v{VP2S}, {WS}, {('s48', 's36', 's37', 's38')[r>>2]} offen offset:{(r&3)*1024+p*128}{st}" for r in range(16)]
        for j in range(NB - 1):
            rd(j)

        def wo_phase(fill):
            P0 = pack(0)
            for r in range(16):
                fill.setdefault(2 * (18 + r * 13 // 16) + (1 if r in (1, 6, 12) else 0), []).append(P0[r])
            for j in range(32):
                ks, p = j & 15, j >> 4
                if j + NB - 1 < 32:
                    rd(j + NB - 1)
                a(f"s_waitcnt lgkmcnt({min(NB-1, 31-j)})")
                for t in range(2):
                    A = acc[2 * p + t]
                    b = (ks * 4 + 2 * p + t) * 4
                    a(f"v_mfma_f32_32x32x16_bf16 v[{A}:{A+15}], {af(j)}, a[{b}:{b+3}], " + (f"v[{A}:{A+15}]" if ks else "0"))
                    for x in fill.get(2 * j + t, []):
                        a(x)
            a(f"v_xor_b32 v{VOB}, 0x4000, v{VOB}\n s_add_u32 s3, s49, s53")
            for x in pack(1):
                a(x)
            ltrace(11)
            a("s_waitcnt vmcnt(0)")
            a(f"buffer_store_dword v{VONE}, off, {WS}, s3{st}")

        a(f"s_cmp_ge_u32 s6, 2\n s_cbranch_scc1 L_{T_}_red")
        rest = KQ[k:] + qkv_list(((1, RV),), lambda m, hh: f"s{64+2*m+hh}")
        fill = {i: [x] for i, x in enumerate(rest)}
        n = len(rest)
        fill[n] = [f"s_waitcnt vmcnt({n})\n v_cmp_eq_u32 vcc, 0, v{VF}"]
        fill[n + 1] = ["s_cmp_eq_u32 vcc_lo, 0\n s_cselect_b32 s39, s52, 0\n s_cmp_lg_u32 s39, 0\n s_cselect_b32 s40, s47, s63"]
        for i, x in enumerate(km_list("s40")):
            fill[n + 2 + i] = [x]
        wo_phase(fill)
        a(f"s_branch L_{T_}_nx")
        a(f"L_{T_}_red:")
        wo_phase({0: [f"s_add_u32 s3, s51, s50\n buffer_load_dwordx4 v[{XP}:{XP+3}], v{VRW}, {WS}, s3 offen sc1"],
                  2: [f"s_add_u32 s3, s50, {OFF_Y}\n buffer_load_dwordx4 v[{YP}:{YP+3}], v{VRW}, {WS}, s3 offen sc1"]})
        ltrace(12)
        row = dict(x=40, t=48, s=56, y=68, xo=60, ho=64)
        for i in range(4):
            unpack(a, XP + i, 40 + 2 * i, 41 + 2 * i)
            unpack(a, YP + i, 68 + 2 * i, 69 + 2 * i)
        wait_flags(a, VF, VL4, "s49", sleep=0)
        ltrace(13)
        G = 136
        a("s_mov_b32 s3, s48")
        for ld in range(8):
            for u in range(2):
                r = G + 8 * ld + 4 * u
                a(f"buffer_load_dwordx4 v[{r}:{r+3}], v{VP2L}, {WS}, s3 offen offset:{u*128} sc1")
            a("s_add_u32 s3, s3, 65536")
        a("s_barrier")
        for ld in range(8):
            a(f"s_waitcnt vmcnt({2*(7-ld)})")
            for u in range(2):
                r = G + 8 * ld + 4 * u
                a(f"v_mfma_f32_16x16x32_bf16 v[{32+4*u}:{35+4*u}], v[{SEL}:{SEL+3}], v[{r}:{r+3}], " + (f"v[{32+4*u}:{35+4*u}]" if ld else "0"))
        for i in range(4):
            A = 32 + 4 * (i & 1) + 2 * (i >> 1)
            a(f"v_cvt_pk_bf16_f32 v{56+i}, v{A}, v{A+1}")
        for i in range(4):
            unpack(a, 56 + i, 32 + 2 * i, 33 + 2 * i)
        for i in range(4):
            a(f"v_pk_add_f32 v[{40+2*i}:{41+2*i}], v[{40+2*i}:{41+2*i}], v[{32+2*i}:{33+2*i}]")
        for i in range(4):
            a(f"v_cvt_pk_bf16_f32 v{60+i}, v{40+2*i}, v{41+2*i}")
        ltrace(14)
        l1 = a.label("Lao")
        a(f"s_cmp_lg_u32 s7, 0\n s_cbranch_scc1 {l1}")
        for i in range(4):
            unpack(a, 60 + i, 40 + 2 * i, 41 + 2 * i)
        rowfin(a, [row])
        a(f"s_add_u32 s3, s50, {OFF_H+0x200000}\n s_add_u32 s40, s50, {OFF_X+0x200000}")
        a(f"buffer_store_dwordx4 v[64:67], v{VHS}, {WS}, s3 offen sc1")
        a(f"buffer_store_dwordx4 v[60:63], v{VRW}, {WS}, s40 offen sc1")
        a(f"s_lshr_b32 s3, s50, 8\n s_add_u32 s3, s3, {FH+64*128}")
        a("s_waitcnt vmcnt(0)")
        a(f"buffer_store_dword v{VONE}, off, {WS}, s3 sc1")
        a(f"s_branch L_{T_}_nx")
        a(f"{l1}:")
        a(f"buffer_store_dwordx4 v[60:63], v{VRW}, s[12:15], s50 offen")
        a(f"L_{T_}_nx:")
        ltrace(15)
        a(f"s_add_u32 s44, s44, 2\n s_xor_b32 s48, s48, 0x80000\n s_add_u32 s49, s49, 512\n s_add_u32 s50, s50, {2*32*1024}")
        a(f"s_cmp_lt_u32 s44, 64\n s_cbranch_scc1 L_{T_}")
        if o.get("trace"):
            for r in range(7):
                a(f"buffer_store_dword v{245+r}, v{VL4}, {WS}, s99 offen offset:{r*256}")
        a("s_endpgm")

    loop("pure")
    loop("mixed")
```

```python
import sys
sys.path.insert(0, "gen")
from asmlib import *
from layout import *
import hazard

PTR = lambda i: 64 + 2 * i
WS = "s[8:11]"
DBG = "s[28:31]"
TMO = "s98"
EPS = 0x3727C5AC


def poll_tail(a, loop):
    a(f"s_sub_u32 {TMO}, {TMO}, 1")
    a(f"s_cbranch_scc1 L_end")
    a(f"s_branch {loop}")


def wait_flags(a, vdst, voff, soff, imm=0, sleep=1, srd=WS):
    lp, dn = a.label("Lw"), a.label("Lwd")
    a(f"{lp}:")
    a(f"buffer_load_dword v{vdst}, v{voff}, {srd}, {soff} offen offset:{imm} sc1")
    a("s_waitcnt vmcnt(0)")
    a(f"v_cmp_eq_u32 vcc, 0, v{vdst}")
    a(f"s_cbranch_vccz {dn}")
    if sleep:
        a(f"s_sleep {sleep}")
    poll_tail(a, lp)
    a(f"{dn}:")


def wait_counter(a, vtmp, vz, imm, target):
    lp, dn = a.label("Lc"), a.label("Lcd")
    a(f"{lp}:")
    a(f"buffer_load_dword v{vtmp}, v{vz}, {DBG}, 0 offen offset:{imm} sc1")
    a("s_waitcnt vmcnt(0)")
    a(f"v_cmp_gt_u32 vcc, {target}, v{vtmp}")
    a(f"s_cbranch_vccz {dn}")
    a("s_sleep 2")
    poll_tail(a, lp)
    a(f"{dn}:")


def count_arrive(a, vtmp, vz, imm):
    a(f"v_mov_b32 v{vtmp}, 1")
    a("s_mov_b64 exec, 1")
    a(f"buffer_atomic_add v{vtmp}, v{vz}, {DBG}, 0 offen offset:{imm} sc1")
    a("s_mov_b64 exec, -1")


def trace(a, o, vtmp, vlane, tag):
    if not o.get("trace"):
        return
    a(("s_memtime" if o.get("cyc") else "s_memrealtime") + " s[96:97]\n s_waitcnt lgkmcnt(0)")
    a(f"s_and_b32 s96, s96, 0x0fffffff\n s_or_b32 s96, s96, {tag << 28:#x}")
    a(f"v_mov_b32 v{vtmp}, s96\n s_mov_b64 exec, 1")
    a(f"buffer_store_dword v{vtmp}, v{vlane}, {WS}, s99 offen")
    a("s_mov_b64 exec, -1\n s_add_u32 s99, s99, 4")


def allreduce(a, rs, op="v_add_f32", fill=()):
    fill = list(fill)
    per = -(-len(fill) // 6)

    def gap():
        for _ in range(per):
            if fill:
                a(fill.pop(0))

    for pat in ("quad_perm:[1,0,3,2]", "quad_perm:[2,3,0,1]", "row_half_mirror", "row_mirror"):
        gap()
        for r, t in rs:
            a(f"{op}_dpp v{r}, v{r}, v{r} {pat} row_mask:0xf bank_mask:0xf")
    for sw in ("v_permlane16_swap_b32", "v_permlane32_swap_b32"):
        for r, t in rs:
            a(f"v_mov_b32 v{t}, v{r}")
        gap()
        for r, t in rs:
            a(f"{sw} v{t}, v{r}")
        for r, t in rs:
            a(f"{op} v{r}, v{r}, v{t}")


def unpack(a, p, lo, hi):
    a(f"v_lshlrev_b32 v{lo}, 16, v{p}")
    a(f"v_and_b32 v{hi}, 0xffff0000, v{p}")


def rnd1(a, r):
    a(f"v_cvt_pk_bf16_f32 v{r}, v{r}, v{r}")
    a(f"v_and_b32 v{r}, 0xffff0000, v{r}")


def pk(a, op, d, x, y, mod=""):
    a(f"v_pk_{op}_f32 v[{d}:{d+1}], v[{x}:{x+1}], v[{y}:{y+1}]{mod}")


BC = " op_sel_hi:[1,0]"
NBC = " op_sel_hi:[1,0] neg_lo:[0,1] neg_hi:[0,1]"


def layernorm(a, rows, key):
    for R in rows:
        x, s = R["x"], R["s"]
        pk(a, "add", s, x, x + 2); pk(a, "add", s + 2, x + 4, x + 6); pk(a, "add", s, s, s + 2)
        a(f"v_add_f32 v{s}, v{s}, v{s+1}")
    allreduce(a, [(R["s"], R["s"] + 1) for R in rows])
    for R in rows:
        x, t, s = R["x"], R["t"], R["s"]
        a(f"v_mul_f32 v{s}, 0x3b000000, v{s}")
        for i in range(0, 8, 2):
            pk(a, "add", t + i, x + i, s, NBC)
        pk(a, "mul", s + 2, t, t)
        for i in range(2, 8, 2):
            a(f"v_pk_fma_f32 v[{s+2}:{s+3}], v[{t+i}:{t+i+1}], v[{t+i}:{t+i+1}], v[{s+2}:{s+3}]")
        a(f"v_add_f32 v{s+2}, v{s+2}, v{s+3}")
    fill = []
    for R in rows:
        x, t, s = R["x"], R["t"], R["s"]
        fill += [f"v_cvt_pk_bf16_f32 v{s}, v{s}, v{s}", f"v_and_b32 v{s}, 0xffff0000, v{s}"]
        fill += [f"v_pk_add_f32 v[{t+i}:{t+i+1}], v[{x+i}:{x+i+1}], v[{s}:{s+1}]{NBC}" for i in range(0, 8, 2)]
        for i in range(0, 8, 2):
            fill += [f"v_cvt_pk_bf16_f32 v{t+i+1}, v{t+i}, v{t+i+1}", f"v_lshlrev_b32 v{t+i}, 16, v{t+i+1}", f"v_and_b32 v{t+i+1}, 0xffff0000, v{t+i+1}"]
    allreduce(a, [(R["s"] + 2, R["s"] + 3) for R in rows], fill=fill)
    for R in rows:
        t, s = R["t"], R["s"]
        a(f"v_mul_f32 v{s+2}, 0x3b000000, v{s+2}")
        rnd1(a, s + 2)
        a(f"v_add_f32 v{s+2}, {EPS:#x}, v{s+2}")
        rnd1(a, s + 2)
        a(f"v_sqrt_f32 v{s+2}, v{s+2}")
        rnd1(a, s + 2)
        a(f"v_rcp_f32 v{s+2}, v{s+2}")
        for i in range(0, 8, 2):
            pk(a, "mul", t + i, t + i, s + 2, BC)
        if key:
            for i in range(4):
                a(f"v_cvt_pk_bf16_f32 v{R[key]+i}, v{t+2*i}, v{t+2*i+1}")


def rowfin(a, rows, first=True):
    if first:
        layernorm(a, rows, None)
    for R in rows:
        x, t, y, xo = R["x"], R["t"], R["y"], R["xo"]
        for i in range(0, 8, 2):
            a(f"v_pk_fma_f32 v[{x+i}:{x+i+1}], v[{t+i}:{t+i+1}], v[{y+i}:{y+i+1}], v[{x+i}:{x+i+1}]")
        for i in range(4):
            a(f"v_cvt_pk_bf16_f32 v{xo+i}, v{x+2*i}, v{x+2*i+1}")
        for i in range(4):
            unpack(a, xo + i, x + 2 * i, x + 2 * i + 1)
    layernorm(a, rows, "ho")


def role_pre(a, o):
    KK, KC = 0x0, 4128
    KKS = 4 * KC
    KVR, KVS = 0x10200, 4608
    YS, YR, RS = 0x0, 0x4000, 1040
    TA, TAS = 0x14A00, 144
    a.srd(12, PTR(1), S * D * 2)
    a.srd(16, PTR(2), S * D * 2)
    a.srd(20, PTR(4), S * D * 2)
    a.srd(24, PTR(0), S * D * 2)
    a.srd(40, PTR(3), D * 4 * 2)
    a(f"s_lshl_b32 s3, s7, 3\n s_load_dwordx2 s[36:37], s[{PTR(5)}:{PTR(5)+1}], s3")
    a("v_and_b32 v1, 63, v0\n v_lshlrev_b32 v2, 4, v1")
    a("v_and_b32 v3, 15, v0\n v_bfe_u32 v4, v0, 4, 2")
    a("s_lshr_b32 s44, s7, 5\n s_lshl_b32 s45, s5, 16\n s_lshl_b32 s3, s44, 8\n s_add_u32 s45, s45, s3")
    a("v_lshrrev_b32 v8, 4, v0\n v_lshlrev_b32 v6, 12, v8\n v_lshl_add_u32 v6, v3, 4, v6\n v_add_u32 v6, s45, v6\n v_subrev_u32 v5, 3072, v6")
    KB, VB, SB = 12, 40, 56
    for i in range(7):
        vo, im = (5, i * 1024) if i < 3 else (6, (i - 3) * 1024)
        a(f"buffer_load_dwordx4 v[{KB+4*i}:{KB+4*i+3}], v{vo}, s[12:15], 0 offen offset:{im}")
    for i in range(4):
        a(f"buffer_load_dwordx4 v[{VB+4*i}:{VB+4*i+3}], v6, s[16:19], 0 offen offset:{i*1024}")
    a("v_lshlrev_b32 v7, 6, v3\n s_lshl_b32 s3, s44, 10")
    for i in range(4):
        a(f"buffer_load_dwordx4 v[{SB+4*i}:{SB+4*i+3}], v7, s[40:43], s3 offen offset:{i*16}")
    a("s_lshl_b32 s38, s7, 2\n s_add_u32 s38, s38, s6")
    a("s_lshl_b32 s39, s38, 12")
    a(f"s_mul_i32 s33, s6, {KKS}")
    for cp in range(4):
        a(f"s_add_u32 m0, s33, {KK+32+cp*KC}\n s_add_u32 s3, s39, {2*cp}")
        for i in range(4):
            a(f"buffer_load_dwordx4 v2, s[20:23], s3 offen offset:{i*1024} lds")
    a("s_lshl_b32 s46, s7, 4\n s_lshl_b32 s3, s6, 2\n s_add_u32 s46, s46, s3\n s_lshl_b32 s47, s46, 10")
    XP = 100
    for r in range(4):
        a(f"buffer_load_dwordx4 v[{XP+4*r}:{XP+4*r+3}], v2, s[24:27], s47 offen offset:{r*1024}")
    a("v_mov_b32 v10, 0\n v_mov_b32 v11, 0")
    a(f"s_mul_i32 s34, s6, {KVS}\n s_add_u32 s34, s34, {KVR}")
    a("v_lshlrev_b32 v7, 3, v1\n v_add_u32 v9, s34, v7")
    a("ds_write_b64 v9, v[10:11] offset:4096")
    a("v_and_b32 v9, 24, v7\n v_add_u32 v9, s33, v9")
    a(f"ds_write_b64 v9, v[10:11] offset:{KK}")
    a("s_waitcnt lgkmcnt(0)")
    a("s_bitcmp1_b32 s6, 1\n s_cselect_b32 s36, s37, s36")
    a("s_lshl_b32 s37, s36, 16\n s_and_b32 s36, s36, 0xffff0000")
    a("s_bitcmp1_b32 s6, 0\n s_cselect_b32 s36, s36, s37")
    a(f"v_mul_u32_u24 v9, {8*TAS}, v3\n v_lshlrev_b32 v8, 3, v8\n v_sub_u32 v9, v9, v8\n v_add_u32 v9, {TA+120}, v9")
    a("s_waitcnt vmcnt(20)")
    for c in range(8):
        up = (lambda d, s: a(f"v_lshlrev_b32 v{d}, 16, v{s}")) if c % 2 == 0 else (lambda d, s: a(f"v_and_b32 v{d}, 0xffff0000, v{s}"))
        for i in range(7):
            up(72 + i, KB + 4 * i + (c >> 1))
        for i in range(4):
            up(80 + i, VB + 4 * i + (c >> 1))
        unpack(a, SB + 2 * c, 84, 85)
        unpack(a, SB + 2 * c + 1, 86, 87)
        for i in range(4):
            a(f"v_mul_f32 v{88+i}, v87, v{72+i}")
        for tap in (2, 1, 0):
            for i in range(4):
                a(f"v_fmac_f32 v{88+i}, v{84+tap}, v{72+i+3-tap}")
        pk(a, "mul", 88, 88, 80); pk(a, "mul", 90, 90, 82)
        P = 92 + 2 * (c & 3)
        a(f"v_cvt_pk_bf16_f32 v{P}, v91, v90\n v_cvt_pk_bf16_f32 v{P+1}, v89, v88")
        a(f"ds_write_b64 v9, v[{P}:{P+1}] offset:{c*TAS}")
    a(f"v_lshrrev_b32 v8, 3, v0\n v_and_b32 v9, 7, v0\n v_lshlrev_b32 v9, 4, v9\n v_mul_u32_u24 v7, {TAS}, v8\n v_add3_u32 v7, v7, v9, 0\n v_add_u32 v7, {TA}, v7")
    a("v_lshl_add_u32 v9, v8, 12, v9")
    a(f"s_lshl_b32 s45, s44, 19\n s_add_u32 s45, s45, {OFF_KVR+3968}\n s_lshl_b32 s3, s5, 7\n s_sub_u32 s45, s45, s3")
    a("s_waitcnt lgkmcnt(0)\n s_barrier")
    for i in range(4):
        a(f"ds_read_b128 v[{12+4*i}:{15+4*i}], v7 offset:{i*32*TAS}")
    for i in range(4):
        a(f"s_waitcnt lgkmcnt({3-i})")
        a(f"buffer_store_dwordx4 v[{12+4*i}:{15+4*i}], v9, {WS}, s45 offen sc1")
        a(f"s_add_u32 s45, s45, {32*4096}")
    a(f"v_lshlrev_b32 v8, 1, v3\n v_lshl_add_u32 v8, v4, 4, v8\n v_add_u32 v8, s33, v8\n v_mov_b32 v5, 0")
    a("s_waitcnt vmcnt(0)\n s_barrier")
    trace(a, o, 9, 1, 2)
    a("s_lshl_b32 s3, s44, 4\n v_mov_b32 v7, s3")
    sk = a.label("Lsk")
    a(f"s_cmp_lg_u32 s6, 0\n s_cbranch_scc1 {sk}")
    count_arrive(a, 6, 7, 64)
    a(f"{sk}:")
    a(f"ds_read_b128 a[0:3], v8 offset:{KK+2}")
    a(f"v_add_u32 v9, 1, v3\n v_and_b32 v8, 3, v9\n v_mul_u32_u24 v8, {KC}, v8\n v_lshrrev_b32 v9, 2, v9\n v_lshl_add_u32 v8, v9, 3, v8")
    a("v_lshl_add_u32 v8, v4, 4, v8\n v_add_u32 v8, s33, v8\n v_add_u32 v9, 2048, v8")
    for i in range(1, 64):
        a(f"ds_read2_b64 a[{4*i}:{4*i+3}], v{8+(i>>5)} offset0:{8*(i&31)} offset1:{8*(i&31)+1}")
        if i % 8 == 7:
            a("s_waitcnt lgkmcnt(4)")
    wait_counter(a, 6, 7, 64, 32)
    a(f"s_mov_b32 m0, s34\n s_add_u32 s3, s39, {OFF_KVR}")
    for i in range(4):
        a(f"buffer_load_dwordx4 v2, {WS}, s3 offen offset:{i*1024} sc1 lds")
    a(f"v_lshlrev_b32 v8, 5, v3\n v_sub_u32 v8, {4064-64*56}, v8\n v_lshl_add_u32 v8, v4, 4, v8\n v_add_u32 v8, s34, v8")
    a("s_waitcnt vmcnt(0) lgkmcnt(0)\n s_barrier")
    trace(a, o, 9, 1, 3)
    ms = list(range(56, -8, -1))
    NB = 6
    BF, ACC = 10, 40
    rd = lambda j: a(f"ds_read_b128 v[{BF+4*(j%NB)}:{BF+4*(j%NB)+3}], v8 offset:{64*(56-ms[j])}")
    for j in range(NB - 1):
        rd(j)
    started = set()
    for j, m in enumerate(ms):
        if j + NB - 1 < len(ms):
            rd(j + NB - 1)
        a(f"s_waitcnt lgkmcnt({min(NB-1, len(ms)-1-j)})")
        for T in range(8):
            ai = 8 * T - m
            if 0 <= ai <= 63:
                c = f"v[{ACC+4*T}:{ACC+4*T+3}]" if T in started else "0"
                started.add(T)
                a(f"v_mfma_f32_16x16x32_bf16 v[{ACC+4*T}:{ACC+4*T+3}], a[{4*ai}:{4*ai+3}], v[{BF+4*(j%NB)}:{BF+4*(j%NB)+3}], {c}")
    a(f"v_lshlrev_b32 v9, 5, v3\n v_lshl_add_u32 v9, v4, 3, v9")
    a(f"v_sub_u32 v8, {4088-7*512}, v9\n v_add_u32 v8, s34, v8")
    for T in range(8):
        a(f"ds_read_b64 v[{80+2*T}:{81+2*T}], v8 offset:{(7-T)*512}")
    a(f"v_lshlrev_b32 v9, 7, v3\n v_lshl_add_u32 v9, v4, 3, v9\n s_lshl_b32 s3, s6, 5\n s_add_u32 s3, s3, {YS}\n v_add_u32 v9, s3, v9")
    a("s_waitcnt lgkmcnt(0)")
    for T in range(8):
        A = ACC + 4 * T
        unpack(a, 81 + 2 * T, 11, 10)
        unpack(a, 80 + 2 * T, 13, 12)
        for r in range(4):
            a(f"v_fmac_f32 v{A+r}, s36, v{10+r}")
        a(f"v_cvt_pk_bf16_f32 v{A}, v{A}, v{A+1}\n v_cvt_pk_bf16_f32 v{A+1}, v{A+2}, v{A+3}")
        a(f"ds_write_b64 v9, v[{A}:{A+1}] offset:{T*2048}")
    a(f"v_lshlrev_b32 v8, 4, v0\n v_add_u32 v8, {YS}, v8")
    a("v_lshrrev_b32 v9, 3, v0\n v_lshlrev_b32 v9, 14, v9\n v_and_b32 v6, 7, v0\n v_lshl_add_u32 v9, v6, 4, v9")
    a(f"s_lshl_b32 s39, s7, 7\n s_add_u32 s39, s39, {OFF_YT}")
    a("s_waitcnt lgkmcnt(0)\n s_barrier")
    for i in range(4):
        a(f"ds_read_b128 v[{12+4*i}:{15+4*i}], v8 offset:{i*4096}")
    for i in range(4):
        a(f"s_waitcnt lgkmcnt({3-i})")
        a(f"buffer_store_dwordx4 v[{12+4*i}:{15+4*i}], v9, {WS}, s39 offen sc1")
        a(f"s_add_u32 s39, s39, {32*16384}")
    a("s_waitcnt vmcnt(0)\n s_barrier")
    trace(a, o, 6, 1, 4)
    sk = a.label("Lsk")
    a(f"s_cmp_lg_u32 s6, 0\n s_cbranch_scc1 {sk}")
    count_arrive(a, 6, 7, 128)
    a(f"{sk}:")
    rows = []
    for r in range(4):
        b = 120 + 32 * r
        rows.append(dict(x=b, t=b + 8, s=b + 16, yp=b + 20, xo=b + 24, ho=b + 28, y=40 + 8 * r))
        for i in range(4):
            unpack(a, XP + 4 * r + i, b + 2 * i, b + 2 * i + 1)
    layernorm(a, rows, None)
    if not o.get("staged"):
        wait_counter(a, 6, 5, 0, 32)
    a("v_and_b32 v7, 48, v2")
    wait_counter(a, 6, 7, 128, 32)
    trace(a, o, 6, 1, 5)
    a(f"s_lshl_b32 s35, s7, 14\n s_add_u32 s35, s35, {OFF_YT}\n s_lshl_b32 s3, s6, 12\n s_add_u32 s35, s35, s3\n s_add_u32 s37, s3, {YS}")
    a("s_mov_b32 m0, s37")
    for i in range(4):
        a(f"buffer_load_dwordx4 v2, {WS}, s35 offen offset:{i*1024} sc1 lds")
    a("v_lshl_add_u32 v6, v1, 3, s37")
    a(f"v_mul_u32_u24 v7, {RS}, v3\n v_lshl_add_u32 v7, v4, 3, v7\n s_lshl_b32 s3, s6, 8\n v_add_u32 v7, s3, v7")
    a("s_waitcnt vmcnt(0)")
    for i in range(8):
        a(f"ds_read_b64_tr_b16 v[{10+2*i}:{11+2*i}], v6 offset:{i*512}")
    for i in range(8):
        a(f"s_waitcnt lgkmcnt(7)")
        a(f"ds_write_b64 v7, v[{10+2*i}:{11+2*i}] offset:{YR+32*i}")
    a("s_waitcnt lgkmcnt(0)\n s_barrier")
    a(f"s_mul_i32 s3, s6, {4*RS}\n v_add_u32 v7, s3, v2")
    for r in range(4):
        a(f"ds_read_b128 v[{rows[r]['yp']}:{rows[r]['yp']+3}], v7 offset:{YR+r*RS}")
    a("s_waitcnt lgkmcnt(0)")
    a(f"s_add_u32 s35, s47, {OFF_Y}")
    for r in range(4):
        a(f"buffer_store_dwordx4 v[{rows[r]['yp']}:{rows[r]['yp']+3}], v2, {WS}, s35 offen offset:{r*1024} sc1")
        for i in range(4):
            unpack(a, rows[r]['yp'] + i, rows[r]['y'] + 2 * i, rows[r]['y'] + 2 * i + 1)
    rowfin(a, rows, first=False)
    a(f"s_add_u32 s35, s47, {OFF_X}\n s_add_u32 s36, s47, {OFF_H}")
    for r in range(4):
        a(f"s_add_u32 s3, s46, {r}\n s_and_b32 s3, s3, 15\n s_lshl_b32 s3, s3, 4")
        a(f"v_xor_b32 v{10+r}, s3, v2")
        a(f"buffer_store_dwordx4 v[{rows[r]['ho']}:{rows[r]['ho']+3}], v{10+r}, {WS}, s36 offen offset:{r*1024} sc1")
        a(f"buffer_store_dwordx4 v[{rows[r]['xo']}:{rows[r]['xo']+3}], v2, {WS}, s35 offen offset:{r*1024} sc1")
    a(f"s_lshl_b32 s35, s46, 2\n s_add_u32 s35, s35, {FH}")
    for r in range(16, 20):
        a(f"v_mov_b32 v{r}, 1")
    a("s_waitcnt vmcnt(0)")
    a(f"buffer_store_dwordx4 v[16:19], off, {WS}, s35 sc1")
    trace(a, o, 6, 1, 6)
    a("s_barrier")


def build(o):
    from roles import role_qkv, role_chain, role_ao
    roles = o["roles"]
    a = Asm()
    a("s_cmp_ge_u32 s2, 256\n s_cbranch_scc1 L_end")
    a("s_load_dwordx16 s[64:79], s[0:1], 0\n s_load_dwordx16 s[80:95], s[0:1], 64")
    a("s_and_b32 s4, s2, 7\n s_lshr_b32 s5, s2, 3")
    a("v_lshrrev_b32 v1, 6, v0\n s_nop 0\n v_readfirstlane_b32 s6, v1")
    a(f"s_mov_b32 {TMO}, {o.get('tmo', 1 << 20)}")
    a("s_waitcnt lgkmcnt(0)")
    a.srd(8, PTR(15), WS_BYTES)
    a.srd(28, PTR(14), 256)
    if o.get("trace"):
        a(f"s_lshl_b32 s99, s2, 2\n s_add_u32 s99, s99, s6\n s_lshl_b32 s99, s99, 12\n s_add_u32 s99, s99, {OFF_TR}")
        a("v_and_b32 v1, 63, v0")
        trace(a, o, 2, 1, 1)
    if "pre" in roles:
        a("s_mov_b32 s7, 0")
        for t, slot in PRE_SLOT.items():
            a(f"s_cmp_eq_u32 s4, {t}\n s_cbranch_scc1 L_pre")
            a("s_add_u32 s7, s7, 32")
        a("s_branch L_main")
        a("L_pre:")
        a("s_add_u32 s7, s7, s5")
        role_pre(a, o)
    a("L_main:")
    a("s_lshr_b32 s7, s4, 2")
    for l in (0, 1):
        if f"chain{l}" in roles:
            a(f"s_cmp_eq_u32 s4, {T_CHAIN[l]}\n s_cbranch_scc1 L_chain")
        if f"ao{l}" in roles:
            a(f"s_cmp_eq_u32 s4, {T_AO[l]}\n s_cbranch_scc1 L_ao")
        if f"qkv{l}" in roles:
            for t in T_QKV[l]:
                a(f"s_cmp_eq_u32 s4, {t}\n s_cbranch_scc1 L_qkv")
    a("L_end:\n s_endpgm")
    if roles & {"qkv0", "qkv1"}:
        a("L_qkv:")
        role_qkv(a, o)
        a("s_endpgm")
    if roles & {"ao0", "ao1"}:
        a("L_ao:")
        role_ao(a, o)
        a("s_endpgm")
    if roles & {"chain0", "chain1"}:
        a("L_chain:")
        role_chain(a, o)
        a("s_endpgm")
    body = hazard.fix(a.text())
    errs = hazard.check(body)
    if errs:
        raise SystemExit("hazards:\n" + "\n".join(errs))
    name = KNAME + "_kernel"
    hdr = open("header.txt").read()
    hdr += "; @launch grid=(256,1,1) block=(256,1,1) lds=163840\n.amdgcn_target \"amdgcn-amd-amdhsa--gfx950\"\n"
    return hdr + kernel_header(name) + body + "\n" + kernel_desc(name, 512, 256), name


ALL = {"pre", "qkv0", "qkv1", "chain0", "chain1", "ao0", "ao1"}

if __name__ == "__main__":
    txt, name = build(dict(roles=ALL))
    open(f"cdna_kernels/{KNAME}.s", "w").write(txt)
    print("written", len(txt), "bytes")
```

```python
S, D, H, DH, M, SEG, NS = 2048, 512, 32, 128, 8, 32, 64
WS_BYTES = 268435456
FLAG_BYTES = 0xA0000
FB = 0x0
FH = 0x80000
FP = 0x84000
FTEAM = 0x8C000
OFF_YT = 0x9400000
OFF_KVR = 0x9000000
OFF_Y = 0x300000
OFF_X = 0x500000
OFF_H = 0x900000
OFF_M = 0xD00000
OFF_P1 = 0xF00000
OFF_KM = 0x1000000
OFF_P2 = 0x2000000
OFF_QKV = 0x3000000
QKV_LAYER = 0x3000000
KNAME = "interleave_layers__ssm_conv_h3__memory_aug_recurrent_mem_tr__prompt"
T_CHAIN = (0, 4)
T_AO = (1, 5)
T_QKV = ((2, 3), (6, 7))
FPA = 0x8C400
FPB = 0x8C800
FD = 0x90000
OFF_TR = 0xA000000
```

```python
from asmlib import *
from layout import *
from gen import PTR, WS, DBG, TMO, wait_flags, wait_counter, count_arrive, poll_tail, unpack, rowfin, allreduce, trace


def stage_weights(a, srds, trfn, vsrc, nslot=8, perm=False, tail=None, head="s5", extra=None, hook=None):
    a(f"v_bfe_u32 v{vsrc}, v0, 2, 2")
    if perm:
        a(f"v_and_b32 v{vsrc+1}, 2, v{vsrc}\n v_add_u32 v{vsrc}, v{vsrc}, v{vsrc+1}")
    a(f"v_lshlrev_b32 v{vsrc}, 13, v{vsrc}")
    a(f"v_bfe_u32 v{vsrc+1}, v0, 4, 2\n v_lshl_add_u32 v{vsrc}, v{vsrc+1}, 6, v{vsrc}")
    a(f"v_and_b32 v{vsrc+1}, 3, v0\n v_lshl_add_u32 v{vsrc}, v{vsrc+1}, 4, v{vsrc}")
    a(f"s_lshl_b32 s40, {head}, 8\n v_add_u32 v{vsrc}, s40, v{vsrc}")
    if perm:
        a("s_and_b32 s40, s6, 1\n s_lshl_b32 s40, s40, 5\n s_and_b32 s41, s6, 2\n s_lshl_b32 s41, s41, 6\n s_add_u32 s40, s40, s41\n s_lshl_b32 s40, s40, 13")
    else:
        a("s_lshl_b32 s40, s6, 17")
    a("s_lshl_b32 s41, s6, 12")
    chunks = [(m, c) for m in range(len(srds)) for c in range(8)]

    def issue(j):
        m, c = chunks[j]
        if extra and c == 0 and m == 1:
            a(f"s_add_u32 s40, s40, {extra}")
        for b in range(4):
            a(f"s_add_u32 m0, s41, {(j % nslot) * 16384 + b * 1024}")
            row = 256 * (c & 1) + 64 * (c >> 2) + 2 * ((c >> 1) & 1) + 8 * b if perm else 64 * c + 4 * b
            a(f"s_add_u32 s42, s40, {row * 8192}")
            a(f"buffer_load_dwordx4 v{vsrc}, {srds[m]}, s42 offen lds")

    ops = []
    issued = 0
    for j in range(min(nslot, len(chunks))):
        issue(j); ops.extend([j] * 4); issued += 1
    for j, (m, c) in enumerate(chunks):
        last = max(i for i, x in enumerate(ops) if x == j)
        a(f"s_waitcnt vmcnt({len(ops) - 1 - last})\n s_barrier")
        if hook:
            ops.extend([None] * hook(j))
        if j >= 1 and issued < len(chunks):
            issue(issued); ops.extend([issued] * 4); issued += 1
        elif j >= 1 and tail:
            ops.extend([None] * tail(j))
        trfn(m, c, (j % nslot) * 16384)
        a("s_waitcnt lgkmcnt(0)")
    a("s_barrier")


def flag_store(a, vone, vz, soff, imm=0):
    a("s_mov_b64 exec, 1")
    a(f"buffer_store_dword v{vone}, v{vz}, {WS}, {soff} offen offset:{imm} sc1")
    a("s_mov_b64 exec, -1")


def role_qkv(a, o):
    VL16, VZ, VONE, VF, VFO = 1, 2, 3, 4, 5
    HF, NB, PK, VA = 64, 4, 88, 104
    a("s_and_b32 s56, s4, 1\n s_lshl_b32 s57, s5, s56\n s_lshl_b32 s58, s56, 8")
    a("s_cmp_lg_u32 s56, 0")
    a(f"s_cselect_b64 s[12:13], s[{PTR(8)}:{PTR(8)+1}], s[{PTR(9)}:{PTR(9)+1}]\n s_cselect_b64 s[16:17], s[{PTR(8)}:{PTR(8)+1}], s[{PTR(10)}:{PTR(10)+1}]")
    a.srd(12, 12, D * H * DH * 2)
    a.srd(16, 16, D * H * DH * 2)
    WREG = lambda m, ks: f"a[{128*m+4*ks}:{128*m+4*ks+3}]"
    a(f"v_and_b32 v{VL16}, 63, v0\n v_lshlrev_b32 v{VL16}, 4, v{VL16}")
    a(f"v_mov_b32 v{VZ}, 0\n v_mov_b32 v{VONE}, 1")
    a(f"v_and_b32 v{VFO}, 31, v0\n v_lshlrev_b32 v{VFO}, 2, v{VFO}")
    a("v_bfe_u32 v8, v0, 5, 1\n v_lshlrev_b32 v8, 11, v8")
    a("v_bfe_u32 v9, v0, 2, 2\n v_lshl_add_u32 v8, v9, 6, v8")
    a("v_bfe_u32 v9, v0, 4, 1\n v_lshl_add_u32 v8, v9, 5, v8")
    a("v_and_b32 v9, 3, v0\n v_lshl_add_u32 v8, v9, 3, v8")
    a("s_lshl_b32 s3, s6, 8\n v_add_u32 v8, s3, v8\n v_add_u32 v9, 0x10000, v8")

    def tr(m, c, base):
        for kk in range(4):
            for u in range(2):
                r = 128 * m + 4 * (4 * c + kk) + 2 * u
                off = base + kk * 4096 + u * 1024
                a(f"ds_read_b64_tr_b16 a[{r}:{r+1}], v{8 + (off >> 16)} offset:{off & 0xffff}")

    stage_weights(a, ["s[12:15]", "s[16:19]"], tr, 10, head="s57", extra="s58")
    if not o.get("staged"):
        wait_counter(a, VF, VZ, 0, 32)
    a("v_and_b32 v8, 31, v0\n v_bfe_u32 v9, v0, 5, 1\n v_and_b32 v10, 15, v0\n v_xor_b32 v9, v9, v10")
    a("v_lshlrev_b32 v9, 4, v9\n v_lshl_add_u32 v8, v8, 10, v9")
    for j in range(8):
        a(f"v_xor_b32 v{VA+j}, {j << 5}, v8")
    a("v_mov_b32 v6, 0x3e0293ee\n v_and_b32 v7, 1, v0\n v_lshlrev_b32 v7, 7, v7\n v_mul_u32_u24 v7, s56, v7")
    a(f"s_lshl_b32 s3, s7, 6\n s_mov_b32 s44, 0")
    a(f"s_lshl_b32 s45, s3, 7\n s_add_u32 s45, s45, {FH}")
    a(f"s_lshl_b32 s46, s3, 15\n s_add_u32 s46, s46, {OFF_H}\n s_lshl_b32 s53, s6, 13\n s_add_u32 s46, s46, s53")
    a(f"s_lshl_b32 s3, s3, 5\n s_add_u32 s3, s3, s57")
    a(f"s_lshl_b32 s50, s3, 7\n s_lshl_b32 s47, s56, 2\n s_add_u32 s50, s50, s47")
    a(f"s_mul_i32 s47, s3, 24576\n s_add_u32 s47, s47, {OFF_QKV}\n s_lshl_b32 s3, s6, 11\n s_add_u32 s47, s47, s3")
    a("s_lshl_b32 s3, s56, 14\n s_add_u32 s47, s47, s3\n s_add_u32 s48, s47, 8192\n s_add_u32 s48, s48, s3")

    ACC = ((16, 32), (112, 128))

    def dma_list(buf):
        L = []
        for hh in range(2):
            for i in range(4):
                pre = (f"s_add_u32 m0, s53, {buf*32768}\n s_add_u32 s3, s46, 4096\n" if hh == 0 else f"s_add_u32 m0, s53, {buf*32768+4096}\n s_add_u32 s45, s45, 128\n") if i == 0 else ""
                L.append(pre + f"buffer_load_dwordx4 v{VL16}, {WS}, {('s46', 's3')[hh]} offen offset:{i*1024} sc1 lds")
        L[-1] += "\n s_add_u32 s46, s46, 32768"
        return L

    def epi(q, acc2):
        G = []
        for mi, acc in enumerate(acc2):
            isv = mi == 1 and not q
            for hh in range(2):
                g = []
                for i in range(4 * hh, 4 * hh + 4):
                    if isv:
                        r0 = acc + 4 * (i >> 2) + 8 * ((i >> 1) & 1) + 2 * (i & 1); r1 = r0 + 1
                    else:
                        r0 = acc + 8 * (i >> 2) + (i & 3); r1 = r0 + 4
                    if q:
                        g += [f"v_mul_f32 v{r0}, v6, v{r0}", f"v_mul_f32 v{r1}, v6, v{r1}"]
                    g.append(f"v_cvt_pk_bf16_f32 v{PK+8*mi+i}, v{r0}, v{r1}")
                b = PK + 8 * mi + 4 * hh
                g.append(f"buffer_store_dwordx4 v[{b}:{b+3}], v{VL16}, {WS}, {('s60', 's61')[mi]} offen offset:{hh*1024} sc1")
                G.append(g)
        return G

    ARR = lambda p: f"s_mov_b64 exec, s[54:55]\n ds_add_rtn_u32 v11, v12, v{VONE} offset:{4*p}\n s_mov_b64 exec, -1"
    FL = f"v_readfirstlane_b32 s3, v11\n s_and_b32 s3, s3, 3\n s_cmp_eq_u32 s3, 3\n s_cselect_b32 s3, s62, s63\n buffer_store_dword v{VONE}, v7, {WS}, s3 offen sc1"
    SAMPLE = f"buffer_load_dword v{VF}, v{VFO}, {WS}, s45 offen sc1"
    ADV = (f"s_mov_b32 s60, s47\n s_mov_b32 s61, s48\n s_mov_b32 s62, s50\n s_mov_b64 s[54:55], 1", f"s_add_u32 s47, s47, {32*24576}\n s_add_u32 s48, s48, {32*24576}",
           f"s_add_u32 s50, s50, {32*128}\n s_add_u32 s44, s44, 1")
    hf = lambda j: f"v[{HF+4*(j%NB)}:{HF+4*(j%NB)+3}]"
    rd = lambda j, buf: a(f"ds_read_b128 {hf(j)}, v{VA+(j&7)} offset:{buf*32768+(j>>3)*256}")

    def choose(T, par):
        a(f"v_cmp_eq_u32 vcc, 0, v{VF}\n s_cmp_ge_u32 s44, 63\n s_cbranch_scc1 L_{T}{par}B\n s_cbranch_vccnz L_{T}{par}B\n s_branch L_{T}{par}A")

    trace(a, o, 10, VZ, 6)
    a(f"s_mov_b32 s63, 0x20000000\n v_mov_b32 v12, 0x10000\n v_mov_b32 v11, 0\n ds_write2_b32 v12, v{VZ}, v{VZ} offset1:1\n s_waitcnt lgkmcnt(0)")
    a(f"v_mov_b32 v{VF}, 0\n s_cmp_lg_u32 s56, 0\n s_cbranch_scc1 L_qq1W\n s_branch L_kv1W")

    def mm(q, par, j, t):
        A = ACC[par][t]
        ops = f"{WREG(t,j)}, {hf(j)}" if (q or t == 0) else f"{hf(j)}, {WREG(t,j)}"
        a(f"v_mfma_f32_32x32x16_bf16 v[{A}:{A+15}], {ops}, " + (f"v[{A}:{A+15}]" if j else "0"))

    def one_pass(T, q, par, var):
        a(f"L_{T}{par}{var}:")
        trace(a, o, 10, VZ, 7)
        fill = {}
        g = 4
        for grp in epi(q, ACC[1 - par]):
            per = 4
            for k in range(0, len(grp), per):
                fill[g] = grp[k:k + per]; g += 1
        if var == "A":
            for x in dma_list(1 - par):
                fill[g] = [x]; g += 1
            fill[g] = [SAMPLE]
            fp = o.get("flpos", 40)
            fill[fp + 1] = ["s_waitcnt vmcnt(9)", ARR(1 - par)]
            fill[fp + 8] = [FL]
        else:
            fill[g] = [SAMPLE, "s_mov_b32 s52, 0"]
            fill[46] = [FL]
        for k in range(3):
            fill[50 + 2 * k] = [ADV[k]]
        for j in range(32):
            if j == 29:
                if var == "B":
                    a(f"s_cmp_lg_u32 s52, 1\n s_cbranch_scc1 L_{T}{par}T")
                a(f"s_waitcnt vmcnt({1 if var == 'A' else 0}) lgkmcnt(0)\n s_barrier")
            if j + NB - 1 < 32:
                rd(j + NB - 1, par)
                a(f"s_waitcnt lgkmcnt({NB-1})")
            else:
                rd(j + NB - 1 - 32, 1 - par)
            for t in range(2):
                mm(q, par, j, t)
                for x in fill.get(2 * j + t, []):
                    a(x)
            if var == "B" and j in (19, 25):
                sk = a.label("Lq")
                if j == 19:
                    a("s_waitcnt vmcnt(0)")
                    a(ARR(1 - par))
                else:
                    a(f"s_cmp_lg_u32 s52, 0\n s_cbranch_scc1 {sk}x\n s_waitcnt vmcnt(1)")
                a(f"v_cmp_eq_u32 vcc, 0, v{VF}\n s_cmp_ge_u32 s44, 63\n s_cbranch_scc1 {sk}\n s_cbranch_vccnz {sk}")
                for x in dma_list(1 - par):
                    a(x)
                a(f"s_mov_b32 s52, {1 if j == 19 or not o.get('late', 1) else 2}")
                a(f"{sk}:")
                a(SAMPLE)
                a(f"{sk}x:")
        choose(T, 1 - par)
        if var == "B":
            a(f"L_{T}{par}T:")
            a("s_waitcnt lgkmcnt(0)")
            a(SAMPLE)
            for j in range(29, 32):
                for t in range(2):
                    mm(q, par, j, t)
            for grp in epi(q, ACC[par]):
                for x in grp:
                    a(x)
            a(f"s_cmp_eq_u32 s52, 2\n s_cbranch_scc0 L_{T}{par}X\n s_waitcnt vmcnt(0)\n s_branch L_{T}{par}Y")
            a(f"L_{T}{par}X:")
            a(f"s_waitcnt vmcnt(4)\n v_cmp_eq_u32 vcc, 0, v{VF}\n s_cmp_ge_u32 s44, 64\n s_cbranch_scc1 L_{T}{par}U\n s_cbranch_vccnz L_{T}{par}U")
            for x in dma_list(1 - par):
                a(x)
            a(SAMPLE)
            a("s_waitcnt vmcnt(9)")
            a(f"L_{T}{par}Y:")
            a(ARR(par))
            a("s_waitcnt lgkmcnt(0)")
            a(FL)
            a("s_mov_b32 s60, s63\n s_mov_b32 s61, s63\n s_mov_b32 s62, s63\n s_mov_b64 s[54:55], 0")
            a(f"s_waitcnt vmcnt(1)\n s_branch L_{T}{par}V")
            a(f"L_{T}{par}U:")
            a(SAMPLE)
            a("s_waitcnt vmcnt(0)")
            a(ARR(par))
            a("s_waitcnt lgkmcnt(0)")
            a(FL)
            a("s_cmp_ge_u32 s44, 64\n s_cbranch_scc1 L_end")
            a(f"L_{T}{par}W:")
            a("s_mov_b32 s60, s63\n s_mov_b32 s61, s63\n s_mov_b32 s62, s63\n s_mov_b64 s[54:55], 0")
            s2 = a.label("Lq")
            a(f"v_cmp_eq_u32 vcc, 0, v{VF}\n s_cbranch_vccz {s2}")
            wait_flags(a, VF, VFO, "s45", sleep=o.get("slq", 1))
            a(f"{s2}:")
            for x in dma_list(1 - par):
                a(x)
            a(SAMPLE)
            a("s_waitcnt vmcnt(0)")
            a(f"L_{T}{par}V:")
            a("s_barrier")
            for j in range(NB - 1):
                rd(j, 1 - par)
            choose(T, 1 - par)

    for T, q in (("kv", False), ("qq", True)):
        for par in range(2):
            for var in "AB":
                one_pass(T, q, par, var)


def team_publish(a, vtmp, vz):
    sk = a.label("Ltp")
    a(f"s_cmp_lg_u32 s6, 0\n s_cbranch_scc1 {sk}")
    a("s_getreg_b32 s3, hwreg(HW_REG_XCC_ID)\n s_and_b32 s3, s3, 15\n s_add_u32 s3, s3, 1")
    a(f"v_mov_b32 v{vtmp}, s3")
    a(f"s_lshl_b32 s3, s4, 5\n s_add_u32 s3, s3, s5\n s_lshl_b32 s3, s3, 2\n s_add_u32 s3, s3, {FTEAM}")
    flag_store(a, vtmp, vz, "s3")
    a(f"{sk}:")


def team_wait(a, vtmp, voff, mixed_label, n=32):
    a(f"v_and_b32 v{voff}, {n-1}, v0\n v_lshlrev_b32 v{voff}, 2, v{voff}")
    a(f"s_lshl_b32 s40, s4, 7\n s_add_u32 s40, s40, {FTEAM}\n s_and_b32 s3, s5, {32-n}\n s_lshl_b32 s3, s3, 2\n s_add_u32 s40, s40, s3")
    wait_flags(a, vtmp, voff, "s40")
    a(f"v_readfirstlane_b32 s3, v{vtmp}")
    a(f"v_cmp_ne_u32 vcc, s3, v{vtmp}")
    a(f"s_cbranch_vccnz {mixed_label}")


def nops(a, cyc):
    n = cyc // 4
    while n > 0:
        k = min(n, 16)
        a(f"s_nop {k-1}")
        n -= k


def role_chain(a, o):
    MX, OX, KX, QX = 0x20000, 0x22000, 0x24000, 0x26000
    VL16, VIDX, VMX, VQW, VQR, VKX, VVX, VPF, VWO, VP1S, VKMS, VMS, VOR, VL8, VF = range(1, 16)
    RM, RK, AQ, AK, AV, QF, VX = 16, 48, 80, 88, 96, 104, 120
    SENT = 0xff81ff81
    prof = o.get("prof")
    CLK = "s_memrealtime" if o.get("rt") else "s_memtime"
    a.srd(12, PTR(8), D * H * DH * 2)
    a.srd(16, PTR(9), D * H * DH * 2)
    a.srd(20, PTR(10), D * H * DH * 2)
    a.srd(24, PTR(11), D * H * DH * 2)
    a.srd(32, PTR(7), M * D * 2)
    a(f"v_and_b32 v{VL16}, 63, v0\n v_lshlrev_b32 v{VL16}, 4, v{VL16}")
    a("v_and_b32 v20, 15, v0\n v_bfe_u32 v21, v0, 4, 2\n v_mov_b32 v22, 0")
    a(f"s_mov_b32 s62, {SENT:#x}")
    for r in range(24, 28):
        a(f"v_mov_b32 v{r}, s62")
    a(f"s_lshl_b32 s46, s7, 20\n s_add_u32 s46, s46, {OFF_M}")
    a(f"s_lshl_b32 s47, s7, 19\n s_add_u32 s47, s47, {OFF_P1}")
    a("s_lshl_b32 s43, s6, 5\n s_add_u32 s43, s43, s5")
    a("s_lshl_b32 s52, s43, 11\n s_add_u32 s52, s52, s47")
    for r in range(16, 20):
        a(f"v_mov_b32 v{r}, 0")
    for i in range(2):
        a(f"buffer_store_dwordx4 v[16:19], v{VL16}, {WS}, s52 offen offset:{i*1024} sc1")
    a("v_lshlrev_b32 v23, 13, v21\n v_lshl_add_u32 v23, v20, 4, v23")
    a("s_lshl_b32 s3, s6, 17\n s_add_u32 s3, s3, s46\n s_lshl_b32 s40, s5, 8\n s_add_u32 s3, s3, s40\n s_add_u32 s3, s3, 8192")
    for i in range(4):
        a(f"buffer_store_dwordx4 v[24:27], v23, {WS}, s3 offen sc1")
        a("s_add_u32 s3, s3, 0x8000")
    a(f"v_lshlrev_b32 v{VMS}, 4, v21\n v_and_b32 v28, 3, v20\n v_lshl_add_u32 v{VMS}, v28, 2, v{VMS}")
    a(f"s_lshl_b32 s3, s43, 6\n v_add_u32 v{VMS}, s3, v{VMS}")
    a("v_and_b32 v23, 1, v21\n v_lshlrev_b32 v23, 10, v23\n v_lshl_add_u32 v23, v28, 4, v23\n v_and_b32 v29, 2, v21\n v_lshl_add_u32 v23, v29, 2, v23")
    a("s_and_b32 s3, s5, 3\n s_lshl_b32 s3, s3, 11\n s_lshr_b32 s40, s5, 3\n s_lshl_b32 s40, s40, 8\n s_add_u32 s3, s3, s40")
    a("s_and_b32 s40, s5, 4\n s_lshl_b32 s40, s40, 4\n s_add_u32 s3, s3, s40\n s_and_b32 s40, s6, 2\n s_lshl_b32 s40, s40, 6\n s_add_u32 s3, s3, s40")
    a("s_and_b32 s40, s6, 1\n s_lshl_b32 s40, s40, 2\n s_add_u32 s3, s3, s40")
    a("buffer_load_dword v28, v23, s[32:35], s3 offen")
    a("v_lshlrev_b32 v8, 11, v21\n v_bfe_u32 v9, v0, 2, 2\n v_lshl_add_u32 v8, v9, 6, v8")
    a("s_lshl_b32 s3, s6, 8\n v_add_u32 v8, s3, v8")
    a("v_and_b32 v9, 1, v0\n v_lshl_add_u32 v6, v9, 3, v8\n v_and_b32 v9, 2, v0\n v_lshl_add_u32 v6, v9, 4, v6\n v_add_u32 v7, 0x10000, v6")
    a("v_and_b32 v9, 3, v0\n v_lshl_add_u32 v8, v9, 3, v8\n v_add_u32 v9, 0x10000, v8")

    def wreg(m, t, j, lo=0, n=8):
        b = (t * 8 + j) * 8 + lo
        return f"a[{128*m+b}:{128*m+b+n-1}]" if m < 2 else f"v[{128+b}:{128+b+n-1}]"

    def tr(m, c, base):
        L = [a.label("Lt") for _ in range(5)]
        a(f"s_cmp_eq_u32 s6, 1\n s_cbranch_scc1 {L[1]}\n s_cmp_eq_u32 s6, 2\n s_cbranch_scc1 {L[2]}\n s_cmp_eq_u32 s6, 3\n s_cbranch_scc1 {L[3]}")
        for w in range(4):
            if w:
                a(f"{L[w]}:")
            for t in range(2):
                for q in range(4):
                    off = base + (q >> 1) * 8192 + (q & 1) * 1024 + t * (32 if m == 2 else 16)
                    a(f"ds_read_b64_tr_b16 {wreg(m, t, c ^ (2 * w), 2 * q, 2)}, v{(8 if m == 2 else 6) + (off >> 16)} offset:{off & 0xffff}")
            if w < 3:
                a(f"s_branch {L[4]}")
        a(f"{L[4]}:")

    a("v_and_b32 v5, 1, v21\n v_lshlrev_b32 v5, 14, v5\n v_lshrrev_b32 v10, 1, v21\n v_lshl_add_u32 v5, v10, 12, v5")
    a("v_lshl_add_u32 v5, v20, 3, v5\n s_lshl_b32 s3, s6, 8\n v_add_u32 v5, s3, v5")
    a("s_mov_b32 s60, 0x05040100\n s_mov_b32 s61, 0x07060302\n s_lshl_b32 s55, s5, 17")
    groups = [(jc, i) for jc in range(4) for i in range(2)]
    RES = {(1, 2): 0, (1, 3): 64, (2, 2): 8, (2, 3): 72}
    NL = 5
    LD = lambda gi: 48 + 16 * (gi % NL)
    nxt = [0]

    def wo_issue(_=None):
        gi = nxt[0]
        if gi >= NL and _ is not None:
            return 0
        nxt[0] += 1
        jc, i = groups[gi]
        a(f"s_xor_b32 s3, s6, {jc}\n s_lshl_b32 s3, s3, 15\n s_add_u32 s3, s3, s55\n s_add_u32 s3, s3, {i*128}\n s_add_u32 s42, s3, 8192")
        for u in range(2):
            for v in range(2):
                for e in range(2):
                    r = LD(gi) + 8 * u + 4 * v + 2 * e
                    a(f"buffer_load_dwordx2 v[{r}:{r+1}], v5, s[24:27], {'s42' if u else 's3'} offen offset:{(2*v+e)*1024}")
        return 8

    def hook(j):
        if j == 3:
            a("v_or_b32 v29, 64, v28\n v_cmp_eq_u32 vcc, s62, v28\n v_cndmask_b32 v28, v28, v29, vcc")
            a(f"buffer_store_dword v28, v{VMS}, {WS}, s46 offen sc1")
            a(f"buffer_load_dword v30, off, {DBG}, 0 sc1")
            return 2
        if j == 11:
            if not o.get("staged"):
                sk = a.label("Lsk")
                a(f"v_cmp_gt_u32 vcc, 32, v30\n s_cbranch_vccz {sk}")
                wait_counter(a, 23, 22, 0, 32)
                a(f"{sk}:")
            team_publish(a, 23, 22)
        return 0

    stage_weights(a, ["s[12:15]", "s[16:19]", "s[20:23]"], tr, 10, perm=True, tail=wo_issue, hook=hook)
    while nxt[0] < NL:
        wo_issue()
    trace(a, o, 23, VL16, 6)
    a(f"s_lshl_b32 s3, s6, 15\n v_add_u32 v{VWO}, s3, v{VL16}")
    for gi, (jc, i) in enumerate(groups):
        a(f"s_waitcnt vmcnt({8*(nxt[0]-gi-1)})")
        for sel in range(2):
            for u in range(2):
                for v in range(2):
                    for z in range(2):
                        r = LD(gi) + 8 * u + 4 * v + sel
                        a(f"v_perm_b32 v{32+8*sel+4*u+2*v+z}, v{r+2}, v{r}, s{60+z}")
        if nxt[0] < 8:
            wo_issue()
        for sel in range(2):
            res = RES.get((jc, 2 * i + sel))
            for hh in range(2):
                src = f"v[{32+8*sel+4*hh}:{35+8*sel+4*hh}]" if res is None else f"a[{res+4*hh}:{res+4*hh+3}]"
                a(f"ds_write_b128 v{VWO}, {src} offset:{(jc*4+2*i+sel)*2048+hh*1024}")
        a("s_waitcnt lgkmcnt(0)")
        for sel in range(2):
            res = RES.get((jc, 2 * i + sel))
            if res is not None:
                for r in range(8):
                    a(f"v_accvgpr_write_b32 a{res+r}, v{32+8*sel+r}")
    a(f"v_mov_b32 v{VIDX}, 0x4444\n v_bfe_u32 v23, v20, 1, 1\n v_mul_u32_u24 v23, 0xaaaa, v23\n v_or_b32 v{VIDX}, v{VIDX}, v23")
    a(f"s_lshl_b32 s3, s6, 11\n s_add_u32 s3, s3, {MX}\n v_add_u32 v{VMX}, s3, v{VL16}")
    a(f"v_mul_u32_u24 v23, 1088, v21\n v_lshl_add_u32 v23, v20, 2, v23\n s_lshl_b32 s3, s6, 6\n s_add_u32 s3, s3, {QX}\n v_add_u32 v{VQW}, s3, v23")
    a(f"v_mul_u32_u24 v23, 272, v20\n v_lshl_add_u32 v23, v21, 4, v23\n v_add_u32 v{VQR}, {QX}, v23")
    a(f"v_and_b32 v23, 1, v21\n v_lshlrev_b32 v23, 5, v23\n v_or_b32 v{VOR}, 32, v{VMX}\n v_xor_b32 v{VOR}, v{VOR}, v23\n v_lshrrev_b32 v{VL8}, 1, v{VL16}")
    a(f"v_lshlrev_b32 v23, 9, v21\n v_lshl_add_u32 v{VVX}, v20, 4, v23\n v_add_u32 v{VKX}, {KX}, v{VVX}")
    a(f"v_lshrrev_b32 v23, 3, v20\n v_lshl_add_u32 v23, v23, 2, v21\n v_lshlrev_b32 v23, 11, v23\n v_and_b32 v25, 7, v20\n v_lshl_add_u32 v23, v25, 3, v23")
    a(f"s_lshl_b32 s3, s6, 14\n s_lshl_b32 s40, s5, 6\n s_add_u32 s3, s3, s40\n v_add_u32 v{VP1S}, s3, v23")
    a(f"v_and_b32 v23, 12, v20\n v_bfe_u32 v25, v20, 1, 1\n v_add_u32 v23, v23, v25\n v_mul_u32_u24 v23, 272, v23\n v_lshl_add_u32 v23, v21, 4, v23")
    a(f"v_and_b32 v25, 1, v20\n v_lshl_add_u32 v23, v25, 3, v23\n s_lshl_b32 s3, s6, 6\n s_add_u32 s3, s3, {QX}\n v_add_u32 v{VKMS}, s3, v23")
    a(f"v_lshlrev_b32 v{VPF}, 7, v20\n v_lshl_add_u32 v{VPF}, v21, 13, v{VPF}")
    a(f"v_cmp_eq_u32 vcc, 2, v21\n v_cndmask_b32 v{VPF}, v{VPF}, v22, vcc")
    a(f"v_cmp_eq_u32 vcc, 3, v21\n v_cndmask_b32 v{VPF}, v{VPF}, v{VMS}, vcc")
    a("s_lshl_b32 s3, s7, 11\n s_add_u32 s3, s3, s5")
    a(f"s_mul_i32 s48, s3, 24576\n s_add_u32 s48, s48, {OFF_QKV}\n s_lshl_b32 s40, s6, 11\n s_add_u32 s48, s48, s40")
    a("s_lshl_b32 s49, s3, 7")
    a(f"s_lshl_b32 s50, s3, 12\n s_add_u32 s50, s50, {OFF_KM}\n s_lshl_b32 s63, s6, 9\n s_add_u32 s50, s50, s63")
    a("s_lshl_b32 s41, s6, 29\n s_add_u32 s59, s49, s41\n s_add_u32 s59, s59, 32\n s_add_u32 s51, s59, 16")
    a(f"s_add_u32 s45, s46, s40\n s_add_u32 s46, s46, {64*8192}\n s_add_u32 m0, s40, {KX}")
    a("s_mov_b32 s44, -1\n s_mov_b32 s54, 0x3e0293ee")
    a("s_mov_b32 s56, 0\n s_mov_b32 s57, 0xffff\n s_mov_b32 s36, 0\n s_mov_b32 s37, 0xffff0000")
    for d in range(4):
        m = (3 << (4 * d)) * 0x00010001
        a(f"s_mov_b32 s{64+2*d}, {m:#x}\n s_mov_b32 s{65+2*d}, {m:#x}")
    a("s_mov_b32 s72, 0x000f000f\n s_mov_b32 s73, 0x000f000f\n s_mov_b32 s74, 0xcccccccc\n s_mov_b32 s75, 0xcccccccc")
    a("s_mov_b32 s38, 0x3f803f80\n s_mov_b32 s39, 0x3f803f80\n s_add_u32 s58, s47, 0x10000\n s_add_u32 s60, s47, 0x20000\n s_add_u32 s61, s47, 0x30000")

    trace(a, o, 23, VL16, 9)
    a(f"v_mov_b32 v{VF}, 1\n s_sub_u32 s3, s46, {63*8192}")
    a(f"buffer_load_dword v26, v{VMS}, {WS}, s3 offen sc1\n buffer_load_dword v26, v{VMS}, {WS}, s46 offen sc1")
    a(f"buffer_load_dwordx4 v[28:31], v{VL16}, {WS}, s52 offen sc1\n buffer_load_dwordx4 v[28:31], v{VL16}, {WS}, s52 offen offset:1024 sc1")
    team_wait(a, 24, 25, "L_chain_mixed_pre")
    a("s_branch L_chain_pure_pre")

    def sm(acc, A, B, mod=""):
        a(f"v_smfmac_f32_16x16x64_bf16 v[{acc}:{acc+3}], v[{A}:{A+3}], {B}, v{VIDX}{mod}")

    def proj(m, t, j):
        B = f"v[{RK+16*j+8*t}:{RK+16*j+8*t+7}]" if m == 0 and j < 2 else wreg(m, t, j)
        sm((AQ, AK, AV)[m] + 4 * t, RM + 4 * j, B)

    def early():
        for j in range(2):
            for t in range(2):
                for hh in range(2):
                    r = RK + 16 * j + 8 * t + 4 * hh
                    a(f"ds_read_b128 v[{r}:{r+3}], v{VWO} offset:{(j*4+6+t)*2048+hh*1024}")

    def halves(acc):
        return [f"v_add_f32 v{acc}, v{acc}, v{acc+2}", f"v_add_f32 v{acc+1}, v{acc+1}, v{acc+3}",
                f"v_add_f32 v{acc+4}, v{acc+4}, v{acc+6}", f"v_add_f32 v{acc+5}, v{acc+5}, v{acc+7}",
                f"v_cvt_pk_bf16_f32 v{acc+2}, v{acc}, v{acc+1}", f"v_cvt_pk_bf16_f32 v{acc+3}, v{acc+4}, v{acc+5}"]

    def poll(dst, voff, soff):
        return lambda: (a(f"buffer_load_dwordx4 v[{dst}:{dst+3}], v{voff}, {WS}, {soff} offen sc1"),
                        a(f"buffer_load_dwordx4 v[{dst+4}:{dst+7}], v{voff}, {WS}, {soff} offen offset:1024 sc1"))

    def stamp(i):
        if prof and (prof >> i) & 1:
            a(f"{CLK} s[76:77]\n s_waitcnt lgkmcnt(0)\n s_sub_u32 s3, s76, s78\n s_add_u32 s{80+i}, s{80+i}, s3\n s_mov_b32 s78, s76")

    def check2(R, t0):
        a(f"v_max_u32 v{t0}, v{R}, v{R+4}\n v_cmp_eq_u32 vcc, s62, v{t0}")

    def check1(R, t0):
        a(f"v_bitop3_b32 v{t0}, v{R}, v{R+2}, s53 bitop3:0x7e\n v_bitop3_b32 v{t0+1}, v{R+4}, v{R+6}, s53 bitop3:0x7e")
        a(f"v_bitop3_b32 v{t0}, v{t0}, v{t0+1}, 1 bitop3:0xa8\n v_cmp_ne_u32 vcc, 0, v{t0}")

    def warm(n, r):
        wm = o.get("wm", 0)
        for i in range(n):
            a(f"v_mov_b32 v{r}, 0" if wm == 0 or (wm == 2 and i % 4 == 3) else "s_nop 0")

    LAND = [RM, RM + 8, RM + 16, RM + 24, RK, RK + 8, RK + 16, RK + 24, VX, QF + 8]
    WACC = [QF, QF + 4, AV, AV + 4]
    order = [(0, np_) for np_ in range(4)] + [(jc, np_) for np_ in range(4) for jc in (1, 2, 3)]
    slot_of = [0, 1, 2, 3, 4, 5, 6, 7, 8, 9, None, None, 0, None, None, 1]

    def landl(k):
        jc, np_ = order[k]
        r = LAND[slot_of[k]]
        return [f"ds_read_b128 v[{r}:{r+3}], v{VWO} offset:{(jc*4+np_)*2048}", f"ds_read_b128 v[{r+4}:{r+7}], v{VWO} offset:{(jc*4+np_)*2048+1024}"]

    def land(k):
        for x in landl(k):
            a(x)

    def wo(k):
        jc, np_ = order[k]
        B = f"a[{RES[order[k]]}:{RES[order[k]]+7}]" if order[k] in RES else f"v[{LAND[slot_of[k]]}:{LAND[slot_of[k]]+7}]"
        sm(WACC[np_], AQ + 4 * jc, B)

    def loop(mode):
        st = "" if mode == "pure" else " sc1"
        T = f"chain_{mode}"
        outl = []
        PR = (12, 14, 16, 18, 20, 22, 24, 26)
        XS = "" if o.get("x_plain") else " sc1"

        KR = [f"ds_read_b128 v[{RK+4*i}:{RK+4*i+3}], v{VKX} offset:{(i>>1)*2048+(i&1)*256}" for i in range(8)]

        def prep_b():
            a("s_add_u32 s42, s48, 8192\n s_mov_b32 s55, s48")
            a(f"s_cmp_lt_u32 s44, 62\n s_cselect_b32 s40, {0 if o.get('x_same') else 32*24576}, 0\n s_cselect_b32 s41, 4096, 0\n s_add_u32 s48, s48, s40")
            a(f"s_add_u32 s49, s49, s41\n s_add_u32 s3, s46, 8192")
            a(f"v_mov_b32 v{QF}, s48\n v_mov_b32 v{QF+8}, s49\n v_mov_b32 v{QF+9}, s3")
            a(f"v_cndmask_b32 v{QF}, v{QF}, v{QF+8}, s[56:57]\n v_cndmask_b32 v{QF}, v{QF}, v{QF+9}, s[36:37]\n v_add_u32 v{QF}, v{QF}, v{VPF}")
            for jj in (1, 2, 3):
                a(f"v_xor_b32 v{QF+jj}, {jj << 11}, v{VMX}")
            a("s_and_b32 s53, s44, 1")

        a(f"L_{T}_pre:")
        a(f"v_mov_b32 v0, 0x3f80\n v_mov_b32 v23, 0x3f800000\n s_mov_b32 s40, 0xaaaaaaaa\n s_mov_b32 s41, 0xaaaaaaaa")
        a("v_cndmask_b32 v0, v0, v23, s[40:41]")
        early()
        if prof:
            for i in range(16):
                a(f"s_mov_b32 s{80+i}, 0")
            a(f"{CLK} s[78:79]\n s_waitcnt lgkmcnt(0)")
        a(f"s_branch L_{T}\n .p2align 6")
        for _ in range(o.get("sh", 0)):
            a("s_nop 0")
        a(f"L_{T}:")
        a(f"v_cmp_eq_u32 vcc, 0, v{VF}\n s_and_b64 vcc, vcc, s[56:57]\n s_cbranch_scc1 L_{T}_kvw")
        a(f"L_{T}_kvr:")
        if o.get("pb", 0) == 0:
            prep_b()
        warm(o.get("d2", 14), QF + 4)
        poll(RM, VL16, "s45")()
        if o.get("pb", 0) == 1:
            prep_b()
        for r in range(AQ, AQ + 24, 2):
            a(f"v_mov_b64 v[{r}:{r+1}], 0")
        warm(o.get("g2", 24), QF + 4)
        poll(QF + 8, VL16, "s45")()
        warm(o.get("w2", 0), QF + 4)
        a(".p2align 5")
        warm(o.get("al", 1), QF + 4)
        a("s_waitcnt vmcnt(2) lgkmcnt(0)")
        check2(RM, QF + 4)
        a(f"s_cbranch_vccnz L_{T}_h2r")
        WR = [f"ds_write_b128 v{VMX}, v[{RM}:{RM+3}]", f"ds_write_b128 v{VMX}, v[{RM+4}:{RM+7}] offset:1024"]
        a(f"L_{T}_h2:")
        outl.append((f"L_{T}_h2r", f"L_{T}_h2", RM, QF + 8, VX, "s45", lambda R: check2(R, QF + 4), 90))
        stamp(0)
        mark = len(a.lines)
        nv = o.get("nv", 3)
        VP = [(2, t, j) for j in range(8) for t in range(2)]
        P = [(m, t, j) for m in range(2) for j in range(2) for t in range(2)]
        P = VP[:nv] + P + [(m, t, j) for m in range(2) for j in range(2, 8) for t in range(2)] + VP[nv:]
        b0 = nv + 1
        F = {0: [WR[0]], 1: [WR[1]]} if nv else {0: WR}
        put = lambda i, L: F.setdefault(i, []).extend(L)
        put(b0, ["s_waitcnt lgkmcnt(0)", "s_barrier"])
        for j in range(2, 8):
            put(b0 + j - 2, [f"ds_read_b128 v[{RM+4*j}:{RM+4*j+3}], v{QF+(j>>1)} offset:{(j&1)*1024}"])
        put(b0 + 6, [f"buffer_load_dwordx4 v{VL16}, {WS}, s55 offen sc1 lds"])
        put(b0 + 7, ["s_waitcnt lgkmcnt(4)"])
        put(b0 + 8, [f"buffer_load_dwordx4 v{VL16}, {WS}, s55 offen offset:1024 sc1 lds"])
        put(b0 + 10, [f"buffer_load_dwordx4 v[{VX}:{VX+3}], v{VVX}, {WS}, s42 offen sc1"])
        put(b0 + 11, ["s_waitcnt lgkmcnt(2)"])
        put(b0 + 12, [f"buffer_load_dwordx4 v[{VX+4}:{VX+7}], v{VVX}, {WS}, s42 offen offset:256 sc1"])
        put(b0 + 15, ["s_waitcnt lgkmcnt(0)"])
        put(b0 + 18, [f"buffer_store_dword v{VIDX}, off, {WS}, s51 sc1"])
        put(b0 + 19, [f"buffer_load_dword v{VF}, v{QF}, {WS}, 0 offen sc1"])
        put(b0 + 20, ["s_mov_b32 s51, s59"])
        put(b0 + 21, ["s_nop 0"])
        put(b0 + 22, ["s_add_u32 s59, s59, 4096"])
        Eq = [f"v_add_f32 v{AQ+r}, v{AQ+r}, v{AQ+r+2}" for r in (0, 1, 4, 5)] + [f"v_mul_f32 v{AQ+r}, s54, v{AQ+r}" for r in (0, 1, 4, 5)]
        Eq += [f"v_cvt_pk_bf16_f32 v{AQ+2}, v{AQ}, v{AQ+4}", f"v_cvt_pk_bf16_f32 v{AQ+3}, v{AQ+1}, v{AQ+5}",
               f"ds_write2_b32 v{VQW}, v{AQ+2}, v{AQ+3} offset0:136 offset1:204"]
        Ek = [f"v_add_f32 v{AK+r}, v{AK+r}, v{AK+r+2}" for r in (0, 1, 4, 5)]
        Ek += [f"v_cvt_pk_bf16_f32 v{AK+2}, v{AK}, v{AK+4}", f"v_cvt_pk_bf16_f32 v{AK+3}, v{AK+1}, v{AK+5}",
               f"ds_write2_b32 v{VQW}, v{AK+2}, v{AK+3} offset1:68"]
        for i in range(8):
            put(b0 + 23 + i, [Eq[i]])
        kv = b0 + 31
        LL = [x for k in range(9) for x in landl(k)]
        put(kv, Eq[8:10]); put(kv + 1, [Eq[10], "s_add_u32 s45, s45, 8192"])
        put(kv + 2, Ek[0:4]); put(kv + 3, Ek[4:7])
        put(kv + 4, [LL[0]]); put(kv + 5, [LL[1]])
        qb = kv + o.get("qb", 6)
        npre = 2
        if qb > kv + 6:
            put(kv + 6, [LL[2]]); npre = 3
        QR = [f"ds_read_b128 v[{QF+4*k}:{QF+4*k+3}], v{VQR} offset:{k*64}" for k in range(4)]
        RD = [x for k in range(4) for x in (QR[k], KR[2 * k], KR[2 * k + 1])]
        xt = 1 if o.get("trace") else 0
        put(qb, [f"s_waitcnt vmcnt({4+xt}) lgkmcnt({npre})", "s_barrier"])
        slots = list(range(qb, len(P)))
        extra = 8 - len(slots)
        k = 0
        for n_, i in enumerate(slots):
            c = 2 if n_ < extra else 1
            put(i, RD[k:k + c]); k += c
        assert k == 8
        RD = RD[8:]
        for i, p in enumerate(P):
            if i == b0 + 21:
                trace(a, o, QF + 6, VL16, 7)
            for x in F.get(i, []):
                a(x)
            proj(*p)
        if npre == 2:
            LL[3] = LL[2] + "\n" + LL[3]
        stamp(2)
        MXR, TMP = AK + 4, AK + 5
        Ev = [f"v_add_f32 v{AV+r}, v{AV+r}, v{AV+r+2}" for r in (0, 1, 4, 5)]
        Ev += [f"v_cvt_pk_bf16_f32 v{AV+2}, v{AV}, v{AV+1}", f"v_cvt_pk_bf16_f32 v{AV+3}, v{AV+4}, v{AV+5}",
               f"v_mov_b64 v[{AV+4}:{AV+5}], s[38:39]"]
        assert len(RD) == 4
        G = {0: [RD[0], "s_waitcnt lgkmcnt(6)"], 1: [RD[1]], 2: [RD[2]], 3: [RD[3], "s_waitcnt lgkmcnt(6)"],
             4: [f"ds_read_b64 v[{AK+6}:{AK+7}], v{VKMS}", Ev[0]], 5: [LL[3], Ev[1]], 6: [f"s_waitcnt lgkmcnt({8-npre})", Ev[2]],
             7: [LL[4], Ev[3]], 8: [LL[5], Ev[4]], 9: [f"s_waitcnt vmcnt({2+xt}) lgkmcnt({6-npre})", Ev[5]],
             10: [f"buffer_store_dwordx2 v[{AK+6}:{AK+7}], v{VL8}, {WS}, s50 offen{XS}"], 11: [f"buffer_store_dwordx2 v[{AV+2}:{AV+3}], v{VL8}, {WS}, s50 offen offset:2048{XS}"]}
        i = 0
        for kst in range(4):
            B = f"v[{QF+4*kst}:{QF+4*kst+3}]"
            for kt in (2, 0, 1):
                A = f"v[{RK+8*kst+4*kt}:{RK+8*kst+4*kt+3}]" if kt < 2 else B
                for x in G.get(i, []):
                    a(x)
                a(f"v_mfma_f32_16x16x32_bf16 v[{AQ+4*kt}:{AQ+4*kt+3}], {A}, {B}, " + (f"v[{AQ+4*kt}:{AQ+4*kt+3}]" if kst else "0"))
                i += 1
        a(LL[6])
        a(f"s_cmp_eq_u32 s44, 63")
        a(Ev[6])
        a("s_cbranch_scc1 L_chain_done")
        a(f"v_mov_b64 v[{AV+6}:{AV+7}], s[38:39]")
        a(LL[7])
        stamp(3)
        a(f"v_max3_f32 v{MXR}, v{AK}, v{AK+1}, v{AQ}\n v_max3_f32 v{MXR}, v{MXR}, v{AQ+1}, v{AQ+2}")
        a(f"v_max3_f32 v{TMP}, v{AQ+4}, v{AQ+5}, v{AQ+6}\n v_max3_f32 v{MXR}, v{MXR}, v{AQ+3}, v{AQ+7}\n v_max_f32 v{MXR}, v{MXR}, v{TMP}")
        a(f"v_mov_b32 v{TMP}, v{MXR}\n v_mov_b32 v{QF+5}, 0")
        a(LL[9])
        a(f"v_permlane16_swap_b32 v{TMP}, v{MXR}\n v_max_f32 v{MXR}, v{MXR}, v{TMP}\n v_mov_b32 v{TMP}, v{MXR}\n v_mov_b32 v{QF+6}, 0")
        a(LL[10])
        a(f"v_permlane32_swap_b32 v{TMP}, v{MXR}\n v_max_f32 v{MXR}, v{MXR}, v{TMP}")
        for r in (AK, AQ, AQ + 2, AQ + 4, AQ + 6):
            a(f"v_pk_add_f32 v[{r}:{r+1}], v[{r}:{r+1}], v[{MXR}:{MXR+1}] op_sel_hi:[1,0] neg_lo:[0,1] neg_hi:[0,1]")
        OA, SA = QF + 8, AK + 4
        ex = lambda r: a(f"v_exp_f32 v{r}, v{r}")
        cv = lambda i: a(f"v_cvt_pk_bf16_f32 v{QF+i}, v{AQ+2*i}, v{AQ+2*i+1}")
        ex(AK); ex(AK + 1); ex(AQ)
        a(f"v_cvt_pk_bf16_f32 v{QF+4}, v{AK}, v{AK+1}\n v_cvt_pk_bf16_f32 v{QF+7}, v{AK}, v{AK+1}")
        ex(AQ + 1)
        a(f"v_mfma_f32_16x16x16_bf16 v[{SA}:{SA+3}], v[{AV+4}:{AV+5}], v[{QF+4}:{QF+5}], 0")
        ex(AQ + 2)
        a(f"v_mfma_f32_16x16x16_bf16 v[{OA}:{OA+3}], v[{AV+2}:{AV+3}], v[{QF+4}:{QF+5}], 0")
        ex(AQ + 3)
        a(f"v_mfma_f32_16x16x16_bf16 v[{OA+4}:{OA+7}], v[{AV+2}:{AV+3}], v[{QF+6}:{QF+7}], 0")
        for r in range(AQ + 4, AQ + 8):
            ex(r)
        for i in range(4):
            cv(i)
        a(LL[11]); a(LL[12])
        a(f"v_mfma_f32_16x16x32_bf16 v[{SA}:{SA+3}], v[{AV+4}:{AV+7}], v[{QF}:{QF+3}], v[{SA}:{SA+3}]")
        a(LL[8])
        a(f"v_mfma_f32_16x16x32_bf16 v[{OA}:{OA+3}], v[{VX}:{VX+3}], v[{QF}:{QF+3}], v[{OA}:{OA+3}]")
        a(LL[13]); a(LL[14])
        a(f"v_mfma_f32_16x16x32_bf16 v[{OA+4}:{OA+7}], v[{VX+4}:{VX+7}], v[{QF}:{QF+3}], v[{OA+4}:{OA+7}]")
        Z = [f"v_mov_b64 v[{r}:{r+1}], 0" for r in list(range(QF, QF + 8, 2)) + list(range(AV, AV + 8, 2))]
        a(LL[15]); a(Z[0]); a(Z[1])
        a(f"v_rcp_f32 v{SA}, v{SA}")
        a(Z[2]); a(Z[3])
        stamp(4)
        pm = lambda r: a(f"v_pk_mul_f32 v[{OA+r}:{OA+r+1}], v[{OA+r}:{OA+r+1}], v[{SA}:{SA+1}] op_sel_hi:[1,0]")
        co = lambda i: a(f"v_cvt_pk_bf16_f32 v{AQ+i}, v{OA+2*i}, v{OA+2*i+1}")
        pm(0); pm(2); co(0); pm(4); pm(6); co(1); co(2); co(3)
        a("s_mov_b64 exec, s[74:75]")
        a(f"ds_write_b128 v{VOR}, v[{AQ}:{AQ+3}] offset:{OX-MX}")
        a("s_mov_b64 exec, -1")
        for i in range(4):
            a(f"v_mov_b32_dpp v{AQ+i}, v{AQ+i} quad_perm:[2,3,2,3] row_mask:0xf bank_mask:0xf")
        for jc in (1, 2, 3):
            a(f"v_xor_b32 v{AQ+4*jc}, {jc << 11}, v{VOR}")
        a("s_waitcnt lgkmcnt(1)")
        wo(0); a(Z[4]); wo(1); a(Z[5])
        a("s_waitcnt lgkmcnt(0)\n s_barrier")
        for jc in (1, 2, 3):
            a(f"ds_read_b128 v[{AQ+4*jc}:{AQ+4*jc+3}], v{AQ+4*jc} offset:{OX-MX}")
        a(Z[6]); a(Z[7])
        stamp(5)
        L = LL[16:18] + landl(9) + landl(12) + landl(15)

        def pub(np_):
            A = WACC[np_]
            return [f"v_cvt_pk_bf16_f32 v{A}, v{A}, v{A+2}", f"v_cvt_pk_bf16_f32 v{A+1}, v{A+1}, v{A+3}", f"v_bfi_b32 v{A}, 1, s53, v{A}",
                    f"buffer_store_dwordx2 v[{A}:{A+1}], v{VP1S}, {WS}, {('s47', 's58', 's60', 's61')[np_]} offen{st}"]

        W = {4: 6, 5: 4, 8: 2, 12: 0}
        X = {2: L[0:2], 3: L[2:4], 5: L[4:5], 6: L[5:6], 8: L[6:7], 9: L[7:8], 10: pub(0)[0:2], 11: pub(0)[2:4], 12: pub(1)[0:1],
             13: pub(1)[1:3], 14: pub(1)[3:4], 15: [f"s_add_u32 s50, s50, {0 if o.get('x_plain') else 0x20000}"] + pub(2)}
        for k in range(2, 16):
            if k in W:
                a(f"s_waitcnt lgkmcnt({W[k]})")
            wo(k)
            for x in X.get(k, []):
                a(x)
        for d in range(3):
            a(f"v_cndmask_b32 v{QF+4+d}, 0, v0, s[{64+2*d}:{65+2*d}]")
        for x in pub(3):
            a(x)
        a(f"v_cndmask_b32 v{QF+7}, 0, v0, s[70:71]\n s_add_u32 s44, s44, 1")
        stamp(6)
        warm(o.get("d0", 10), AQ)
        for w in (1, 2, 3):
            a(f"s_cmp_lt_u32 s6, {w}\n s_cbranch_scc1 L_{T}_p1")
            warm(o.get("d1", 16), AQ)
        a(f"L_{T}_p1:")
        poll(RM + 8, VL16, "s52")()
        early()
        warm(o.get("g1", 28), AQ)
        poll(RM + 16, VL16, "s52")()
        warm(o.get("w1", 0), AQ)
        a("s_waitcnt vmcnt(2)")
        a(f"L_{T}_h1:")
        a(f"v_mfma_f32_16x16x32_bf16 v[{AV}:{AV+3}], v[{QF+4}:{QF+7}], v[{RM+8}:{RM+11}], 0")
        a(f"v_mfma_f32_16x16x32_bf16 v[{AV}:{AV+3}], v[{QF+4}:{QF+7}], v[{RM+12}:{RM+15}], v[{AV}:{AV+3}]")
        check1(RM + 8, AQ)
        a(f"s_cbranch_vccnz L_{T}_h1r")
        outl.append((f"L_{T}_h1r", f"L_{T}_h1", RM + 8, RM + 16, RM + 24, "s52", lambda R: check1(R, AQ), 91))
        stamp(7)
        for rot in (4, 8):
            for r in (AV, AV + 1):
                a(f"v_add_f32_dpp v{r}, v{r}, v{r} row_ror:{rot} row_mask:0xf bank_mask:0xf")
        a("s_mov_b64 exec, s[72:73]")
        a(f"v_cvt_pk_bf16_f32 v{AQ+2}, v{AV}, v{AV+1}")
        a(f"buffer_store_dword v{AQ+2}, v{VMS}, {WS}, s46 offen{st}")
        a("s_mov_b64 exec, -1\n s_add_u32 s46, s46, 8192")
        if "probe" in o:
            for i, k in enumerate(sorted(o["probe"], reverse=True)):
                a.lines.insert(mark + k, f"    s_memtime s[{PR[i]}:{PR[i]+1}]")
            a.lines.insert(mark, "    s_memtime s[94:95]")
            a("s_waitcnt lgkmcnt(0)")
            for i in range(len(o["probe"])):
                a(f"s_sub_u32 s3, s{PR[i]}, s94\n s_add_u32 s{80+i}, s{80+i}, s3")
        stamp(8)
        a(f"s_cmp_lg_u32 s44, 0\n s_cbranch_scc1 L_{T}")
        a(f"s_add_u32 s3, s45, {63*8192}")
        a(f"L_{T}_tw:")
        poll(RM, VL16, "s3")()
        a(f"s_waitcnt vmcnt(0)\n v_cmp_eq_u32 vcc, s62, v{RM}\n v_cmp_eq_u32 s[40:41], s62, v{RM+4}\n s_or_b64 vcc, vcc, s[40:41]\n s_cbranch_scc0 L_{T}_td")
        poll_tail(a, f"L_{T}_tw")
        a(f"L_{T}_td:")
        a("s_barrier")
        if o.get("efm", 0):
            a(f"buffer_store_dword v{VIDX}, off, {WS}, s51 sc1")
        a(f"s_sub_u32 s45, s45, 8192\n s_sub_u32 s46, s46, {64*8192}\n s_sub_u32 s50, s50, 0x20000\n s_sub_u32 s59, s59, 4096")
        if prof:
            for i in range(16):
                a(f"s_mov_b32 s{80+i}, 0")
            a(f"{CLK} s[78:79]\n s_waitcnt lgkmcnt(0)")
        a(f"s_branch L_{T}")
        for lab, back, A, B, C, soff, chk, cnt in outl:
            a(f"{lab}:")
            for src, nxt in ((B, C), (C, B)):
                a("s_mov_b64 exec, vcc")
                poll(nxt, VL16, soff)()
                if prof:
                    a(f"s_add_u32 s{cnt}, s{cnt}, 1")
                if src == C:
                    a(f"s_sub_u32 {TMO}, {TMO}, 1\n s_cbranch_scc1 L_end")
                a("s_waitcnt vmcnt(2)")
                chk(src)
                for r in range(0, 8, 2):
                    a(f"v_mov_b64 v[{A+r}:{A+r+1}], v[{src+r}:{src+r+1}]")
                a("s_mov_b64 exec, -1")
                a(f"s_cbranch_vccz {back}")
            a(f"s_branch {lab}")
        a(f"L_{T}_kvw:")
        a(f"v_mov_b32 v{QF+8}, 0")
        wait_flags(a, VF, QF + 8, "s49", sleep=o.get("slc", 1))
        a(f"s_branch L_{T}_kvr")

    loop("pure")
    loop("mixed")
    a("L_chain_done:")
    a("s_waitcnt vmcnt(0)\n s_barrier")
    a(f"buffer_store_dword v{VIDX}, off, {WS}, s51 sc1")
    if prof:
        sk = a.label("Lp")
        a(f"s_cmp_lg_u32 s43, {o.get('who', 0)}\n s_cbranch_scc1 {sk}")
        a("s_lshl_b32 s3, s7, 6\n s_add_u32 s3, s3, 4\n s_mov_b64 exec, 1")
        for i in range(12):
            a(f"v_mov_b32 v{RM+i}, s{80+i}\n buffer_store_dword v{RM+i}, v{VL16}, {DBG}, s3 offen offset:{4*i}")
        a(f"{sk}:")


def role_ao(a, o):
    VL16, VZ, VONE, VF, VL4, VOB, VKM, SEL, VP2S, VP2L, VVM, VHS = 1, 2, 3, 4, 5, 6, 7, 8, 12, 13, 14, 15
    MB, SX, SM, RQ, RK, RV, KM, VM, PF, PM, OA = 16, 32, 48, 64, 96, 128, 160, 192, 200, 208, 212
    NG = 3
    AFR, NB, XP, YP = (200, 204, 208), 3, 128, 132
    MXR, TMP, SUM, VFO, VRW = 252, 253, 254, 0, 244
    a.srd(24, PTR(11), D * H * DH * 2)
    a.srd(12, PTR(13), S * D * 2)
    a(f"v_and_b32 v40, 63, v0\n v_lshlrev_b32 v{VL16}, 4, v40\n v_lshlrev_b32 v{VL4}, 2, v40")
    a(f"v_mov_b32 v{VZ}, 0\n v_mov_b32 v{VONE}, 1")
    a("v_and_b32 v41, 15, v0\n v_bfe_u32 v42, v0, 4, 1\n v_bfe_u32 v43, v0, 5, 1\n v_and_b32 v44, 31, v0")
    a("s_and_b32 s56, s5, 15\n s_lshr_b32 s57, s5, 4\n s_add_u32 s57, s57, 1\n s_bitcmp1_b32 s4, 1\n s_cselect_b32 s57, 0, s57")
    if not o.get("staged"):
        wait_counter(a, VF, VZ, 0, 32)
    team_publish(a, VF, VZ)
    a("v_lshlrev_b32 v45, 12, v43\n v_lshl_add_u32 v45, v44, 3, v45")
    a("s_mov_b32 s60, 0x05040100\n s_mov_b32 s61, 0x07060302")
    a("s_lshl_b32 s41, s56, 18\n s_lshl_b32 s3, s6, 8\n s_add_u32 s41, s41, s3")
    DEPTH = 7
    LD = lambda ks: 80 + 16 * (ks % (DEPTH + 1))

    def wo_issue(ks):
        a(f"s_add_u32 s3, s41, {ks*16384}\n s_add_u32 s40, s3, 8192")
        for j in range(8):
            r = LD(ks) + 2 * j
            a(f"buffer_load_dwordx2 v[{r}:{r+1}], v45, s[24:27], {'s40' if j >> 2 else 's3'} offen offset:{(j&3)*1024}")

    for ks in range(DEPTH):
        wo_issue(ks)
    for ks in range(16):
        a(f"s_waitcnt vmcnt({8*min(DEPTH-1, 15-ks)})")
        if ks + DEPTH < 16:
            wo_issue(ks + DEPTH)
        for T in range(4):
            for i in range(4):
                r = LD(ks) + 4 * i + (T >> 1)
                a(f"v_perm_b32 v{48+4*T+i}, v{r+2}, v{r}, s{60+(T&1)}")
        for i in range(16):
            a(f"v_accvgpr_write_b32 a{16*ks+i}, v{48+i}")
    a("v_mov_b32 v48, 0xf149f2ca\n v_lshlrev_b32 v49, 2, v43")
    for r in range(16):
        a(f"v_add_u32 v50, {8*(r>>2)+(r&3)}, v49\n v_cmp_gt_u32 vcc, v50, v44\n v_cndmask_b32 v{MB+r}, 0, v48, vcc")
    a("v_mov_b32 v48, 0x3f80\n v_and_b32 v49, 1, v0\n v_lshlrev_b32 v49, 4, v49\n v_lshlrev_b32 v48, v49, v48")
    a("v_lshrrev_b32 v49, 1, v41\n v_lshlrev_b32 v50, 2, v43\n v_sub_u32 v49, v49, v50")
    for d in range(4):
        a(f"v_cmp_eq_u32 vcc, {d}, v49\n v_cndmask_b32 v{SEL+d}, 0, v48, vcc")
    a(f"v_and_b32 v48, 7, v0\n v_lshlrev_b32 v{VKM}, 4, v48\n v_lshl_add_u32 v{VKM}, v43, 7, v{VKM}")
    a(f"v_lshlrev_b32 v{VVM}, 8, v43\n v_lshl_add_u32 v{VVM}, v41, 3, v{VVM}\n v_lshl_add_u32 v{VVM}, v42, 2, v{VVM}")
    a(f"v_lshlrev_b32 v{VP2S}, 12, v43\n v_lshl_add_u32 v{VP2S}, v44, 2, v{VP2S}\n s_lshl_b32 s3, s6, 8\n s_lshl_b32 s40, s56, 15\n s_add_u32 s3, s3, s40\n v_add_u32 v{VP2S}, s3, v{VP2S}")
    a("s_and_b32 s58, s6, 1\n s_lshl_b32 s3, s56, 1\n s_add_u32 s58, s58, s3")
    a(f"v_lshlrev_b32 v{VP2L}, 15, v42\n v_lshl_add_u32 v{VP2L}, v43, 9, v{VP2L}\n v_lshl_add_u32 v{VP2L}, v48, 4, v{VP2L}\n v_bfe_u32 v48, v0, 3, 1\n v_lshl_add_u32 v{VP2L}, v48, 8, v{VP2L}")
    a(f"v_lshlrev_b32 v48, 9, v43\n v_lshl_add_u32 v48, v41, 5, v48\n v_lshl_add_u32 v48, v42, 4, v48")
    a(f"v_mov_b32 v{VRW}, v48")
    a(f"s_lshl_b32 s3, s58, 10\n v_add_u32 v{VP2L}, s3, v{VP2L}")
    a(f"s_and_b32 s3, s58, 15\n s_lshl_b32 s3, s3, 4\n v_xor_b32 v{VHS}, s3, v{VRW}\n v_mov_b32 v{VOB}, v{VL16}")
    a("s_mov_b32 s44, s57\n s_lshl_b32 s3, s7, 6\n s_add_u32 s3, s3, s44")
    a(f"s_lshl_b32 s49, s3, 8\n s_add_u32 s49, s49, {FP}")
    a("s_lshl_b32 s3, s3, 5\n s_add_u32 s3, s3, s58\n s_lshl_b32 s45, s3, 7")
    a(f"s_mul_i32 s46, s3, 24576\n s_add_u32 s46, s46, {OFF_QKV}\n s_lshl_b32 s47, s3, 12\n s_add_u32 s47, s47, {OFF_KM}")
    a(f"s_lshl_b32 s48, s7, 23\n s_lshl_b32 s3, s57, 20\n s_add_u32 s48, s48, s3\n s_add_u32 s48, s48, {OFF_P2}")
    a("s_lshl_b32 s50, s44, 5\n s_add_u32 s50, s50, s58\n s_lshl_b32 s50, s50, 10")
    a(f"s_lshl_b32 s51, s7, 21\n s_add_u32 s51, s51, {OFF_X}\n s_mov_b32 s52, 0\n s_mov_b32 s39, 0\n s_mov_b32 s63, 0x20000000")
    a("s_lshl_b32 s53, s56, 4\n s_lshl_b32 s3, s6, 2\n s_add_u32 s53, s53, s3\n s_lshl_b32 s59, s6, 13")
    a(f"s_lshl_b32 s34, s7, 13\n s_add_u32 s34, s34, {FD}\n s_or_b32 s3, s58, s7\n s_cmp_eq_u32 s3, 0\n s_cselect_b32 s35, {FH+64*128}, s63")
    if o.get("trace"):
        for r in range(245, 252):
            a(f"v_mov_b32 v{r}, 0")
    a("s_mov_b32 s3, s48")
    for ld in range(8):
        for u in range(2):
            a(f"buffer_load_dwordx4 v[64:67], v{VP2L}, {WS}, s3 offen offset:{u*128} sc1")
        a("s_add_u32 s3, s3, 65536")
    a("s_mov_b32 s62, 0")
    team_wait(a, VF, 40, "L_ao_mx", n=16)
    a("s_mov_b32 s62, 1")
    a("L_ao_mx:")
    a(f"v_mov_b32 v40, 32\n v_and_b32 v41, 4, v{VL4}\n v_add_u32 v41, {NG*4096}, v41")
    a(f"v_cmp_eq_u32 vcc, 1, v43\n v_cndmask_b32 v{VFO}, v40, v41, vcc")
    a("s_cmp_eq_u32 s62, 0\n s_cbranch_scc1 L_ao_mixed")

    TSLOT = {7: 0, 8: 1, 9: 2, 12: 1, 13: 2, 14: 3, 10: 4, 11: 5, 15: 6}

    def ltrace(tag):
        if o.get("trace"):
            a(("s_memtime" if o.get("cyc") else "s_memrealtime") + " s[96:97]\n s_waitcnt lgkmcnt(0)")
            a(f"s_and_b32 s96, s96, 0x0fffffff\n s_or_b32 s96, s96, {tag << 28:#x}\n s_mov_b32 m0, s44")
            a(f"v_writelane_b32 v{245+TSLOT[tag]}, s96, m0")

    NT = lambda m: " nt" if (o.get("nt", 4) >> m) & 1 else ""

    def qkv_list(which, so):
        return [f"buffer_load_dwordx4 v[{dst+4*i}:{dst+4*i+3}], v{VL16}, {WS}, {so(m, i >> 2)} offen offset:{(i&3)*1024} sc1{NT(m)}"
                for m, dst in which for i in range(8)]

    def qkv_loads(which):
        for m, dst in which:
            a(f"s_add_u32 s3, s46, {m*8192}\n s_add_u32 s40, s46, {m*8192+4096}")
            for x in qkv_list(((m, dst),), lambda m_, hh: ("s3", "s40")[hh]):
                a(x)

    def km_list(so):
        L = [f"buffer_load_dwordx4 v[{KM+4*i}:{KM+4*i+3}], v{VKM}, {WS}, {so} offen offset:{i*256} sc1" for i in range(8)]
        L += [f"buffer_load_dword v{VM+2*ct+j}, v{VVM}, {WS}, {so} offen offset:{2048+ct*512+j*128} sc1" for ct in range(4) for j in range(2)]
        return L

    def loop(mode):
        st = "" if mode == "pure" else " sc1"
        T_ = f"ao_{mode}"
        a(f"L_{T_}:")
        ltrace(7)
        a(f"s_cmp_ge_u32 s6, 2\n s_cbranch_scc1 L_{T_}_bar")
        a(f"s_and_b32 s3, s52, s39\n s_cbranch_scc1 L_{T_}_have")
        a(f"s_cmp_lt_u32 s44, {NG}\n s_cbranch_scc1 L_{T_}_nob\n s_barrier")
        a(f"L_{T_}_nob:")
        a(f"s_cmp_lg_u32 s52, 0\n s_cbranch_scc1 L_{T_}_have")
        a(f"v_and_b32 v{TMP}, 4, v{VL4}")
        wait_flags(a, VF, TMP, "s45")
        qkv_loads(((0, RK), (2, RQ), (1, RV)))
        a("s_waitcnt vmcnt(8)")
        a(f"L_{T_}_have:")
        for i in range(8):
            a(f"v_mfma_f32_32x32x16_bf16 v[{SX}:{SX+15}], v[{RK+4*i}:{RK+4*i+3}], v[{RQ+4*i}:{RQ+4*i+3}], " + (f"v[{SX}:{SX+15}]" if i else f"v[{MB}:{MB+15}]"))
        ltrace(8)
        a(f"s_and_b32 s33, s52, s39\n s_cbranch_scc1 L_{T_}_km")
        a(f"L_{T_}_kw:")
        a(f"buffer_load_dword v{VF}, v{VFO}, {WS}, s45 offen sc1")
        a(f"s_waitcnt vmcnt(0)\n v_cmp_eq_u32 vcc, 0, v{VF}\n s_cmp_eq_u32 vcc_lo, 0\n s_cbranch_scc1 L_{T_}_kl")
        if o.get("sla", 1):
            a(f"s_sleep {o.get('sla', 1)}")
        poll_tail(a, f"L_{T_}_kw")
        a(f"L_{T_}_kl:")
        for x in km_list("s47"):
            a(x)
        a(f"L_{T_}_km:")
        ltrace(9)
        a(f"v_cmp_eq_u32 vcc, 0, v{VF}")
        a(f"s_cmp_eq_u32 vcc_hi, 0\n s_cselect_b32 s52, 1, 0\n s_cmp_ge_u32 s44, {64-NG}\n s_cselect_b32 s52, 0, s52\n s_add_u32 s46, s46, {NG*32*24576}")
        a("s_nop 3")
        a(f"v_max3_f32 v{MXR}, v{SX}, v{SX+1}, v{SX+2}\n v_max3_f32 v{TMP}, v{SX+3}, v{SX+4}, v{SX+5}")
        for r in range(6, 14, 4):
            a(f"v_max3_f32 v{MXR}, v{MXR}, v{SX+r}, v{SX+r+1}\n v_max3_f32 v{TMP}, v{TMP}, v{SX+r+2}, v{SX+r+3}")
        a(f"v_max3_f32 v{MXR}, v{MXR}, v{SX+14}, v{SX+15}")
        for i in range(8):
            a(f"s_waitcnt vmcnt({15-i})")
            a(f"v_mfma_f32_32x32x16_bf16 v[{SM}:{SM+15}], v[{KM+4*i}:{KM+4*i+3}], v[{RQ+4*i}:{RQ+4*i+3}], " + (f"v[{SM}:{SM+15}]" if i else "0"))
        a(f"s_add_u32 s45, s45, {NG*32*128}\n s_add_u32 s47, s47, {NG*32*4096}")
        a(f"s_cmp_lg_u32 s52, 0\n s_cselect_b32 s64, s46, s63")
        for i in range(1, 6):
            a(f"s_add_u32 s{64+i}, s64, {i*4096}")
        a(f"v_max3_f32 v{TMP}, v{TMP}, v{SM}, v{SM+1}\n v_max3_f32 v{MXR}, v{MXR}, v{SM+2}, v{SM+3}\n v_max_f32 v{MXR}, v{MXR}, v{TMP}")
        a(f"v_mov_b32 v{TMP}, v{MXR}\n v_permlane32_swap_b32 v{TMP}, v{MXR}\n v_max_f32 v{MXR}, v{MXR}, v{TMP}")
        for r in range(SX, SX + 20, 2):
            a(f"v_pk_add_f32 v[{r}:{r+1}], v[{r}:{r+1}], v[{MXR}:{MXR+1}] op_sel_hi:[1,0] neg_lo:[0,1] neg_hi:[0,1]")
        for r in range(SX, SX + 20):
            a(f"v_exp_f32 v{r}, v{r}")
        a(f"v_pk_add_f32 v[{SUM}:{SUM+1}], v[{SX}:{SX+1}], v[{SX+2}:{SX+3}]\n v_pk_add_f32 v[{MXR}:{MXR+1}], v[{SX+4}:{SX+5}], v[{SX+6}:{SX+7}]")
        for r in range(SX + 8, SX + 20, 4):
            a(f"v_pk_add_f32 v[{SUM}:{SUM+1}], v[{SUM}:{SUM+1}], v[{r}:{r+1}]\n v_pk_add_f32 v[{MXR}:{MXR+1}], v[{MXR}:{MXR+1}], v[{r+2}:{r+3}]")
        a(f"v_pk_add_f32 v[{SUM}:{SUM+1}], v[{SUM}:{SUM+1}], v[{MXR}:{MXR+1}]\n v_add_f32 v{SUM}, v{SUM}, v{SUM+1}")
        a(f"v_mov_b32 v{TMP}, v{SUM}\n v_permlane32_swap_b32 v{TMP}, v{SUM}\n v_add_f32 v{SUM}, v{SUM}, v{TMP}\n v_rcp_f32 v{SUM}, v{SUM}")
        a(f"v_add_u32 v{TMP}, s59, v{VOB}")
        for r in range(SX, SX + 20, 2):
            a(f"v_pk_mul_f32 v[{r}:{r+1}], v[{r}:{r+1}], v[{SUM}:{SUM+1}] op_sel_hi:[1,0]")
        for i in range(10):
            r = SX + (4 * (i >> 2) + 8 * ((i >> 1) & 1) + 2 * (i & 1) if i < 8 else 2 * i)
            a(f"v_cvt_pk_bf16_f32 v{PF+i}, v{r}, v{r+1}")
        sk = a.label("Lb")
        a(f"s_waitcnt vmcnt(0)\n s_cmp_eq_u32 s33, 0\n s_cbranch_scc1 {sk}\n s_barrier")
        a(f"{sk}:")
        oacc = [OA, OA + 16, SX, SM]
        KQ = qkv_list(((0, RK), (2, RQ)), lambda m, hh: f"s{64+2*m+hh}")
        npv = o.get("npv", 8)

        def oepi(ct):
            A = oacc[ct]
            L = []
            for i in range(8):
                L.append(f"v_cvt_pk_bf16_f32 v{KM+8*ct+i}, v{A+2*i}, v{A+2*i+1}")
                if i & 3 == 3:
                    L.append(f"ds_write_b128 v{TMP}, v[{KM+8*ct+i-3}:{KM+8*ct+i}] offset:{(2*ct+(i>>2))*1024}")
            return L

        k = 0
        for ct in range(4):
            A = oacc[ct]
            E = oepi(ct - 1) if ct >= 1 else []
            for f in range(3):
                if f < 2:
                    a(f"v_mfma_f32_32x32x16_bf16 v[{A}:{A+15}], v[{RV+8*ct+4*f}:{RV+8*ct+4*f+3}], v[{PF+4*f}:{PF+4*f+3}], " + (f"v[{A}:{A+15}]" if f else "0"))
                else:
                    a(f"v_mfma_f32_32x32x8_bf16 v[{A}:{A+15}], v[{VM+2*ct}:{VM+2*ct+1}], v[{PM}:{PM+1}], v[{A}:{A+15}]")
                if (ct == 0 or f == 0) and k < npv:
                    a(KQ[k]); k += 1
                    if ct == 0 and k < npv:
                        a(KQ[k]); k += 1
                if f >= 1:
                    for x in E[5 * (f - 1):5 * f]:
                        a(x)
        a(f"buffer_load_dword v{VF}, v{VFO}, {WS}, s45 offen sc1")
        for x in oepi(3):
            a(x)
        a("s_waitcnt lgkmcnt(0)")
        a(f"L_{T_}_bar:")
        a("s_add_u32 s36, s48, 8192\n s_add_u32 s37, s48, 16384\n s_add_u32 s38, s48, 24576\n s_mov_b32 s39, 0")
        ltrace(10)
        a("s_barrier")
        af = lambda j: f"v[{AFR[j%NB]}:{AFR[j%NB]+3}]"
        rd = lambda j: a(f"ds_read_b128 {af(j)}, v{VOB} offset:{(j&15)*1024}")
        acc = [SX, SM, OA, OA + 16]
        pack = lambda p: [f"v_cvt_pk_bf16_f32 v{acc[2*p]+r}, v{acc[2*p]+r}, v{acc[2*p+1]+r}\n buffer_store_dword v{acc[2*p]+r}, v{VP2S}, {WS}, {('s48', 's36', 's37', 's38')[r>>2]} offen offset:{(r&3)*1024+p*128}{st}" for r in range(16)]
        for j in range(NB - 1):
            rd(j)

        def wo_phase(fill):
            P0 = pack(0)
            for r in range(16):
                fill.setdefault(2 * (18 + r * 13 // 16) + (1 if r in (1, 6, 12) else 0), []).append(P0[r])
            for j in range(32):
                ks, p = j & 15, j >> 4
                if j + NB - 1 < 32:
                    rd(j + NB - 1)
                a(f"s_waitcnt lgkmcnt({min(NB-1, 31-j)})")
                for t in range(2):
                    A = acc[2 * p + t]
                    b = (ks * 4 + 2 * p + t) * 4
                    a(f"v_mfma_f32_32x32x16_bf16 v[{A}:{A+15}], {af(j)}, a[{b}:{b+3}], " + (f"v[{A}:{A+15}]" if ks else "0"))
                    for x in fill.get(2 * j + t, []):
                        a(x)
            a(f"v_xor_b32 v{VOB}, 0x4000, v{VOB}\n s_add_u32 s3, s49, s53")
            for x in pack(1):
                a(x)
            ltrace(11)
            a("s_waitcnt vmcnt(0)")
            a(f"buffer_store_dword v{VONE}, off, {WS}, s3{st}")

        a(f"s_cmp_ge_u32 s6, 2\n s_cbranch_scc1 L_{T_}_red")
        rest = KQ[k:] + qkv_list(((1, RV),), lambda m, hh: f"s{64+2*m+hh}")
        fill = {i: [x] for i, x in enumerate(rest)}
        n = len(rest)
        fill[n] = [f"s_waitcnt vmcnt({n})\n v_cmp_eq_u32 vcc, 0, v{VF}"]
        fill[n + 1] = ["s_cmp_eq_u32 vcc_lo, 0\n s_cselect_b32 s39, s52, 0\n s_cmp_lg_u32 s39, 0\n s_cselect_b32 s40, s47, s63"]
        for i, x in enumerate(km_list("s40")):
            fill[n + 2 + i] = [x]
        wo_phase(fill)
        a(f"s_branch L_{T_}_nx")
        a(f"L_{T_}_red:")
        wo_phase({0: [f"s_add_u32 s3, s51, s50\n buffer_load_dwordx4 v[{XP}:{XP+3}], v{VRW}, {WS}, s3 offen sc1"],
                  2: [f"s_add_u32 s3, s50, {OFF_Y}\n buffer_load_dwordx4 v[{YP}:{YP+3}], v{VRW}, {WS}, s3 offen sc1"],
                  4: [f"buffer_load_dword v{VF}, v{VL4}, {WS}, s49 offen sc1"],
                  6: [f"s_lshl_b32 s3, s44, 7\n s_add_u32 s3, s3, s34\n buffer_load_dword v{VF}, off, {WS}, s3 sc1"]})
        ltrace(12)
        row = dict(x=40, t=48, s=56, y=68, xo=60, ho=64)
        for i in range(4):
            unpack(a, XP + i, 40 + 2 * i, 41 + 2 * i)
            unpack(a, YP + i, 68 + 2 * i, 69 + 2 * i)
        wait_flags(a, VF, VL4, "s49", sleep=0)
        ltrace(13)
        G = 136
        a("s_mov_b32 s3, s48")
        for ld in range(8):
            for u in range(2):
                r = G + 8 * ld + 4 * u
                a(f"buffer_load_dwordx4 v[{r}:{r+3}], v{VP2L}, {WS}, s3 offen offset:{u*128} sc1")
            a("s_add_u32 s3, s3, 65536")
        a("s_barrier")
        for ld in range(8):
            a(f"s_waitcnt vmcnt({2*(7-ld)})")
            for u in range(2):
                r = G + 8 * ld + 4 * u
                a(f"v_mfma_f32_16x16x32_bf16 v[{32+4*u}:{35+4*u}], v[{SEL}:{SEL+3}], v[{r}:{r+3}], " + (f"v[{32+4*u}:{35+4*u}]" if ld else "0"))
        for i in range(4):
            A = 32 + 4 * (i & 1) + 2 * (i >> 1)
            a(f"v_cvt_pk_bf16_f32 v{56+i}, v{A}, v{A+1}")
        for i in range(4):
            unpack(a, 56 + i, 32 + 2 * i, 33 + 2 * i)
        for i in range(4):
            a(f"v_pk_add_f32 v[{40+2*i}:{41+2*i}], v[{40+2*i}:{41+2*i}], v[{32+2*i}:{33+2*i}]")
        for i in range(4):
            a(f"v_cvt_pk_bf16_f32 v{60+i}, v{40+2*i}, v{41+2*i}")
        ltrace(14)
        l1 = a.label("Lao")
        a(f"s_cmp_lg_u32 s7, 0\n s_cbranch_scc1 {l1}")
        for i in range(4):
            unpack(a, 60 + i, 40 + 2 * i, 41 + 2 * i)
        rowfin(a, [row])
        a(f"s_add_u32 s3, s50, {OFF_H+0x200000}\n s_add_u32 s40, s50, {OFF_X+0x200000}")
        a(f"buffer_store_dwordx4 v[64:67], v{VHS}, {WS}, s3 offen sc1")
        a(f"buffer_store_dwordx4 v[60:63], v{VRW}, {WS}, s40 offen sc1")
        a("s_waitcnt vmcnt(0)")
        a(f"s_branch L_{T_}_dn")
        a(f"{l1}:")
        a(f"buffer_store_dwordx4 v[60:63], v{VRW}, s[12:15], s50 offen")
        a(f"L_{T_}_dn:")
        a(f"s_lshr_b32 s3, s50, 8\n s_add_u32 s3, s3, s34")
        a(f"buffer_store_dword v{VONE}, off, {WS}, s3{st}")
        a(f"s_lshl_b32 s40, s44, 7\n s_add_u32 s41, s40, s34\n v_and_b32 v{TMP}, 0x7c, v{VL4}")
        wait_flags(a, VF, TMP, "s41", sleep=0)
        a(f"s_add_u32 s40, s40, s35")
        a(f"buffer_store_dword v{VONE}, v{TMP}, {WS}, s40 offen sc1")
        a(f"L_{T_}_nx:")
        ltrace(15)
        a(f"s_add_u32 s44, s44, {NG}\n s_add_u32 s49, s49, {NG*256}\n s_add_u32 s50, s50, {NG*32*1024}")
        a(f"s_cmp_lt_u32 s44, 64\n s_cbranch_scc1 L_{T_}")
        if o.get("trace"):
            for r in range(7):
                a(f"buffer_store_dword v{245+r}, v{VL4}, {WS}, s99 offen offset:{r*256}")
        a("s_endpgm")

    loop("pure")
    loop("mixed")
```

```python
import sys
sys.path.insert(0, "gen")
from asmlib import *
from layout import *
import hazard

PTR = lambda i: 64 + 2 * i
WS = "s[8:11]"
DBG = "s[28:31]"
TMO = "s98"
EPS = 0x3727C5AC


def poll_tail(a, loop):
    a(f"s_sub_u32 {TMO}, {TMO}, 1")
    a(f"s_cbranch_scc1 L_end")
    a(f"s_branch {loop}")


def wait_flags(a, vdst, voff, soff, imm=0, sleep=1, srd=WS):
    lp, dn = a.label("Lw"), a.label("Lwd")
    a(f"{lp}:")
    a(f"buffer_load_dword v{vdst}, v{voff}, {srd}, {soff} offen offset:{imm} sc1")
    a("s_waitcnt vmcnt(0)")
    a(f"v_cmp_eq_u32 vcc, 0, v{vdst}")
    a(f"s_cbranch_vccz {dn}")
    if sleep:
        a(f"s_sleep {sleep}")
    poll_tail(a, lp)
    a(f"{dn}:")


def wait_counter(a, vtmp, vz, imm, target):
    lp, dn = a.label("Lc"), a.label("Lcd")
    a(f"{lp}:")
    a(f"buffer_load_dword v{vtmp}, v{vz}, {DBG}, 0 offen offset:{imm} sc1")
    a("s_waitcnt vmcnt(0)")
    a(f"v_cmp_gt_u32 vcc, {target}, v{vtmp}")
    a(f"s_cbranch_vccz {dn}")
    a("s_sleep 2")
    poll_tail(a, lp)
    a(f"{dn}:")


def count_arrive(a, vtmp, vz, imm):
    a(f"v_mov_b32 v{vtmp}, 1")
    a("s_mov_b64 exec, 1")
    a(f"buffer_atomic_add v{vtmp}, v{vz}, {DBG}, 0 offen offset:{imm} sc1")
    a("s_mov_b64 exec, -1")


def trace(a, o, vtmp, vlane, tag):
    if not o.get("trace"):
        return
    a(("s_memtime" if o.get("cyc") else "s_memrealtime") + " s[96:97]\n s_waitcnt lgkmcnt(0)")
    a(f"s_and_b32 s96, s96, 0x0fffffff\n s_or_b32 s96, s96, {tag << 28:#x}")
    a(f"v_mov_b32 v{vtmp}, s96\n s_mov_b64 exec, 1")
    a(f"buffer_store_dword v{vtmp}, v{vlane}, {WS}, s99 offen")
    a("s_mov_b64 exec, -1\n s_add_u32 s99, s99, 4")


def strace(a, o, k):
    if o.get("ptrace"):
        a(f"s_memrealtime s[96:97]\n s_waitcnt lgkmcnt(0)\n s_mov_b32 s{50+k}, s96")


def allreduce(a, rs, op="v_add_f32", fill=()):
    fill = list(fill)
    per = -(-len(fill) // 6)

    def gap():
        for _ in range(per):
            if fill:
                a(fill.pop(0))

    for pat in ("quad_perm:[1,0,3,2]", "quad_perm:[2,3,0,1]", "row_half_mirror", "row_mirror"):
        gap()
        for r, t in rs:
            a(f"{op}_dpp v{r}, v{r}, v{r} {pat} row_mask:0xf bank_mask:0xf")
    for sw in ("v_permlane16_swap_b32", "v_permlane32_swap_b32"):
        for r, t in rs:
            a(f"v_mov_b32 v{t}, v{r}")
        gap()
        for r, t in rs:
            a(f"{sw} v{t}, v{r}")
        for r, t in rs:
            a(f"{op} v{r}, v{r}, v{t}")


def unpack(a, p, lo, hi):
    a(f"v_lshlrev_b32 v{lo}, 16, v{p}")
    a(f"v_and_b32 v{hi}, 0xffff0000, v{p}")


def rnd1(a, r):
    a(f"v_cvt_pk_bf16_f32 v{r}, v{r}, v{r}")
    a(f"v_and_b32 v{r}, 0xffff0000, v{r}")


def pk(a, op, d, x, y, mod=""):
    a(f"v_pk_{op}_f32 v[{d}:{d+1}], v[{x}:{x+1}], v[{y}:{y+1}]{mod}")


BC = " op_sel_hi:[1,0]"
NBC = " op_sel_hi:[1,0] neg_lo:[0,1] neg_hi:[0,1]"


def layernorm(a, rows, key):
    for R in rows:
        x, s = R["x"], R["s"]
        pk(a, "add", s, x, x + 2); pk(a, "add", s + 2, x + 4, x + 6); pk(a, "add", s, s, s + 2)
        a(f"v_add_f32 v{s}, v{s}, v{s+1}")
    allreduce(a, [(R["s"], R["s"] + 1) for R in rows])
    for R in rows:
        x, t, s = R["x"], R["t"], R["s"]
        a(f"v_mul_f32 v{s}, 0x3b000000, v{s}")
        for i in range(0, 8, 2):
            pk(a, "add", t + i, x + i, s, NBC)
        pk(a, "mul", s + 2, t, t)
        for i in range(2, 8, 2):
            a(f"v_pk_fma_f32 v[{s+2}:{s+3}], v[{t+i}:{t+i+1}], v[{t+i}:{t+i+1}], v[{s+2}:{s+3}]")
        a(f"v_add_f32 v{s+2}, v{s+2}, v{s+3}")
    fill = []
    for R in rows:
        x, t, s = R["x"], R["t"], R["s"]
        fill += [f"v_cvt_pk_bf16_f32 v{s}, v{s}, v{s}", f"v_and_b32 v{s}, 0xffff0000, v{s}"]
        fill += [f"v_pk_add_f32 v[{t+i}:{t+i+1}], v[{x+i}:{x+i+1}], v[{s}:{s+1}]{NBC}" for i in range(0, 8, 2)]
        for i in range(0, 8, 2):
            fill += [f"v_cvt_pk_bf16_f32 v{t+i+1}, v{t+i}, v{t+i+1}", f"v_lshlrev_b32 v{t+i}, 16, v{t+i+1}", f"v_and_b32 v{t+i+1}, 0xffff0000, v{t+i+1}"]
    allreduce(a, [(R["s"] + 2, R["s"] + 3) for R in rows], fill=fill)
    for R in rows:
        t, s = R["t"], R["s"]
        a(f"v_mul_f32 v{s+2}, 0x3b000000, v{s+2}")
        rnd1(a, s + 2)
        a(f"v_add_f32 v{s+2}, {EPS:#x}, v{s+2}")
        rnd1(a, s + 2)
        a(f"v_sqrt_f32 v{s+2}, v{s+2}")
        rnd1(a, s + 2)
        a(f"v_rcp_f32 v{s+2}, v{s+2}")
        for i in range(0, 8, 2):
            pk(a, "mul", t + i, t + i, s + 2, BC)
        if key:
            for i in range(4):
                a(f"v_cvt_pk_bf16_f32 v{R[key]+i}, v{t+2*i}, v{t+2*i+1}")


def rowfin(a, rows, first=True):
    if first:
        layernorm(a, rows, None)
    for R in rows:
        x, t, y, xo = R["x"], R["t"], R["y"], R["xo"]
        for i in range(0, 8, 2):
            a(f"v_pk_fma_f32 v[{x+i}:{x+i+1}], v[{t+i}:{t+i+1}], v[{y+i}:{y+i+1}], v[{x+i}:{x+i+1}]")
        for i in range(4):
            a(f"v_cvt_pk_bf16_f32 v{xo+i}, v{x+2*i}, v{x+2*i+1}")
        for i in range(4):
            unpack(a, xo + i, x + 2 * i, x + 2 * i + 1)
    layernorm(a, rows, "ho")


def role_pre(a, o):
    KK, KC = 0x0, 4160
    KKS = 4 * KC
    KVR, KVS = 0x10400, 4608
    YS, YR, RS = 0x0, 0x4800, 1040
    TA = 0x14C00
    YB, KVG = 16384 + o.get("ypad", 256), 4096 + o.get("kpad", 128)
    a.srd(12, PTR(1), S * D * 2)
    a.srd(16, PTR(2), S * D * 2)
    a.srd(20, PTR(4), S * D * 2)
    a.srd(24, PTR(0), S * D * 2)
    a.srd(40, PTR(3), D * 4 * 2)
    a(f"s_lshl_b32 s3, s7, 3\n s_load_dwordx2 s[36:37], s[{PTR(5)}:{PTR(5)+1}], s3")
    a("v_and_b32 v1, 63, v0\n v_lshlrev_b32 v2, 4, v1")
    a("v_and_b32 v3, 15, v0\n v_bfe_u32 v4, v0, 4, 2")
    a("s_lshr_b32 s44, s7, 5\n s_lshl_b32 s45, s5, 16\n s_lshl_b32 s3, s44, 8\n s_add_u32 s45, s45, s3")
    a("v_lshrrev_b32 v8, 4, v0\n v_lshlrev_b32 v6, 12, v8\n v_lshl_add_u32 v6, v3, 4, v6\n v_add_u32 v6, s45, v6\n v_subrev_u32 v5, 3072, v6")
    KB, VB, SB = 12, 40, 56
    for i in range(7):
        vo, im = (5, i * 1024) if i < 3 else (6, (i - 3) * 1024)
        a(f"buffer_load_dwordx4 v[{KB+4*i}:{KB+4*i+3}], v{vo}, s[12:15], 0 offen offset:{im}")
    for i in range(4):
        a(f"buffer_load_dwordx4 v[{VB+4*i}:{VB+4*i+3}], v6, s[16:19], 0 offen offset:{i*1024}")
    a("v_lshlrev_b32 v7, 6, v3\n s_lshl_b32 s3, s44, 10")
    for i in range(4):
        a(f"buffer_load_dwordx4 v[{SB+4*i}:{SB+4*i+3}], v7, s[40:43], s3 offen offset:{i*16}")
    a("s_lshl_b32 s38, s7, 2\n s_add_u32 s38, s38, s6")
    a("s_lshl_b32 s39, s38, 12")
    a(f"s_mul_i32 s33, s6, {KKS}")

    def kcopy(cp):
        a(f"s_add_u32 m0, s33, {KK+32+cp*KC}\n s_add_u32 s3, s39, {2*cp}")
        for i in range(4):
            a(f"buffer_load_dwordx4 v2, s[20:23], s3 offen offset:{i*1024} lds")

    kcopy(0)
    a("s_lshl_b32 s46, s7, 4\n s_lshl_b32 s3, s6, 2\n s_add_u32 s46, s46, s3\n s_lshl_b32 s47, s46, 10")
    XP = 100
    for r in range(4):
        a(f"buffer_load_dwordx4 v[{XP+4*r}:{XP+4*r+3}], v2, s[24:27], s47 offen offset:{r*1024}")
    a(f"s_mul_i32 s45, s44, {128*KVG}\n s_add_u32 s45, s45, {OFF_KVR+3968}\n s_lshl_b32 s3, s5, 7\n s_sub_u32 s45, s45, s3")
    a(f"s_mov_b32 s48, {KVG}\n s_mov_b32 s49, {YB}")
    a("v_lshrrev_b32 v117, 3, v0\n v_and_b32 v116, 7, v0\n v_lshlrev_b32 v116, 4, v116\n v_mad_u32_u24 v118, v117, s49, v116\n v_mad_u32_u24 v116, v117, s48, v116")
    a(f"buffer_load_dword v119, off, {DBG}, 0 sc1")
    nt = 1
    a("v_mov_b32 v10, 0\n v_mov_b32 v11, 0")
    a(f"s_mul_i32 s34, s6, {KVS}\n s_add_u32 s34, s34, {KVR}")
    a("v_lshlrev_b32 v7, 3, v1\n v_add_u32 v9, s34, v7")
    a("ds_write_b64 v9, v[10:11] offset:4096")
    a("v_and_b32 v9, 24, v7\n v_add_u32 v9, s33, v9")
    a(f"ds_write_b64 v9, v[10:11] offset:{KK}")
    a("s_waitcnt lgkmcnt(0)")
    a("s_bitcmp1_b32 s6, 1\n s_cselect_b32 s36, s37, s36")
    a("s_lshl_b32 s37, s36, 16\n s_and_b32 s36, s36, 0xffff0000")
    a("s_bitcmp1_b32 s6, 0\n s_cselect_b32 s36, s36, s37")
    a(f"v_mul_u32_u24 v9, 1040, v3\n v_lshlrev_b32 v8, 3, v8\n v_sub_u32 v9, v9, v8\n v_add_u32 v9, {TA+120}, v9")
    strace(a, o, 0)
    a(f"s_waitcnt vmcnt({8+nt})")
    strace(a, o, 1)
    for c in range(8):
        up = (lambda d, s: a(f"v_lshlrev_b32 v{d}, 16, v{s}")) if c % 2 == 0 else (lambda d, s: a(f"v_and_b32 v{d}, 0xffff0000, v{s}"))
        for i in range(7):
            up(72 + i, KB + 4 * i + (c >> 1))
        for i in range(4):
            up(80 + i, VB + 4 * i + (c >> 1))
        unpack(a, SB + 2 * c, 84, 85)
        unpack(a, SB + 2 * c + 1, 86, 87)
        for i in range(4):
            a(f"v_mul_f32 v{88+i}, v87, v{72+i}")
        for tap in (2, 1, 0):
            for i in range(4):
                a(f"v_fmac_f32 v{88+i}, v{84+tap}, v{72+i+3-tap}")
        pk(a, "mul", 88, 88, 80); pk(a, "mul", 90, 90, 82)
        P = 92 + 2 * (c & 3)
        a(f"v_cvt_pk_bf16_f32 v{P}, v91, v90\n v_cvt_pk_bf16_f32 v{P+1}, v89, v88")
        a(f"ds_write_b64 v9, v[{P}:{P+1}] offset:{c*128}")
    a(f"v_lshlrev_b32 v7, 4, v0\n s_lshl_b32 s3, s6, 4\n s_add_u32 s3, s3, {TA}\n v_add_u32 v7, s3, v7")
    a("s_waitcnt lgkmcnt(0)\n s_barrier")
    strace(a, o, 2)
    for i in range(4):
        a(f"ds_read_b128 v[{12+4*i}:{15+4*i}], v7 offset:{i*4160}")
    for i in range(4):
        a(f"s_waitcnt lgkmcnt({3-i})")
        a(f"buffer_store_dwordx4 v[{12+4*i}:{15+4*i}], v116, {WS}, s45 offen sc1")
        a(f"s_add_u32 s45, s45, {32*KVG}")
    a(f"v_lshlrev_b32 v8, 1, v3\n v_lshl_add_u32 v8, v4, 4, v8\n v_add_u32 v8, s33, v8\n v_mov_b32 v5, 0")
    kcopy(2)
    a("s_waitcnt vmcnt(4)")
    if not o.get("staged"):
        sk = a.label("Lsk")
        a(f"v_cmp_gt_u32 vcc, 32, v119\n s_cbranch_vccz {sk}")
        wait_counter(a, 6, 5, 0, 32)
        a(f"{sk}:")
    a("s_lshl_b32 s48, s7, 2\n s_lshl_b32 s3, s6, 29\n s_add_u32 s48, s48, s3\n v_mov_b32 v7, 1")
    a(f"s_add_u32 s3, s48, {FPA}")
    a("s_barrier")
    a(f"buffer_store_dword v7, off, {WS}, s3 sc1")
    strace(a, o, 3)
    kcopy(1); kcopy(3)
    a("s_waitcnt vmcnt(0)")
    a(f"ds_read_b128 a[0:3], v8 offset:{KK+2}")
    a(f"v_add_u32 v9, 1, v3\n v_and_b32 v8, 3, v9\n v_mul_u32_u24 v8, {KC}, v8\n v_lshrrev_b32 v9, 2, v9\n v_lshl_add_u32 v8, v9, 3, v8")
    a("v_lshl_add_u32 v8, v4, 4, v8\n v_add_u32 v8, s33, v8")
    for i in range(1, 64):
        a(f"ds_read_b64 a[{4*i}:{4*i+1}], v8 offset:{64*i}\n ds_read_b64 a[{4*i+2}:{4*i+3}], v8 offset:{64*i+8}")
        if i % 4 == 3:
            a("s_waitcnt lgkmcnt(6)")
    a(f"v_and_b32 v9, 31, v0\n v_lshlrev_b32 v9, 2, v9\n s_lshl_b32 s3, s44, 7\n s_add_u32 s49, s3, {FPA}")
    strace(a, o, 4)
    wait_flags(a, 6, 9, "s49")
    strace(a, o, 5)
    a(f"s_mov_b32 m0, s34\n s_mul_i32 s3, s38, {KVG}\n s_add_u32 s3, s3, {OFF_KVR}")
    for i in range(4):
        a(f"buffer_load_dwordx4 v2, {WS}, s3 offen offset:{i*1024} sc1 lds")
    a(f"v_lshlrev_b32 v8, 5, v3\n v_sub_u32 v8, {4064-64*56}, v8\n v_lshl_add_u32 v8, v4, 4, v8\n v_add_u32 v8, s34, v8")
    a("s_waitcnt vmcnt(0) lgkmcnt(0)\n s_barrier")
    strace(a, o, 6)
    ms = list(range(56, -8, -1))
    NB = 6
    BF, ACC = 10, 40
    rd = lambda j: a(f"ds_read_b128 v[{BF+4*(j%NB)}:{BF+4*(j%NB)+3}], v8 offset:{64*(56-ms[j])}")
    for j in range(NB - 1):
        rd(j)
    started = set()
    for j, m in enumerate(ms):
        if j + NB - 1 < len(ms):
            rd(j + NB - 1)
        a(f"s_waitcnt lgkmcnt({min(NB-1, len(ms)-1-j)})")
        for T in range(8):
            ai = 8 * T - m
            if 0 <= ai <= 63:
                c = f"v[{ACC+4*T}:{ACC+4*T+3}]" if T in started else "0"
                started.add(T)
                a(f"v_mfma_f32_16x16x32_bf16 v[{ACC+4*T}:{ACC+4*T+3}], a[{4*ai}:{4*ai+3}], v[{BF+4*(j%NB)}:{BF+4*(j%NB)+3}], {c}")
    strace(a, o, 7)
    a(f"v_lshlrev_b32 v9, 5, v3\n v_lshl_add_u32 v9, v4, 3, v9")
    a(f"v_sub_u32 v8, {4088-7*512}, v9\n v_add_u32 v8, s34, v8")
    for T in range(8):
        a(f"ds_read_b64 v[{80+2*T}:{81+2*T}], v8 offset:{(7-T)*512}")
    a(f"v_mul_u32_u24 v9, 144, v3\n v_lshl_add_u32 v9, v4, 3, v9\n s_lshl_b32 s3, s6, 5\n s_add_u32 s3, s3, {YS}\n v_add_u32 v9, s3, v9")
    a("s_waitcnt lgkmcnt(0)")
    for T in range(8):
        A = ACC + 4 * T
        unpack(a, 81 + 2 * T, 11, 10)
        unpack(a, 80 + 2 * T, 13, 12)
        for r in range(4):
            a(f"v_fmac_f32 v{A+r}, s36, v{10+r}")
        a(f"v_cvt_pk_bf16_f32 v{A}, v{A}, v{A+1}\n v_cvt_pk_bf16_f32 v{A+1}, v{A+2}, v{A+3}")
        a(f"ds_write_b64 v9, v[{A}:{A+1}] offset:{T*2304}")
    a(f"v_lshrrev_b32 v9, 3, v0\n v_add_u32 v8, v0, v9\n v_lshlrev_b32 v8, 4, v8\n v_add_u32 v8, {YS}, v8")
    a(f"s_lshl_b32 s39, s7, 7\n s_add_u32 s39, s39, {OFF_YT}")
    a("s_waitcnt lgkmcnt(0)\n s_barrier")
    strace(a, o, 8)
    for i in range(4):
        a(f"ds_read_b128 v[{12+4*i}:{15+4*i}], v8 offset:{i*4608}")
    for i in range(4):
        a(f"s_waitcnt lgkmcnt({3-i})")
        a(f"buffer_store_dwordx4 v[{12+4*i}:{15+4*i}], v118, {WS}, s39 offen sc1")
        a(f"s_add_u32 s39, s39, {32*YB}")
    a("s_waitcnt vmcnt(0)\n s_barrier")
    sk = a.label("Lsk")
    a(f"s_cmp_lg_u32 s6, 0\n s_cbranch_scc1 {sk}")
    a(f"s_lshl_b32 s3, s44, 7\n s_add_u32 s3, s3, {FPB+128}\n v_mov_b32 v6, 1\n s_mov_b64 exec, 1")
    a(f"buffer_atomic_add v6, off, {WS}, s3 sc0 sc1")
    a(f"s_lshl_b32 s3, s44, 2\n s_add_u32 s3, s3, {FPB}\n s_waitcnt vmcnt(0)")
    a(f"v_cmp_eq_u32 vcc, 31, v6\n s_mov_b64 exec, -1\n s_cbranch_vccz {sk}")
    a(f"buffer_store_dword v7, off, {WS}, s3 sc1")
    a(f"{sk}:")
    strace(a, o, 9)
    rows = []
    for r in range(4):
        b = 120 + 32 * r
        rows.append(dict(x=b, t=b + 8, s=b + 16, yp=b + 20, xo=b + 24, ho=b + 28, y=40 + 8 * r))
        for i in range(4):
            unpack(a, XP + 4 * r + i, b + 2 * i, b + 2 * i + 1)
    layernorm(a, rows, None)
    a(f"s_lshl_b32 s3, s6, 2\n s_add_u32 s49, s3, {FPB}")
    wait_flags(a, 6, 5, "s49")
    strace(a, o, 10)
    a(f"s_mul_i32 s35, s7, {YB}\n s_add_u32 s35, s35, {OFF_YT}\n s_lshl_b32 s3, s6, 12\n s_add_u32 s35, s35, s3\n s_add_u32 s37, s3, {YS}")
    a("s_mov_b32 m0, s37")
    for i in range(4):
        a(f"buffer_load_dwordx4 v2, {WS}, s35 offen offset:{i*1024} sc1 lds")
    a("v_lshl_add_u32 v6, v1, 3, s37")
    a(f"v_mul_u32_u24 v7, {RS}, v3\n v_lshl_add_u32 v7, v4, 3, v7\n s_lshl_b32 s3, s6, 8\n v_add_u32 v7, s3, v7")
    a("s_waitcnt vmcnt(0)")
    for i in range(8):
        a(f"ds_read_b64_tr_b16 v[{10+2*i}:{11+2*i}], v6 offset:{i*512}")
    for i in range(8):
        a(f"s_waitcnt lgkmcnt(7)")
        a(f"ds_write_b64 v7, v[{10+2*i}:{11+2*i}] offset:{YR+32*i}")
    a("s_waitcnt lgkmcnt(0)\n s_barrier")
    strace(a, o, 11)
    a(f"s_mul_i32 s3, s6, {4*RS}\n v_add_u32 v7, s3, v2")
    for r in range(4):
        a(f"ds_read_b128 v[{rows[r]['yp']}:{rows[r]['yp']+3}], v7 offset:{YR+r*RS}")
    a("s_waitcnt lgkmcnt(0)")
    a(f"s_add_u32 s35, s47, {OFF_Y}")
    for r in range(4):
        a(f"buffer_store_dwordx4 v[{rows[r]['yp']}:{rows[r]['yp']+3}], v2, {WS}, s35 offen offset:{r*1024} sc1")
        for i in range(4):
            unpack(a, rows[r]['yp'] + i, rows[r]['y'] + 2 * i, rows[r]['y'] + 2 * i + 1)
    rowfin(a, rows, first=False)
    strace(a, o, 12)
    a(f"s_add_u32 s35, s47, {OFF_X}\n s_add_u32 s36, s47, {OFF_H}")
    for r in range(4):
        a(f"s_add_u32 s3, s46, {r}\n s_and_b32 s3, s3, 15\n s_lshl_b32 s3, s3, 4")
        a(f"v_xor_b32 v{10+r}, s3, v2")
        a(f"buffer_store_dwordx4 v[{rows[r]['ho']}:{rows[r]['ho']+3}], v{10+r}, {WS}, s36 offen offset:{r*1024} sc1")
        a(f"buffer_store_dwordx4 v[{rows[r]['xo']}:{rows[r]['xo']+3}], v2, {WS}, s35 offen offset:{r*1024} sc1")
    a(f"s_lshl_b32 s35, s46, 2\n s_add_u32 s35, s35, {FH}")
    for r in range(16, 20):
        a(f"v_mov_b32 v{r}, 1")
    a("s_waitcnt vmcnt(0)")
    a(f"buffer_store_dwordx4 v[16:19], off, {WS}, s35 sc1")
    strace(a, o, 13)
    if o.get("ptrace"):
        for k in range(14):
            a(f"s_and_b32 s3, s{50+k}, 0x0fffffff\n s_or_b32 s3, s3, {2 << 28:#x}\n v_mov_b32 v6, s3\n buffer_store_dword v6, off, {WS}, s99\n s_add_u32 s99, s99, 4")
    trace(a, o, 6, 1, 5)
    a("s_barrier")


def build(o):
    from roles import role_qkv, role_chain, role_ao
    roles = o["roles"]
    a = Asm()
    a("s_cmp_ge_u32 s2, 256\n s_cbranch_scc1 L_end")
    a("s_load_dwordx16 s[64:79], s[0:1], 0\n s_load_dwordx16 s[80:95], s[0:1], 64")
    a("s_and_b32 s4, s2, 7\n s_lshr_b32 s5, s2, 3")
    if o.get("hx"):
        a(f"s_xor_b32 s5, s5, {o['hx']}")
    a("v_lshrrev_b32 v1, 6, v0\n s_nop 0\n v_readfirstlane_b32 s6, v1")
    a(f"s_mov_b32 {TMO}, {o.get('tmo', 1 << 20)}")
    a("s_waitcnt lgkmcnt(0)")
    a.srd(8, PTR(15), WS_BYTES)
    a.srd(28, PTR(14), 256)
    if o.get("trace"):
        a(f"s_lshl_b32 s99, s2, 2\n s_add_u32 s99, s99, s6\n s_lshl_b32 s99, s99, 12\n s_add_u32 s99, s99, {OFF_TR}")
        a("v_and_b32 v1, 63, v0")
        trace(a, o, 2, 1, 1)
    if not o.get("staged"):
        a(f"s_cmp_lg_u32 s4, {T_CHAIN[1]}\n s_cbranch_scc1 L_nc")
        a("v_and_b32 v1, 63, v0\n v_lshlrev_b32 v1, 4, v1")
        for r in range(4, 8):
            a(f"v_mov_b32 v{r}, 0")
        a("s_lshl_b32 s3, s5, 2\n s_add_u32 s3, s3, s6\n s_lshl_b32 s3, s3, 10")
        for i in (4, 0, 1, 2, 3):
            a(f"s_add_u32 s7, s3, {i*0x20000}\n buffer_store_dwordx4 v[4:7], v1, {WS}, s7 offen sc1")
        a("s_waitcnt vmcnt(0)\n s_barrier")
        a("s_cmp_lg_u32 s6, 0\n s_cbranch_scc1 L_nc0")
        count_arrive(a, 2, 4, 0)
        a("L_nc0:")
        if o.get("hc", 0):
            wait_counter(a, 2, 4, 0, 32)
            a(f"s_mov_b32 s3, {(0, FPA, FPB)[o['hc']]}")
            wait_flags(a, 2, 4, "s3", sleep=8)
        a("L_nc:")
    if "pre" in roles:
        a("s_lshr_b32 s3, 0xe2, s4\n s_bitcmp0_b32 s3, 0\n s_cbranch_scc1 L_main")
        a("s_max_u32 s7, s4, 4\n s_and_b32 s7, s7, 3\n s_lshl_b32 s7, s7, 5\n s_add_u32 s7, s7, s5")
        role_pre(a, o)
        if not o.get("staged") and o.get("hold", 1):
            a("s_cmp_lt_u32 s4, 4\n s_cbranch_scc1 L_main")
            a(f"s_lshl_b32 s49, s5, 7\n s_add_u32 s49, s49, {FB + (o.get('hold', 1) - 1) * 4096}")
            wait_flags(a, 6, 5, "s49", sleep=8)
    a("L_main:")
    a("s_lshr_b32 s7, s4, 2")
    a("s_lshr_b32 s3, s5, 4\n s_lshl_b32 s3, s3, 3\n s_add_u32 s3, s3, s4")
    for l in (0, 1):
        if f"chain{l}" in roles:
            a(f"s_cmp_eq_u32 s4, {T_CHAIN[l]}\n s_cbranch_scc1 L_chain")
        if f"ao{l}" in roles:
            a(f"s_cmp_eq_u32 s4, {T_AO[l]}\n s_cbranch_scc1 L_ao")
            a(f"s_cmp_eq_u32 s3, {T_QKV[l][1]+8}\n s_cbranch_scc1 L_ao")
        if f"qkv{l}" in roles:
            a(f"s_cmp_eq_u32 s4, {T_QKV[l][0]}\n s_cbranch_scc1 L_qkv")
            a(f"s_cmp_eq_u32 s3, {T_QKV[l][1]}\n s_cbranch_scc1 L_qkv")
    a("L_end:\n s_endpgm")
    if roles & {"qkv0", "qkv1"}:
        a("L_qkv:")
        role_qkv(a, o)
        a("s_endpgm")
    if roles & {"ao0", "ao1"}:
        a("L_ao:")
        role_ao(a, o)
        a("s_endpgm")
    if roles & {"chain0", "chain1"}:
        a("L_chain:")
        role_chain(a, o)
        a("s_endpgm")
    body = hazard.fix(a.text())
    errs = hazard.check(body)
    if errs:
        raise SystemExit("hazards:\n" + "\n".join(errs))
    name = KNAME + "_kernel"
    hdr = open("header.txt").read()
    hdr += "; @launch grid=(256,1,1) block=(256,1,1) lds=163840\n.amdgcn_target \"amdgcn-amd-amdhsa--gfx950\"\n"
    return hdr + kernel_header(name) + body + "\n" + kernel_desc(name, 512, 256), name


ALL = {"pre", "qkv0", "qkv1", "chain0", "chain1", "ao0", "ao1"}

if __name__ == "__main__":
    txt, name = build(dict(roles=ALL))
    open(f"cdna_kernels/{KNAME}.s", "w").write(txt)
    print("written", len(txt), "bytes")
```

```python
S, D, H, DH, M, SEG, NS = 2048, 512, 32, 128, 8, 32, 64
WS_BYTES = 268435456
FLAG_BYTES = 0xA0000
FB = 0x0
FH = 0x80000
FP = 0x84000
FTEAM = 0x8C000
OFF_YT = 0x1400000
OFF_KVR = 0x1000000
OFF_Y = 0x300000
OFF_X = 0x500000
OFF_H = 0x900000
OFF_M = 0xD00000
OFF_P1 = 0xF00000
OFF_P2 = 0x2000000
OFF_QKV = 0x3000000
SEGB = 28672
HEADB = 0x200000 + 2176
KNAME = "interleave_layers__ssm_conv_h3__memory_aug_recurrent_mem_tr__prompt"
T_CHAIN = (0, 4)
T_AO = (1, 5)
T_KV = (2, 6)
FPA = 0x94000
FPB = 0x8C800
FD = 0x90000
OFF_TR = 0xC000000
FPE = 0x8CC00
SENT = 0xff81ff81
```

```python
from asmlib import *
from layout import *
from gen import PTR, WS, DBG, TMO, wait_flags, wait_counter, count_arrive, poll_tail, unpack, rowfin, allreduce, trace


def stage_weights(a, srds, trfn, vsrc, nslot=8, perm=False, tail=None, head="s5", extra=None, hook=None):
    a(f"v_bfe_u32 v{vsrc}, v0, 2, 2")
    if perm:
        a(f"v_and_b32 v{vsrc+1}, 2, v{vsrc}\n v_add_u32 v{vsrc}, v{vsrc}, v{vsrc+1}")
    a(f"v_lshlrev_b32 v{vsrc}, 13, v{vsrc}")
    a(f"v_bfe_u32 v{vsrc+1}, v0, 4, 2\n v_lshl_add_u32 v{vsrc}, v{vsrc+1}, 6, v{vsrc}")
    a(f"v_and_b32 v{vsrc+1}, 3, v0\n v_lshl_add_u32 v{vsrc}, v{vsrc+1}, 4, v{vsrc}")
    a(f"s_lshl_b32 s40, {head}, 8\n v_add_u32 v{vsrc}, s40, v{vsrc}")
    if perm:
        a("s_and_b32 s40, s6, 1\n s_lshl_b32 s40, s40, 5\n s_and_b32 s41, s6, 2\n s_lshl_b32 s41, s41, 6\n s_add_u32 s40, s40, s41\n s_lshl_b32 s40, s40, 13")
    else:
        a("s_lshl_b32 s40, s6, 17")
    a("s_lshl_b32 s41, s6, 12")
    chunks = [(m, c) for m in range(len(srds)) for c in range(8)]

    def issue(j):
        m, c = chunks[j]
        if extra and c == 0 and m == 1:
            a(f"s_add_u32 s40, s40, {extra}")
        for b in range(4):
            a(f"s_add_u32 m0, s41, {(j % nslot) * 16384 + b * 1024}")
            row = 256 * (c & 1) + 64 * (c >> 2) + 2 * ((c >> 1) & 1) + 8 * b if perm else 64 * c + 4 * b
            a(f"s_add_u32 s42, s40, {row * 8192}")
            a(f"buffer_load_dwordx4 v{vsrc}, {srds[m]}, s42 offen lds")

    ops = []
    issued = 0
    for j in range(min(nslot, len(chunks))):
        issue(j); ops.extend([j] * 4); issued += 1
    for j, (m, c) in enumerate(chunks):
        last = max(i for i, x in enumerate(ops) if x == j)
        a(f"s_waitcnt vmcnt({len(ops) - 1 - last})\n s_barrier")
        if hook:
            ops.extend([None] * hook(j))
        if j >= 1 and issued < len(chunks):
            issue(issued); ops.extend([issued] * 4); issued += 1
        elif j >= 1 and tail:
            ops.extend([None] * tail(j))
        trfn(m, c, (j % nslot) * 16384)
        a("s_waitcnt lgkmcnt(0)")
    a("s_barrier")


def flag_store(a, vone, vz, soff, imm=0):
    a("s_mov_b64 exec, 1")
    a(f"buffer_store_dword v{vone}, v{vz}, {WS}, {soff} offen offset:{imm} sc1")
    a("s_mov_b64 exec, -1")


def role_qkv(a, o):
    VL16, VZ, VONE, VF, VFO = 1, 2, 3, 4, 5
    HF, NB, PK, VA = 64, 4, 88, 104
    a("s_and_b32 s56, s4, 1\n s_lshl_b32 s57, s5, s56\n s_and_b32 s57, s57, 31\n s_lshl_b32 s58, s56, 8")
    a("s_cmp_lg_u32 s56, 0")
    a(f"s_cselect_b64 s[12:13], s[{PTR(8)}:{PTR(8)+1}], s[{PTR(9)}:{PTR(9)+1}]\n s_cselect_b64 s[16:17], s[{PTR(8)}:{PTR(8)+1}], s[{PTR(10)}:{PTR(10)+1}]")
    a.srd(12, 12, D * H * DH * 2)
    a.srd(16, 16, D * H * DH * 2)
    WREG = lambda m, ks: f"a[{128*m+4*ks}:{128*m+4*ks+3}]"
    a(f"v_and_b32 v{VL16}, 63, v0\n v_lshlrev_b32 v{VL16}, 4, v{VL16}")
    a(f"v_mov_b32 v{VZ}, 0\n v_mov_b32 v{VONE}, 1")
    a(f"v_and_b32 v{VFO}, 31, v0\n v_lshlrev_b32 v{VFO}, 2, v{VFO}")
    a("v_bfe_u32 v8, v0, 5, 1\n v_lshlrev_b32 v8, 11, v8")
    a("v_bfe_u32 v9, v0, 2, 2\n v_lshl_add_u32 v8, v9, 6, v8")
    a("v_bfe_u32 v9, v0, 4, 1\n v_lshl_add_u32 v8, v9, 5, v8")
    a("v_and_b32 v9, 3, v0\n v_lshl_add_u32 v8, v9, 3, v8")
    a("s_lshl_b32 s3, s6, 8\n v_add_u32 v8, s3, v8\n v_add_u32 v9, 0x10000, v8")

    def tr(m, c, base):
        for kk in range(4):
            for u in range(2):
                r = 128 * m + 4 * (4 * c + kk) + 2 * u
                off = base + kk * 4096 + u * 1024
                a(f"ds_read_b64_tr_b16 a[{r}:{r+1}], v{8 + (off >> 16)} offset:{off & 0xffff}")

    stage_weights(a, ["s[12:15]", "s[16:19]"], tr, 10, head="s57", extra="s58", nslot=o.get("kvd", 8))
    if not o.get("staged"):
        wait_counter(a, VF, VZ, 0, 32)
    a("v_and_b32 v8, 31, v0\n v_bfe_u32 v9, v0, 5, 1\n v_and_b32 v10, 15, v0\n v_xor_b32 v9, v9, v10")
    a("v_lshlrev_b32 v9, 4, v9\n v_lshl_add_u32 v8, v8, 10, v9")
    for j in range(8):
        a(f"v_xor_b32 v{VA+j}, {j << 5}, v8")
    a("v_mov_b32 v6, 0x3e0293ee\n v_and_b32 v7, 1, v0\n v_lshlrev_b32 v7, 7, v7\n v_mul_u32_u24 v7, s56, v7")
    a(f"s_lshl_b32 s3, s7, 6\n s_mov_b32 s44, 0")
    a(f"s_lshl_b32 s45, s3, 7\n s_add_u32 s45, s45, {FH}")
    a(f"s_lshl_b32 s46, s3, 15\n s_add_u32 s46, s46, {OFF_H}\n s_lshl_b32 s53, s6, 13\n s_add_u32 s46, s46, s53")
    a(f"s_lshl_b32 s3, s3, 5\n s_add_u32 s3, s3, s57")
    a(f"s_lshl_b32 s50, s3, 7\n s_lshl_b32 s47, s56, 2\n s_add_u32 s50, s50, s47")
    a(f"s_lshl_b32 s3, s7, 5\n s_add_u32 s3, s3, s57\n s_mul_i32 s47, s3, {HEADB}\n s_add_u32 s47, s47, {OFF_QKV}\n s_lshl_b32 s3, s6, 11\n s_add_u32 s47, s47, s3")
    a(f"s_lshl_b32 s3, s56, 14\n s_add_u32 s47, s47, s3\n s_mul_i32 s3, s56, {HEADB-8192}\n s_add_u32 s48, s47, 8192\n s_add_u32 s48, s48, s3")

    ACC = ((16, 32), (112, 128))

    def dma_list(buf):
        L = []
        for hh in range(2):
            for i in range(4):
                pre = (f"s_add_u32 m0, s53, {buf*32768}\n s_add_u32 s3, s46, 4096\n" if hh == 0 else f"s_add_u32 m0, s53, {buf*32768+4096}\n s_add_u32 s45, s45, 128\n") if i == 0 else ""
                L.append(pre + f"buffer_load_dwordx4 v{VL16}, {WS}, {('s46', 's3')[hh]} offen offset:{i*1024} sc1 lds")
        L[-1] += "\n s_add_u32 s46, s46, 32768"
        return L

    def epi(q, acc2):
        G = []
        for mi, acc in enumerate(acc2):
            isv = mi == 1 and not q
            for hh in range(2):
                g = []
                for i in range(4 * hh, 4 * hh + 4):
                    if isv:
                        r0 = acc + 4 * (i >> 2) + 8 * ((i >> 1) & 1) + 2 * (i & 1); r1 = r0 + 1
                    else:
                        r0 = acc + 8 * (i >> 2) + (i & 3); r1 = r0 + 4
                    if q:
                        g += [f"v_mul_f32 v{r0}, v6, v{r0}", f"v_mul_f32 v{r1}, v6, v{r1}"]
                    g.append(f"v_cvt_pk_bf16_f32 v{PK+8*mi+i}, v{r0}, v{r1}")
                b = PK + 8 * mi + 4 * hh
                g.append(f"buffer_store_dwordx4 v[{b}:{b+3}], v{VL16}, {WS}, {('s60', 's61')[mi]} offen offset:{hh*1024} sc1")
                G.append(g)
        if not q:
            G.append([f"s_add_u32 s3, s60, s49\n buffer_store_dwordx4 v[48:51], v{VL16}, {WS}, s3 offen sc1"])
        return G

    ARR = lambda p: f"s_mov_b64 exec, s[54:55]\n ds_add_rtn_u32 v11, v12, v{VONE} offset:{4*p}\n s_mov_b64 exec, -1"
    FL = f"v_readfirstlane_b32 s3, v11\n s_and_b32 s3, s3, 3\n s_cmp_eq_u32 s3, 3\n s_cselect_b32 s3, s62, s63\n buffer_store_dword v{VONE}, v7, {WS}, s3 offen sc1"
    SAMPLE = f"buffer_load_dword v{VF}, v{VFO}, {WS}, s45 offen sc1"
    ADV = (f"s_mov_b32 s60, s47\n s_mov_b32 s61, s48\n s_mov_b32 s62, s50\n s_mov_b64 s[54:55], 1", f"s_add_u32 s47, s47, {SEGB}\n s_add_u32 s48, s48, {SEGB}",
           f"s_add_u32 s50, s50, {32*128}\n s_add_u32 s44, s44, 1")
    hf = lambda j: f"v[{HF+4*(j%NB)}:{HF+4*(j%NB)+3}]"
    rd = lambda j, buf: a(f"ds_read_b128 {hf(j)}, v{VA+(j&7)} offset:{buf*32768+(j>>3)*256}")

    def choose(T, par):
        a(f"v_cmp_eq_u32 vcc, 0, v{VF}\n s_cmp_ge_u32 s44, 63\n s_cbranch_scc1 L_{T}{par}B\n s_cbranch_vccnz L_{T}{par}B\n s_branch L_{T}{par}A")

    trace(a, o, 10, VZ, 6)
    a("s_lshl_b32 s3, s6, 10\n s_sub_u32 s49, 24576, s3")
    for r in range(48, 52):
        a(f"v_mov_b32 v{r}, {SENT:#x}")
    a(f"s_mov_b32 s63, 0x20000000\n v_mov_b32 v12, 0x10000\n v_mov_b32 v11, 0\n ds_write2_b32 v12, v{VZ}, v{VZ} offset1:1\n s_waitcnt lgkmcnt(0)")
    a(f"v_mov_b32 v{VF}, 0\n s_cmp_lg_u32 s56, 0\n s_cbranch_scc1 L_qq1W\n s_branch L_kv1W")

    def mm(q, par, j, t):
        A = ACC[par][t]
        ops = f"{WREG(t,j)}, {hf(j)}" if (q or t == 0) else f"{hf(j)}, {WREG(t,j)}"
        a(f"v_mfma_f32_32x32x16_bf16 v[{A}:{A+15}], {ops}, " + (f"v[{A}:{A+15}]" if j else "0"))

    def one_pass(T, q, par, var):
        a(f"L_{T}{par}{var}:")
        trace(a, o, 10, VZ, 7)
        fill = {}
        g = 4
        j1, j2 = o.get("j1", 11), o.get("j2", 24)
        if var == "A":
            for i, x in enumerate(dma_list(1 - par) + [SAMPLE]):
                fill[i] = [x]
            g = 9
        for grp in epi(q, ACC[1 - par]):
            per = 4
            for k in range(0, len(grp), per):
                fill[g] = grp[k:k + per]; g += 1
        if var == "A":
            fill[55] = ["s_waitcnt vmcnt(0)", ARR(1 - par)]
            fill[58] = [FL]
            fill[50] = [ADV[0].replace("s_mov_b32 s62, s50\n s_mov_b64 s[54:55], 1", "s_mov_b32 s51, s50")]
            fill[60] = ["s_mov_b32 s62, s51\n s_mov_b64 s[54:55], 1"]
        else:
            fill[1] = [SAMPLE, "s_mov_b32 s52, 0"]
            fill[2 * j2 - 10] = [SAMPLE]
            fill[2 * j2 + 8] = [FL]
            fill[50] = fill.get(50, []) + [ADV[0].replace("s_mov_b32 s62, s50\n s_mov_b64 s[54:55], 1", "s_mov_b32 s51, s50")]
            fill[57] = ["s_mov_b32 s62, s51\n s_mov_b64 s[54:55], 1"]
        fill[51] = [ADV[1]]; fill[53] = [ADV[2]]
        for j in range(32):
            if j == 29:
                if var == "B":
                    a(f"s_cmp_lg_u32 s52, 1\n s_cbranch_scc1 L_{T}{par}T")
                a(f"s_waitcnt vmcnt({0 if var == 'A' else 1}) lgkmcnt(0)\n s_barrier")
            if j + NB - 1 < 32:
                rd(j + NB - 1, par)
                a(f"s_waitcnt lgkmcnt({NB-1})")
            else:
                rd(j + NB - 1 - 32, 1 - par)
            for t in range(2):
                mm(q, par, j, t)
                for x in fill.get(2 * j + t, []):
                    a(x)
            if var == "B" and j in (j1, j2):
                sk = a.label("Lq")
                if j == j1:
                    a(f"s_waitcnt vmcnt({4 if q else 5})")
                else:
                    a(f"s_cmp_lg_u32 s52, 0\n s_cbranch_scc0 {sk}a\n s_waitcnt vmcnt(9)")
                    a(ARR(1 - par))
                    a(f"s_branch {sk}x")
                    a(f"{sk}a:")
                    a("s_waitcnt vmcnt(0)")
                    a(ARR(1 - par))
                a(f"v_cmp_eq_u32 vcc, 0, v{VF}\n s_cmp_ge_u32 s44, 63\n s_cbranch_scc1 {sk}\n s_cbranch_vccnz {sk}")
                for x in dma_list(1 - par):
                    a(x)
                a(f"s_mov_b32 s52, {1 if j == j1 else 2}")
                a(f"{sk}:")
                a(f"{sk}x:")
        choose(T, 1 - par)
        if var == "B":
            a(f"L_{T}{par}T:")
            a("s_waitcnt lgkmcnt(0)")
            a(SAMPLE)
            for j in range(29, 32):
                for t in range(2):
                    mm(q, par, j, t)
            for grp in epi(q, ACC[par]):
                for x in grp:
                    a(x)
            a(f"s_cmp_eq_u32 s52, 2\n s_cbranch_scc0 L_{T}{par}X\n s_waitcnt vmcnt(0)\n s_branch L_{T}{par}Y")
            a(f"L_{T}{par}X:")
            a(f"s_waitcnt vmcnt({4 if q else 5})\n v_cmp_eq_u32 vcc, 0, v{VF}\n s_cmp_ge_u32 s44, 64\n s_cbranch_scc1 L_{T}{par}U\n s_cbranch_vccnz L_{T}{par}U")
            for x in dma_list(1 - par):
                a(x)
            a(SAMPLE)
            a("s_waitcnt vmcnt(9)")
            a(f"L_{T}{par}Y:")
            a(ARR(par))
            a("s_waitcnt lgkmcnt(0)")
            a(FL)
            a("s_mov_b32 s60, s63\n s_mov_b32 s61, s63\n s_mov_b32 s62, s63\n s_mov_b64 s[54:55], 0")
            a(f"s_waitcnt vmcnt(1)\n s_branch L_{T}{par}V")
            a(f"L_{T}{par}U:")
            a("s_waitcnt vmcnt(0)")
            a(SAMPLE)
            a(ARR(par))
            a("s_waitcnt lgkmcnt(0)")
            a(FL)
            a("s_cmp_ge_u32 s44, 64\n s_cbranch_scc1 L_end\n s_waitcnt vmcnt(1)")
            a(f"L_{T}{par}W:")
            a("s_mov_b32 s60, s63\n s_mov_b32 s61, s63\n s_mov_b32 s62, s63\n s_mov_b64 s[54:55], 0")
            s2 = a.label("Lq")
            a(f"v_cmp_eq_u32 vcc, 0, v{VF}\n s_cbranch_vccz {s2}")
            wait_flags(a, VF, VFO, "s45", sleep=o.get("slq", 1))
            a(f"{s2}:")
            for x in dma_list(1 - par):
                a(x)
            a(SAMPLE)
            a("s_waitcnt vmcnt(0)")
            a(f"L_{T}{par}V:")
            a("s_barrier")
            for j in range(NB - 1):
                rd(j, 1 - par)
            choose(T, 1 - par)

    for T, q in (("kv", False), ("qq", True)):
        for par in range(2):
            for var in "AB":
                one_pass(T, q, par, var)


def team_publish(a, vtmp, vz):
    sk = a.label("Ltp")
    a(f"s_cmp_lg_u32 s6, 0\n s_cbranch_scc1 {sk}")
    a("s_getreg_b32 s3, hwreg(HW_REG_XCC_ID)\n s_and_b32 s3, s3, 15\n s_add_u32 s3, s3, 1")
    a(f"v_mov_b32 v{vtmp}, s3")
    a(f"s_lshl_b32 s3, s4, 5\n s_add_u32 s3, s3, s5\n s_lshl_b32 s3, s3, 2\n s_add_u32 s3, s3, {FTEAM}")
    flag_store(a, vtmp, vz, "s3")
    a(f"{sk}:")


def team_wait(a, vtmp, voff, mixed_label, n=32):
    a(f"v_and_b32 v{voff}, {n-1}, v0\n v_lshlrev_b32 v{voff}, 2, v{voff}")
    a(f"s_lshl_b32 s40, s4, 7\n s_add_u32 s40, s40, {FTEAM}\n s_and_b32 s3, s5, {32-n}\n s_lshl_b32 s3, s3, 2\n s_add_u32 s40, s40, s3")
    wait_flags(a, vtmp, voff, "s40")
    a(f"v_readfirstlane_b32 s3, v{vtmp}")
    a(f"v_cmp_ne_u32 vcc, s3, v{vtmp}")
    a(f"s_cbranch_vccnz {mixed_label}")


def nops(a, cyc):
    n = cyc // 4
    while n > 0:
        k = min(n, 16)
        a(f"s_nop {k-1}")
        n -= k


def role_chain(a, o):
    MX, OX, KX, QX = 0x20000, 0x22000, 0x24000, 0x26000
    VL16, VIDX, VMX, VQW, VQR, VKX, VVX, VPF, VWO, VP1S, VKMS, VMS, VOR, VL8, VF = range(1, 16)
    RM, RK, AQ, AK, AV, QF, VX = 16, 48, 80, 88, 96, 104, 120
    prof = o.get("prof")
    CLK = "s_memrealtime" if o.get("rt") else "s_memtime"
    a.srd(12, PTR(8), D * H * DH * 2)
    a.srd(16, PTR(9), D * H * DH * 2)
    a.srd(20, PTR(10), D * H * DH * 2)
    a.srd(24, PTR(11), D * H * DH * 2)
    a.srd(32, PTR(7), M * D * 2)
    a(f"v_and_b32 v{VL16}, 63, v0\n v_lshlrev_b32 v{VL16}, 4, v{VL16}")
    a("v_and_b32 v20, 15, v0\n v_bfe_u32 v21, v0, 4, 2\n v_mov_b32 v22, 0")
    a(f"s_mov_b32 s62, {SENT:#x}")
    for r in range(24, 28):
        a(f"v_mov_b32 v{r}, s62")
    a(f"s_lshl_b32 s46, s7, 20\n s_add_u32 s46, s46, {OFF_M}")
    a(f"s_lshl_b32 s47, s7, 19\n s_add_u32 s47, s47, {OFF_P1}")
    a("s_lshl_b32 s43, s6, 5\n s_add_u32 s43, s43, s5")
    a("s_lshl_b32 s52, s43, 11\n s_add_u32 s52, s52, s47")
    for r in range(16, 20):
        a(f"v_mov_b32 v{r}, 0")
    for i in range(2):
        a(f"buffer_store_dwordx4 v[16:19], v{VL16}, {WS}, s52 offen offset:{i*1024} sc1")
    a("v_lshlrev_b32 v23, 13, v21\n v_lshl_add_u32 v23, v20, 4, v23")
    a("s_lshl_b32 s3, s6, 17\n s_add_u32 s3, s3, s46\n s_lshl_b32 s40, s5, 8\n s_add_u32 s3, s3, s40\n s_add_u32 s3, s3, 8192")
    for i in range(4):
        a(f"buffer_store_dwordx4 v[24:27], v23, {WS}, s3 offen sc1")
        a("s_add_u32 s3, s3, 0x8000")
    a(f"v_lshlrev_b32 v{VMS}, 4, v21\n v_and_b32 v28, 3, v20\n v_lshl_add_u32 v{VMS}, v28, 2, v{VMS}")
    a(f"s_lshl_b32 s3, s43, 6\n v_add_u32 v{VMS}, s3, v{VMS}")
    a("v_and_b32 v23, 1, v21\n v_lshlrev_b32 v23, 10, v23\n v_lshl_add_u32 v23, v28, 4, v23\n v_and_b32 v29, 2, v21\n v_lshl_add_u32 v23, v29, 2, v23")
    a("s_and_b32 s3, s5, 3\n s_lshl_b32 s3, s3, 11\n s_lshr_b32 s40, s5, 3\n s_lshl_b32 s40, s40, 8\n s_add_u32 s3, s3, s40")
    a("s_and_b32 s40, s5, 4\n s_lshl_b32 s40, s40, 4\n s_add_u32 s3, s3, s40\n s_and_b32 s40, s6, 2\n s_lshl_b32 s40, s40, 6\n s_add_u32 s3, s3, s40")
    a("s_and_b32 s40, s6, 1\n s_lshl_b32 s40, s40, 2\n s_add_u32 s3, s3, s40")
    a("buffer_load_dword v28, v23, s[32:35], s3 offen")
    a("v_lshlrev_b32 v8, 11, v21\n v_bfe_u32 v9, v0, 2, 2\n v_lshl_add_u32 v8, v9, 6, v8")
    a("s_lshl_b32 s3, s6, 8\n v_add_u32 v8, s3, v8")
    a("v_and_b32 v9, 1, v0\n v_lshl_add_u32 v6, v9, 3, v8\n v_and_b32 v9, 2, v0\n v_lshl_add_u32 v6, v9, 4, v6\n v_add_u32 v7, 0x10000, v6")
    a("v_and_b32 v9, 3, v0\n v_lshl_add_u32 v8, v9, 3, v8\n v_add_u32 v9, 0x10000, v8")

    def wreg(m, t, j, lo=0, n=8):
        b = (t * 8 + j) * 8 + lo
        return f"a[{128*m+b}:{128*m+b+n-1}]" if m < 2 else f"v[{128+b}:{128+b+n-1}]"

    def tr(m, c, base):
        L = [a.label("Lt") for _ in range(5)]
        a(f"s_cmp_eq_u32 s6, 1\n s_cbranch_scc1 {L[1]}\n s_cmp_eq_u32 s6, 2\n s_cbranch_scc1 {L[2]}\n s_cmp_eq_u32 s6, 3\n s_cbranch_scc1 {L[3]}")
        for w in range(4):
            if w:
                a(f"{L[w]}:")
            for t in range(2):
                for q in range(4):
                    off = base + (q >> 1) * 8192 + (q & 1) * 1024 + t * (32 if m == 2 else 16)
                    a(f"ds_read_b64_tr_b16 {wreg(m, t, c ^ (2 * w), 2 * q, 2)}, v{(8 if m == 2 else 6) + (off >> 16)} offset:{off & 0xffff}")
            if w < 3:
                a(f"s_branch {L[4]}")
        a(f"{L[4]}:")

    a("v_and_b32 v5, 1, v21\n v_lshlrev_b32 v5, 14, v5\n v_lshrrev_b32 v10, 1, v21\n v_lshl_add_u32 v5, v10, 12, v5")
    a("v_lshl_add_u32 v5, v20, 3, v5\n s_lshl_b32 s3, s6, 8\n v_add_u32 v5, s3, v5")
    a("s_mov_b32 s60, 0x05040100\n s_mov_b32 s61, 0x07060302\n s_lshl_b32 s55, s5, 17")
    groups = [(jc, i) for jc in range(4) for i in range(2)]
    RES = {(1, 2): 0, (1, 3): 64, (2, 2): 8, (2, 3): 72}
    NL = 5
    LD = lambda gi: 48 + 16 * (gi % NL)
    nxt = [0]

    def wo_issue(_=None):
        gi = nxt[0]
        if gi >= NL and _ is not None:
            return 0
        nxt[0] += 1
        jc, i = groups[gi]
        a(f"s_xor_b32 s3, s6, {jc}\n s_lshl_b32 s3, s3, 15\n s_add_u32 s3, s3, s55\n s_add_u32 s3, s3, {i*128}\n s_add_u32 s42, s3, 8192")
        for u in range(2):
            for v in range(2):
                for e in range(2):
                    r = LD(gi) + 8 * u + 4 * v + 2 * e
                    a(f"buffer_load_dwordx2 v[{r}:{r+1}], v5, s[24:27], {'s42' if u else 's3'} offen offset:{(2*v+e)*1024}")
        return 8

    def hook(j):
        if j == 3:
            a("v_or_b32 v29, 64, v28\n v_cmp_eq_u32 vcc, s62, v28\n v_cndmask_b32 v28, v28, v29, vcc")
            a(f"buffer_store_dword v28, v{VMS}, {WS}, s46 offen sc1")
            a(f"buffer_load_dword v30, off, {DBG}, 0 sc1")
            return 2
        if j == 11:
            if not o.get("staged"):
                sk = a.label("Lsk")
                a(f"v_cmp_gt_u32 vcc, 32, v30\n s_cbranch_vccz {sk}")
                wait_counter(a, 23, 22, 0, 32)
                a(f"{sk}:")
            team_publish(a, 23, 22)
        return 0

    mo = ((0, 1, 2), (1, 2, 0), (2, 1, 0), (2, 0, 1))[o.get("mo", 1)]
    stage_weights(a, [f"s[{12+4*m}:{15+4*m}]" for m in mo], lambda m, c, b: tr(mo[m], c, b), 10, perm=True, tail=wo_issue, hook=hook)
    while nxt[0] < NL:
        wo_issue()
    a("s_lshl_b32 s3, s7, 11\n s_add_u32 s3, s3, s5\n s_lshl_b32 s49, s3, 7")
    a(f"s_lshl_b32 s3, s7, 5\n s_add_u32 s3, s3, s5\n s_mul_i32 s48, s3, {HEADB}\n s_add_u32 s48, s48, {OFF_QKV}\n s_add_u32 s50, s48, 24576\n s_lshl_b32 s40, s6, 12\n s_add_u32 s40, s48, s40\n v_lshlrev_b32 v16, 2, v{VL16}")
    a(f"buffer_load_dword v{VF}, off, {WS}, s49 sc1\n buffer_load_dword v17, v16, {WS}, s40 offen sc1")
    a(f"s_add_u32 s3, s46, 8192\n buffer_load_dword v17, v{VMS}, {WS}, s46 offen sc1\n buffer_load_dword v17, v{VMS}, {WS}, s3 offen sc1")
    a(f"v_lshlrev_b32 v16, 1, v{VL16}\n buffer_load_dword v17, v16, {WS}, s52 offen sc1")
    a(f"s_lshl_b32 s3, s4, 7\n s_add_u32 s3, s3, {FTEAM}\n buffer_load_dword v17, off, {WS}, s3 sc1")
    NX = 6
    trace(a, o, 23, VL16, 6)
    a(f"s_lshl_b32 s3, s6, 15\n v_add_u32 v{VWO}, s3, v{VL16}")
    for gi, (jc, i) in enumerate(groups):
        a(f"s_waitcnt vmcnt({8*(nxt[0]-gi-1) + (NX if gi < NL else 0)})")
        for sel in range(2):
            for u in range(2):
                for v in range(2):
                    for z in range(2):
                        r = LD(gi) + 8 * u + 4 * v + sel
                        a(f"v_perm_b32 v{32+8*sel+4*u+2*v+z}, v{r+2}, v{r}, s{60+z}")
        if nxt[0] < 8:
            wo_issue()
        for sel in range(2):
            res = RES.get((jc, 2 * i + sel))
            for hh in range(2):
                src = f"v[{32+8*sel+4*hh}:{35+8*sel+4*hh}]" if res is None else f"a[{res+4*hh}:{res+4*hh+3}]"
                a(f"ds_write_b128 v{VWO}, {src} offset:{(jc*4+2*i+sel)*2048+hh*1024}")
        a("s_waitcnt lgkmcnt(0)")
        for sel in range(2):
            res = RES.get((jc, 2 * i + sel))
            if res is not None:
                for r in range(8):
                    a(f"v_accvgpr_write_b32 a{res+r}, v{32+8*sel+r}")
    a(f"v_mov_b32 v{VIDX}, 0x4444\n v_bfe_u32 v23, v20, 1, 1\n v_mul_u32_u24 v23, 0xaaaa, v23\n v_or_b32 v{VIDX}, v{VIDX}, v23")
    a(f"s_lshl_b32 s3, s6, 11\n s_add_u32 s3, s3, {MX}\n v_add_u32 v{VMX}, s3, v{VL16}")
    a(f"v_mul_u32_u24 v23, 1088, v21\n v_lshl_add_u32 v23, v20, 2, v23\n s_lshl_b32 s3, s6, 6\n s_add_u32 s3, s3, {QX}\n v_add_u32 v{VQW}, s3, v23")
    a(f"v_mul_u32_u24 v23, 272, v20\n v_lshl_add_u32 v23, v21, 4, v23\n v_add_u32 v{VQR}, {QX}, v23")
    a(f"v_and_b32 v23, 1, v21\n v_lshlrev_b32 v23, 5, v23\n v_or_b32 v{VOR}, 32, v{VMX}\n v_xor_b32 v{VOR}, v{VOR}, v23\n v_lshrrev_b32 v{VL8}, 1, v{VL16}")
    a(f"v_lshlrev_b32 v23, 9, v21\n v_lshl_add_u32 v{VVX}, v20, 4, v23\n v_add_u32 v{VKX}, {KX}, v{VVX}")
    a(f"v_lshrrev_b32 v23, 3, v20\n v_lshl_add_u32 v23, v23, 2, v21\n v_lshlrev_b32 v23, 11, v23\n v_and_b32 v25, 7, v20\n v_lshl_add_u32 v23, v25, 3, v23")
    a(f"s_lshl_b32 s3, s6, 14\n s_lshl_b32 s40, s5, 6\n s_add_u32 s3, s3, s40\n v_add_u32 v{VP1S}, s3, v23")
    a(f"v_and_b32 v23, 12, v20\n v_bfe_u32 v25, v20, 1, 1\n v_add_u32 v23, v23, v25\n v_mul_u32_u24 v23, 272, v23\n v_lshl_add_u32 v23, v21, 4, v23")
    a(f"v_and_b32 v25, 1, v20\n v_lshl_add_u32 v23, v25, 3, v23\n s_lshl_b32 s3, s6, 6\n s_add_u32 s3, s3, {QX}\n v_add_u32 v{VKMS}, s3, v23")
    a(f"v_lshlrev_b32 v{VPF}, 7, v20\n v_lshl_add_u32 v{VPF}, v21, 13, v{VPF}")
    a(f"v_cmp_eq_u32 vcc, 2, v21\n v_cndmask_b32 v{VPF}, v{VPF}, v22, vcc")
    a(f"v_cmp_eq_u32 vcc, 3, v21\n v_cndmask_b32 v{VPF}, v{VPF}, v{VMS}, vcc")
    a("s_lshl_b32 s3, s7, 11\n s_add_u32 s3, s3, s5")
    a("s_lshl_b32 s40, s6, 11\n s_add_u32 s48, s48, s40")
    a(f"s_lshl_b32 s63, s6, 9\n s_add_u32 s50, s50, s63")
    a("s_mov_b32 s51, 0x20000000")
    a("s_lshl_b32 s41, s6, 29\n s_add_u32 s59, s49, s41\n s_sub_u32 s59, s59, 4064")
    a(f"s_add_u32 s45, s46, s40\n s_add_u32 s46, s46, 8192\n s_add_u32 m0, s40, {KX}")
    a("s_mov_b32 s44, 0\n s_mov_b32 s54, 0x3e0293ee")
    a("s_mov_b32 s56, 0\n s_mov_b32 s57, 0xffff\n s_mov_b32 s36, 0\n s_mov_b32 s37, 0xffff0000")
    for d in range(4):
        m = (3 << (4 * d)) * 0x00010001
        a(f"s_mov_b32 s{64+2*d}, {m:#x}\n s_mov_b32 s{65+2*d}, {m:#x}")
    a("s_mov_b32 s72, 0x000f000f\n s_mov_b32 s73, 0x000f000f\n s_mov_b32 s74, 0xcccccccc\n s_mov_b32 s75, 0xcccccccc")
    a("s_mov_b32 s38, 0x3f803f80\n s_mov_b32 s39, 0x3f803f80\n s_add_u32 s58, s47, 0x10000\n s_add_u32 s60, s47, 0x20000\n s_add_u32 s61, s47, 0x30000")

    trace(a, o, 23, VL16, 9)
    a("s_mov_b32 s53, 0")
    team_wait(a, 24, 25, "L_chain_mixed_pre")
    a("s_branch L_chain_pure_pre")

    def sm(acc, A, B, mod=""):
        a(f"v_smfmac_f32_16x16x64_bf16 v[{acc}:{acc+3}], v[{A}:{A+3}], {B}, v{VIDX}{mod}")

    def proj(m, t, j):
        B = f"v[{RK+16*j+8*t}:{RK+16*j+8*t+7}]" if m == 0 and j < 2 else wreg(m, t, j)
        sm((AQ, AK, AV)[m] + 4 * t, RM + 4 * j, B)

    def early():
        for j in range(2):
            for t in range(2):
                for hh in range(2):
                    r = RK + 16 * j + 8 * t + 4 * hh
                    a(f"ds_read_b128 v[{r}:{r+3}], v{VWO} offset:{(j*4+6+t)*2048+hh*1024}")

    def halves(acc):
        return [f"v_add_f32 v{acc}, v{acc}, v{acc+2}", f"v_add_f32 v{acc+1}, v{acc+1}, v{acc+3}",
                f"v_add_f32 v{acc+4}, v{acc+4}, v{acc+6}", f"v_add_f32 v{acc+5}, v{acc+5}, v{acc+7}",
                f"v_cvt_pk_bf16_f32 v{acc+2}, v{acc}, v{acc+1}", f"v_cvt_pk_bf16_f32 v{acc+3}, v{acc+4}, v{acc+5}"]

    def poll(dst, voff, soff):
        return lambda: (a(f"buffer_load_dwordx4 v[{dst}:{dst+3}], v{voff}, {WS}, {soff} offen sc1"),
                        a(f"buffer_load_dwordx4 v[{dst+4}:{dst+7}], v{voff}, {WS}, {soff} offen offset:1024 sc1"))

    def stamp(i):
        if prof and (prof >> i) & 1:
            a(f"{CLK} s[76:77]\n s_waitcnt lgkmcnt(0)\n s_sub_u32 s3, s76, s78\n s_add_u32 s{80+i}, s{80+i}, s3\n s_mov_b32 s78, s76")

    def check2(R, t0):
        a(f"v_max_u32 v{t0}, v{R}, v{R+4}\n v_cmp_eq_u32 vcc, s62, v{t0}")

    def check1(R, t0):
        a(f"v_bitop3_b32 v{t0}, v{R}, v{R+2}, s53 bitop3:0x7e\n v_bitop3_b32 v{t0+1}, v{R+4}, v{R+6}, s53 bitop3:0x7e")
        a(f"v_bitop3_b32 v{t0}, v{t0}, v{t0+1}, 1 bitop3:0xa8\n v_cmp_ne_u32 vcc, 0, v{t0}")

    def warm(n, r):
        if o.get("wm", 2) == 3:
            if n >= 16:
                a(f"s_sleep {n // 16}")
            n %= 16
        while n > 0:
            k = min(n, 4)
            if k > 1:
                a(f"s_nop {k-2}")
            a(f"v_mov_b32 v{r}, 0")
            n -= k

    LAND = [RM, RM + 8, RM + 16, RM + 24, RK, RK + 8, RK + 16, RK + 24, VX, QF + 8]
    WACC = [QF, QF + 4, AV, AV + 4]
    order = [(0, np_) for np_ in range(4)] + [(jc, np_) for np_ in range(4) for jc in (1, 2, 3)]
    slot_of = [0, 1, 2, 3, 4, 5, 6, 7, 8, 9, None, None, 0, None, None, 1]

    def landl(k):
        jc, np_ = order[k]
        r = LAND[slot_of[k]]
        return [f"ds_read_b128 v[{r}:{r+3}], v{VWO} offset:{(jc*4+np_)*2048}", f"ds_read_b128 v[{r+4}:{r+7}], v{VWO} offset:{(jc*4+np_)*2048+1024}"]

    def land(k):
        for x in landl(k):
            a(x)

    def wo(k):
        jc, np_ = order[k]
        B = f"a[{RES[order[k]]}:{RES[order[k]]+7}]" if order[k] in RES else f"v[{LAND[slot_of[k]]}:{LAND[slot_of[k]]+7}]"
        sm(WACC[np_], AQ + 4 * jc, B)

    def loop(mode):
        st = "" if mode == "pure" else " sc1"
        T = f"chain_{mode}"
        outl = []
        PR = (12, 14, 16, 18, 20, 22, 24, 26)
        XS = " sc1"

        KR = [f"ds_read_b128 v[{RK+4*i}:{RK+4*i+3}], v{VKX} offset:{(i>>1)*2048+(i&1)*256}" for i in range(8)]

        def prep_b():
            a("s_add_u32 s42, s48, 8192\n s_mov_b32 s55, s48")
            a(f"s_cmp_lt_u32 s44, 63\n s_cselect_b32 s40, {SEGB}, 0\n s_cselect_b32 s41, 4096, 0\n s_add_u32 s48, s48, s40")
            a(f"s_add_u32 s49, s49, s41\n s_add_u32 s3, s46, 8192")
            a(f"v_mov_b32 v{QF}, s48\n v_mov_b32 v{QF+8}, s49\n v_mov_b32 v{QF+9}, s3")
            a(f"v_cndmask_b32 v{QF}, v{QF}, v{QF+8}, s[56:57]\n v_cndmask_b32 v{QF}, v{QF}, v{QF+9}, s[36:37]\n v_add_u32 v{QF}, v{QF}, v{VPF}")
            for jj in (1, 2, 3):
                a(f"v_xor_b32 v{QF+jj}, {jj << 11}, v{VMX}")
            a("s_xor_b32 s53, s53, 1")

        a(f"L_{T}_pre:")
        a(f"v_mov_b32 v0, 0x3f80\n v_mov_b32 v23, 0x3f800000\n s_mov_b32 s40, 0xaaaaaaaa\n s_mov_b32 s41, 0xaaaaaaaa")
        a("v_cndmask_b32 v0, v0, v23, s[40:41]")
        early()
        if prof:
            for i in range(16):
                a(f"s_mov_b32 s{80+i}, 0")
            a(f"{CLK} s[78:79]\n s_waitcnt lgkmcnt(0)")
        a(f"s_branch L_{T}\n .p2align 6")
        for _ in range(o.get("sh", 0)):
            a("s_nop 0")
        a(f"L_{T}:")
        a(f"v_cmp_eq_u32 vcc, 0, v{VF}\n s_and_b64 vcc, vcc, s[56:57]\n s_cbranch_scc1 L_{T}_kvw")
        a(f"L_{T}_kvr:")
        if o.get("pb", 0) == 0:
            prep_b()
        warm(o.get("d2", 14), QF + 4)
        poll(RM, VL16, "s45")()
        if o.get("pb", 0) == 1:
            prep_b()
        for r in range(AQ, AQ + 24, 2):
            a(f"v_mov_b64 v[{r}:{r+1}], 0")
        warm(o.get("g2", 24), QF + 4)
        poll(QF + 8, VL16, "s45")()
        warm(o.get("w2", 0), QF + 4)
        a(".p2align 5")
        for _ in range(o.get("al", 1)):
            a(f"v_mov_b32 v{QF+4}, 0")
        a("s_waitcnt vmcnt(2) lgkmcnt(0)")
        check2(RM, QF + 4)
        a(f"s_cbranch_vccnz L_{T}_h2r")
        WR = [f"ds_write_b128 v{VMX}, v[{RM}:{RM+3}]", f"ds_write_b128 v{VMX}, v[{RM+4}:{RM+7}] offset:1024"]
        a(f"L_{T}_h2:")
        outl.append((f"L_{T}_h2r", f"L_{T}_h2", RM, QF + 8, VX, "s45", lambda R: check2(R, QF + 4), 90))
        stamp(0)
        mark = len(a.lines)
        nv = o.get("nv", 3)
        VP = [(2, t, j) for j in range(8) for t in range(2)]
        P = [(m, t, j) for m in range(2) for j in range(2) for t in range(2)]
        P = VP[:nv] + P + [(m, t, j) for m in range(2) for j in range(2, 8) for t in range(2)] + VP[nv:]
        b0 = nv + 1
        F = {0: [WR[0]], 1: [WR[1]]} if nv else {0: WR}
        put = lambda i, L: F.setdefault(i, []).extend(L)
        put(b0, ["s_waitcnt lgkmcnt(0)", "s_barrier"])
        for j in range(2, 8):
            put(b0 + j - 2, [f"ds_read_b128 v[{RM+4*j}:{RM+4*j+3}], v{QF+(j>>1)} offset:{(j&1)*1024}"])
        put(b0 + 6, [f"buffer_load_dwordx4 v{VL16}, {WS}, s55 offen sc1 lds"])
        put(b0 + 7, ["s_waitcnt lgkmcnt(4)"])
        put(b0 + 8, [f"buffer_load_dwordx4 v{VL16}, {WS}, s55 offen offset:1024 sc1 lds"])
        put(b0 + 10, [f"buffer_load_dwordx4 v[{VX}:{VX+3}], v{VVX}, {WS}, s42 offen sc1"])
        put(b0 + 11, ["s_waitcnt lgkmcnt(2)"])
        put(b0 + 12, [f"buffer_load_dwordx4 v[{VX+4}:{VX+7}], v{VVX}, {WS}, s42 offen offset:256 sc1"])
        put(b0 + 15, ["s_waitcnt lgkmcnt(0)"])
        kl = o.get("kl", 0)
        if kl:
            put(b0 + 13, [f"ds_read_b64 v[{RK}:{RK+1}], v{VKMS}"])
            put(b0 + 14, [f"ds_read_b64 v[{RK+2}:{RK+3}], v{VMX} offset:{OX-MX+1024}"])
            F[b0 + 15] = ["s_waitcnt lgkmcnt(2)"]
            put(b0 + 19, ["s_waitcnt lgkmcnt(0)"])
            put(b0 + 20, [f"buffer_store_dwordx2 v[{RK}:{RK+1}], v{VL8}, {WS}, s51 offen sc1"])
            put(b0 + 21, [f"buffer_store_dwordx2 v[{RK+2}:{RK+3}], v{VL8}, {WS}, s51 offen offset:2048 sc1"])
            put(b0 + 22, [f"buffer_load_dword v{VF}, v{QF}, {WS}, 0 offen sc1"])
        else:
            put(b0 + o.get("hp", 18), [f"buffer_store_dword v{VIDX}, off, {WS}, s59 sc1"])
            put(b0 + o.get("pfp", 19), [f"buffer_load_dword v{VF}, v{QF}, {WS}, 0 offen sc1"])
            put(b0 + 9, ["s_add_u32 s59, s59, 4096"])
            put(b0 + 20, ["s_nop 0"])
            for i in (21, 22):
                put(b0 + i, ["s_nop 0"])
        ns = 3 if kl else 2
        Eq = [f"v_add_f32 v{AQ+r}, v{AQ+r}, v{AQ+r+2}" for r in (0, 1, 4, 5)] + [f"v_mul_f32 v{AQ+r}, s54, v{AQ+r}" for r in (0, 1, 4, 5)]
        Eq += [f"v_cvt_pk_bf16_f32 v{AQ+2}, v{AQ}, v{AQ+4}", f"v_cvt_pk_bf16_f32 v{AQ+3}, v{AQ+1}, v{AQ+5}",
               f"ds_write2_b32 v{VQW}, v{AQ+2}, v{AQ+3} offset0:136 offset1:204"]
        Ek = [f"v_add_f32 v{AK+r}, v{AK+r}, v{AK+r+2}" for r in (0, 1, 4, 5)]
        Ek += [f"v_cvt_pk_bf16_f32 v{AK+2}, v{AK}, v{AK+4}", f"v_cvt_pk_bf16_f32 v{AK+3}, v{AK+1}, v{AK+5}",
               f"ds_write2_b32 v{VQW}, v{AK+2}, v{AK+3} offset1:68"]
        for i in range(8):
            put(b0 + 23 + i, [Eq[i]])
        kv = b0 + 31
        LL = [x for k in range(9) for x in landl(k)]
        put(kv, Eq[8:10]); put(kv + 1, [Eq[10], "s_add_u32 s45, s45, 8192"])
        put(kv + 2, Ek[0:4]); put(kv + 3, Ek[4:7])
        put(kv + 4, [LL[0]]); put(kv + 5, [LL[1]])
        qb = kv + o.get("qb", 6)
        npre = 2
        if qb > kv + 6:
            put(kv + 6, [LL[2]]); npre = 3
        QR = [f"ds_read_b128 v[{QF+4*k}:{QF+4*k+3}], v{VQR} offset:{k*64}" for k in range(4)]
        RD = [x for k in range(4) for x in (QR[k], KR[2 * k], KR[2 * k + 1])]
        xt = 1 if o.get("trace") else 0
        put(qb, [f"s_waitcnt vmcnt({2+ns+xt}) lgkmcnt({npre})", "s_barrier"])
        slots = list(range(qb, len(P)))
        extra = 8 - len(slots)
        k = 0
        for n_, i in enumerate(slots):
            c = 2 if n_ < extra else 1
            put(i, RD[k:k + c]); k += c
        assert k == 8
        RD = RD[8:]
        for i, p in enumerate(P):
            if i == b0 + 21:
                trace(a, o, QF + 6, VL16, 7)
            for x in F.get(i, []):
                a(x)
            proj(*p)
        if npre == 2:
            LL[3] = LL[2] + "\n" + LL[3]
        stamp(2)
        MXR, TMP = AK + 4, AK + 5
        Ev = [f"v_add_f32 v{AV+r}, v{AV+r}, v{AV+r+2}" for r in (0, 1, 4, 5)]
        Ev += [f"v_cvt_pk_bf16_f32 v{AV+2}, v{AV}, v{AV+1}", f"v_cvt_pk_bf16_f32 v{AV+3}, v{AV+4}, v{AV+5}",
               f"v_mov_b64 v[{AV+4}:{AV+5}], s[38:39]"]
        assert len(RD) == 4
        G = {0: [RD[0], "s_waitcnt lgkmcnt(6)"], 1: [RD[1]], 2: [RD[2]], 3: [RD[3], "s_waitcnt lgkmcnt(6)"],
             4: [f"ds_read_b64 v[{AK+6}:{AK+7}], v{VKMS}", Ev[0]], 5: [LL[3], Ev[1]], 6: [f"s_waitcnt lgkmcnt({8-npre})", Ev[2]],
             7: [LL[4], Ev[3]], 8: [LL[5], Ev[4]], 9: [f"s_waitcnt vmcnt({ns+xt}) lgkmcnt({6-npre})", Ev[5]],
             10: [f"buffer_store_dwordx2 v[{AK+6}:{AK+7}], v{VL8}, {WS}, s50 offen{XS}"], 11: [f"buffer_store_dwordx2 v[{AV+2}:{AV+3}], v{VL8}, {WS}, s50 offen offset:2048{XS}"]}
        if kl:
            G[4] = [Ev[0]]; G[6] = [f"s_waitcnt lgkmcnt({7-npre})", Ev[2]]
            G[10] = [f"ds_write_b64 v{VMX}, v[{AV+2}:{AV+3}] offset:{OX-MX+1024}"]; G[11] = ["s_mov_b32 s51, s50"]
        i = 0
        for kst in range(4):
            B = f"v[{QF+4*kst}:{QF+4*kst+3}]"
            for kt in (2, 0, 1):
                A = f"v[{RK+8*kst+4*kt}:{RK+8*kst+4*kt+3}]" if kt < 2 else B
                for x in G.get(i, []):
                    a(x)
                a(f"v_mfma_f32_16x16x32_bf16 v[{AQ+4*kt}:{AQ+4*kt+3}], {A}, {B}, " + (f"v[{AQ+4*kt}:{AQ+4*kt+3}]" if kst else "0"))
                i += 1
        a(LL[6])
        a(f"s_cmp_eq_u32 s44, 63")
        a(Ev[6])
        a("s_cbranch_scc1 L_chain_done")
        a(f"v_mov_b64 v[{AV+6}:{AV+7}], s[38:39]")
        a(LL[7])
        stamp(3)
        a(f"v_max3_f32 v{MXR}, v{AK}, v{AK+1}, v{AQ}\n v_max3_f32 v{MXR}, v{MXR}, v{AQ+1}, v{AQ+2}")
        a(f"v_max3_f32 v{TMP}, v{AQ+4}, v{AQ+5}, v{AQ+6}\n v_max3_f32 v{MXR}, v{MXR}, v{AQ+3}, v{AQ+7}\n v_max_f32 v{MXR}, v{MXR}, v{TMP}")
        a(f"v_mov_b32 v{TMP}, v{MXR}\n v_mov_b32 v{QF+5}, 0")
        a(LL[9])
        a(f"v_permlane16_swap_b32 v{TMP}, v{MXR}\n v_max_f32 v{MXR}, v{MXR}, v{TMP}\n v_mov_b32 v{TMP}, v{MXR}\n v_mov_b32 v{QF+6}, 0")
        a(LL[10])
        a(f"v_permlane32_swap_b32 v{TMP}, v{MXR}\n v_max_f32 v{MXR}, v{MXR}, v{TMP}")
        for r in (AK, AQ, AQ + 2, AQ + 4, AQ + 6):
            a(f"v_pk_add_f32 v[{r}:{r+1}], v[{r}:{r+1}], v[{MXR}:{MXR+1}] op_sel_hi:[1,0] neg_lo:[0,1] neg_hi:[0,1]")
        OA, SA = QF + 8, AK + 4
        ex = lambda r: a(f"v_exp_f32 v{r}, v{r}")
        cv = lambda i: a(f"v_cvt_pk_bf16_f32 v{QF+i}, v{AQ+2*i}, v{AQ+2*i+1}")
        ex(AK); ex(AK + 1); ex(AQ)
        a(f"v_cvt_pk_bf16_f32 v{QF+4}, v{AK}, v{AK+1}\n v_cvt_pk_bf16_f32 v{QF+7}, v{AK}, v{AK+1}")
        ex(AQ + 1)
        a(f"v_mfma_f32_16x16x16_bf16 v[{SA}:{SA+3}], v[{AV+4}:{AV+5}], v[{QF+4}:{QF+5}], 0")
        ex(AQ + 2)
        a(f"v_mfma_f32_16x16x16_bf16 v[{OA}:{OA+3}], v[{AV+2}:{AV+3}], v[{QF+4}:{QF+5}], 0")
        ex(AQ + 3)
        a(f"v_mfma_f32_16x16x16_bf16 v[{OA+4}:{OA+7}], v[{AV+2}:{AV+3}], v[{QF+6}:{QF+7}], 0")
        for r in range(AQ + 4, AQ + 8):
            ex(r)
        for i in range(4):
            cv(i)
        a(LL[11]); a(LL[12])
        a(f"v_mfma_f32_16x16x32_bf16 v[{SA}:{SA+3}], v[{AV+4}:{AV+7}], v[{QF}:{QF+3}], v[{SA}:{SA+3}]")
        a(LL[8])
        a(f"v_mfma_f32_16x16x32_bf16 v[{OA}:{OA+3}], v[{VX}:{VX+3}], v[{QF}:{QF+3}], v[{OA}:{OA+3}]")
        a(LL[13]); a(LL[14])
        a(f"v_mfma_f32_16x16x32_bf16 v[{OA+4}:{OA+7}], v[{VX+4}:{VX+7}], v[{QF}:{QF+3}], v[{OA+4}:{OA+7}]")
        Z = [f"v_mov_b64 v[{r}:{r+1}], 0" for r in list(range(QF, QF + 8, 2)) + list(range(AV, AV + 8, 2))]
        a(LL[15]); a(Z[0]); a(Z[1])
        a(f"v_rcp_f32 v{SA}, v{SA}")
        a(Z[2]); a(Z[3])
        stamp(4)
        pm = lambda r: a(f"v_pk_mul_f32 v[{OA+r}:{OA+r+1}], v[{OA+r}:{OA+r+1}], v[{SA}:{SA+1}] op_sel_hi:[1,0]")
        co = lambda i: a(f"v_cvt_pk_bf16_f32 v{AQ+i}, v{OA+2*i}, v{OA+2*i+1}")
        pm(0); pm(2); co(0); pm(4); pm(6); co(1); co(2); co(3)
        a("s_mov_b64 exec, s[74:75]")
        a(f"ds_write_b128 v{VOR}, v[{AQ}:{AQ+3}] offset:{OX-MX}")
        a("s_mov_b64 exec, -1")
        for i in range(4):
            a(f"v_mov_b32_dpp v{AQ+i}, v{AQ+i} quad_perm:[2,3,2,3] row_mask:0xf bank_mask:0xf")
        for jc in (1, 2, 3):
            a(f"v_xor_b32 v{AQ+4*jc}, {jc << 11}, v{VOR}")
        a("s_waitcnt lgkmcnt(1)")
        wo(0); a(Z[4]); wo(1); a(Z[5])
        a("s_waitcnt lgkmcnt(0)\n s_barrier")
        for jc in (1, 2, 3):
            a(f"ds_read_b128 v[{AQ+4*jc}:{AQ+4*jc+3}], v{AQ+4*jc} offset:{OX-MX}")
        a(Z[6]); a(Z[7])
        stamp(5)
        L = LL[16:18] + landl(9) + landl(12) + landl(15)

        def pub(np_):
            A = WACC[np_]
            return [f"v_cvt_pk_bf16_f32 v{A}, v{A}, v{A+2}", f"v_cvt_pk_bf16_f32 v{A+1}, v{A+1}, v{A+3}", f"v_bfi_b32 v{A}, 1, s53, v{A}",
                    f"buffer_store_dwordx2 v[{A}:{A+1}], v{VP1S}, {WS}, {('s47', 's58', 's60', 's61')[np_]} offen{st}"]

        W = {4: 6, 5: 4, 8: 2, 12: 0}
        X = {2: L[0:2], 3: L[2:4], 5: L[4:5], 6: L[5:6], 8: L[6:7], 9: L[7:8], 10: pub(0)[0:2], 11: pub(0)[2:4], 12: pub(1)[0:1],
             13: pub(1)[1:3], 14: pub(1)[3:4], 15: [f"s_add_u32 s50, s50, {SEGB}"] + pub(2)}
        for k in range(2, 16):
            if k in W:
                a(f"s_waitcnt lgkmcnt({W[k]})")
            wo(k)
            for x in X.get(k, []):
                a(x)
        for d in range(3):
            a(f"v_cndmask_b32 v{QF+4+d}, 0, v0, s[{64+2*d}:{65+2*d}]")
        for x in pub(3):
            a(x)
        a(f"v_cndmask_b32 v{QF+7}, 0, v0, s[70:71]\n s_add_u32 s44, s44, 1")
        stamp(6)
        warm(o.get("d0", 10), AQ)
        for w in (1, 2, 3):
            a(f"s_cmp_lt_u32 s6, {w}\n s_cbranch_scc1 L_{T}_p1")
            warm(o.get("d1", 16), AQ)
        a(f"L_{T}_p1:")
        poll(RM + 8, VL16, "s52")()
        early()
        warm(o.get("g1", 28), AQ)
        poll(RM + 16, VL16, "s52")()
        warm(o.get("w1", 0), AQ)
        a("s_waitcnt vmcnt(2)")
        a(f"L_{T}_h1:")
        a(f"v_mfma_f32_16x16x32_bf16 v[{AV}:{AV+3}], v[{QF+4}:{QF+7}], v[{RM+8}:{RM+11}], 0")
        a(f"v_mfma_f32_16x16x32_bf16 v[{AV}:{AV+3}], v[{QF+4}:{QF+7}], v[{RM+12}:{RM+15}], v[{AV}:{AV+3}]")
        check1(RM + 8, AQ)
        a(f"s_cbranch_vccnz L_{T}_h1r")
        outl.append((f"L_{T}_h1r", f"L_{T}_h1", RM + 8, RM + 16, RM + 24, "s52", lambda R: check1(R, AQ), 91))
        stamp(7)
        for rot in (4, 8):
            for r in (AV, AV + 1):
                a(f"v_add_f32_dpp v{r}, v{r}, v{r} row_ror:{rot} row_mask:0xf bank_mask:0xf")
        a("s_mov_b64 exec, s[72:73]")
        a(f"v_cvt_pk_bf16_f32 v{AQ+2}, v{AV}, v{AV+1}")
        a(f"buffer_store_dword v{AQ+2}, v{VMS}, {WS}, s46 offen{st}")
        a("s_mov_b64 exec, -1\n s_add_u32 s46, s46, 8192")
        if "probe" in o:
            for i, k in enumerate(sorted(o["probe"], reverse=True)):
                a.lines.insert(mark + k, f"    s_memtime s[{PR[i]}:{PR[i]+1}]")
            a.lines.insert(mark, "    s_memtime s[94:95]")
            a("s_waitcnt lgkmcnt(0)")
            for i in range(len(o["probe"])):
                a(f"s_sub_u32 s3, s{PR[i]}, s94\n s_add_u32 s{80+i}, s{80+i}, s3")
        stamp(8)
        if prof and o.get("from"):
            a(f"s_cmp_eq_u32 s44, {o['from']}\n s_cselect_b32 s88, 0, s88")
        a(f"s_branch L_{T}")
        for lab, back, A, B, C, soff, chk, cnt in outl:
            a(f"{lab}:")
            for src, nxt in ((B, C), (C, B)):
                a("s_mov_b64 exec, vcc")
                poll(nxt, VL16, soff)()
                if prof:
                    a(f"s_add_u32 s{cnt}, s{cnt}, 1")
                if src == C:
                    a(f"s_sub_u32 {TMO}, {TMO}, 1\n s_cbranch_scc1 L_end")
                a("s_waitcnt vmcnt(2)")
                chk(src)
                for r in range(0, 8, 2):
                    a(f"v_mov_b64 v[{A+r}:{A+r+1}], v[{src+r}:{src+r+1}]")
                a("s_mov_b64 exec, -1")
                a(f"s_cbranch_vccz {back}")
            a(f"s_branch {lab}")
        a(f"L_{T}_kvw:")
        a(f"v_mov_b32 v{QF+8}, 0")
        wait_flags(a, VF, QF + 8, "s49", sleep=o.get("slc", 1))
        a(f"s_branch L_{T}_kvr")

    loop("pure")
    loop("mixed")
    a("L_chain_done:")
    if o.get("kl", 0):
        a(f"ds_read_b64 v[{AK+6}:{AK+7}], v{VKMS}\n buffer_store_dwordx2 v[{AV+2}:{AV+3}], v{VL8}, {WS}, s50 offen offset:2048 sc1")
        a(f"s_waitcnt lgkmcnt(0)\n buffer_store_dwordx2 v[{AK+6}:{AK+7}], v{VL8}, {WS}, s50 offen sc1")
    if prof:
        sk = a.label("Lp")
        a(f"s_cmp_lg_u32 s43, {o.get('who', 0)}\n s_cbranch_scc1 {sk}")
        a("s_lshl_b32 s3, s7, 6\n s_add_u32 s3, s3, 4\n s_mov_b64 exec, 1")
        for i in range(12):
            a(f"v_mov_b32 v{RM+i}, s{80+i}\n buffer_store_dword v{RM+i}, v{VL16}, {DBG}, s3 offen offset:{4*i}")
        a(f"{sk}:")


def role_ao(a, o):
    VL16, VZ, VONE, VF, VL4, VOB, VKM, SEL, VP2S, VP2L, VVM, VHS = 1, 2, 3, 4, 5, 6, 7, 8, 12, 13, 14, 15
    MB, SX, SM, RQ, RK, RV, KM, VM, PF, PM, OA = 16, 32, 48, 64, 96, 128, 160, 192, 200, 208, 212
    NG = 3
    AFR, NB, XP, YP = (200, 204, 208), 3, 128, 132
    MXR, TMP, SUM, VFO, VRW = 252, 253, 254, 0, 244
    a.srd(24, PTR(11), D * H * DH * 2)
    a.srd(12, PTR(13), S * D * 2)
    a(f"v_and_b32 v40, 63, v0\n v_lshlrev_b32 v{VL16}, 4, v40\n v_lshlrev_b32 v{VL4}, 2, v40")
    a(f"v_mov_b32 v{VZ}, 0\n v_mov_b32 v{VONE}, 1")
    a("v_and_b32 v41, 15, v0\n v_bfe_u32 v42, v0, 4, 1\n v_bfe_u32 v43, v0, 5, 1\n v_and_b32 v44, 31, v0")
    a("s_and_b32 s56, s5, 15\n s_lshr_b32 s57, s5, 4\n s_add_u32 s57, s57, 1\n s_bitcmp1_b32 s4, 1\n s_cselect_b32 s57, 0, s57")
    if not o.get("staged"):
        wait_counter(a, VF, VZ, 0, 32)
    team_publish(a, VF, VZ)
    a("v_lshlrev_b32 v45, 12, v43\n v_lshl_add_u32 v45, v44, 3, v45")
    a("s_mov_b32 s60, 0x05040100\n s_mov_b32 s61, 0x07060302")
    a("s_lshl_b32 s41, s56, 18\n s_lshl_b32 s3, s6, 8\n s_add_u32 s41, s41, s3")
    DEPTH = o.get("aod", 7)
    LD = lambda ks: 80 + 16 * (ks % (DEPTH + 1))

    def wo_issue(ks):
        a(f"s_add_u32 s3, s41, {ks*16384}\n s_add_u32 s40, s3, 8192")
        for j in range(8):
            r = LD(ks) + 2 * j
            a(f"buffer_load_dwordx2 v[{r}:{r+1}], v45, s[24:27], {'s40' if j >> 2 else 's3'} offen offset:{(j&3)*1024}")

    for ks in range(DEPTH):
        wo_issue(ks)
    for ks in range(16):
        a(f"s_waitcnt vmcnt({8*min(DEPTH-1, 15-ks)})")
        if ks + DEPTH < 16:
            wo_issue(ks + DEPTH)
        for T in range(4):
            for i in range(4):
                r = LD(ks) + 4 * i + (T >> 1)
                a(f"v_perm_b32 v{48+4*T+i}, v{r+2}, v{r}, s{60+(T&1)}")
        for i in range(16):
            a(f"v_accvgpr_write_b32 a{16*ks+i}, v{48+i}")
    a("v_mov_b32 v48, 0xf149f2ca\n v_lshlrev_b32 v49, 2, v43")
    for r in range(16):
        a(f"v_add_u32 v50, {8*(r>>2)+(r&3)}, v49\n v_cmp_gt_u32 vcc, v50, v44\n v_cndmask_b32 v{MB+r}, 0, v48, vcc")
    a("v_mov_b32 v48, 0x3f80\n v_and_b32 v49, 1, v0\n v_lshlrev_b32 v49, 4, v49\n v_lshlrev_b32 v48, v49, v48")
    a("v_lshrrev_b32 v49, 1, v41\n v_lshlrev_b32 v50, 2, v43\n v_sub_u32 v49, v49, v50")
    for d in range(4):
        a(f"v_cmp_eq_u32 vcc, {d}, v49\n v_cndmask_b32 v{SEL+d}, 0, v48, vcc")
    a(f"v_and_b32 v48, 7, v0\n v_lshlrev_b32 v{VKM}, 4, v48\n v_lshl_add_u32 v{VKM}, v43, 7, v{VKM}")
    a(f"v_lshlrev_b32 v{VVM}, 8, v43\n v_lshl_add_u32 v{VVM}, v41, 3, v{VVM}\n v_lshl_add_u32 v{VVM}, v42, 2, v{VVM}")
    a(f"v_lshlrev_b32 v{VP2S}, 12, v43\n v_lshl_add_u32 v{VP2S}, v44, 2, v{VP2S}\n s_lshl_b32 s3, s6, 8\n s_lshl_b32 s40, s56, 15\n s_add_u32 s3, s3, s40\n v_add_u32 v{VP2S}, s3, v{VP2S}")
    a("s_and_b32 s58, s6, 1\n s_lshl_b32 s3, s56, 1\n s_add_u32 s58, s58, s3")
    a(f"v_lshlrev_b32 v{VP2L}, 15, v42\n v_lshl_add_u32 v{VP2L}, v43, 9, v{VP2L}\n v_lshl_add_u32 v{VP2L}, v48, 4, v{VP2L}\n v_bfe_u32 v48, v0, 3, 1\n v_lshl_add_u32 v{VP2L}, v48, 8, v{VP2L}")
    a(f"v_lshlrev_b32 v48, 9, v43\n v_lshl_add_u32 v48, v41, 5, v48\n v_lshl_add_u32 v48, v42, 4, v48")
    a(f"v_mov_b32 v{VRW}, v48")
    a(f"s_lshl_b32 s3, s58, 10\n v_add_u32 v{VP2L}, s3, v{VP2L}")
    a(f"s_and_b32 s3, s58, 15\n s_lshl_b32 s3, s3, 4\n v_xor_b32 v{VHS}, s3, v{VRW}\n v_mov_b32 v{VOB}, v{VL16}")
    a("s_mov_b32 s44, s57\n s_lshl_b32 s3, s7, 6\n s_add_u32 s3, s3, s44")
    a(f"s_lshl_b32 s49, s3, 8\n s_add_u32 s49, s49, {FP}")
    a("s_lshl_b32 s3, s3, 5\n s_add_u32 s3, s3, s58\n s_lshl_b32 s45, s3, 7")
    a(f"s_lshl_b32 s3, s7, 5\n s_add_u32 s3, s3, s58\n s_mul_i32 s46, s3, {HEADB}\n s_mul_i32 s3, s44, {SEGB}\n s_add_u32 s46, s46, s3\n s_add_u32 s46, s46, {OFF_QKV}\n s_add_u32 s47, s46, 24576")
    a(f"s_lshl_b32 s48, s7, 23\n s_lshl_b32 s3, s57, 20\n s_add_u32 s48, s48, s3\n s_add_u32 s48, s48, {OFF_P2}")
    a("s_lshl_b32 s50, s44, 5\n s_add_u32 s50, s50, s58\n s_lshl_b32 s50, s50, 10")
    a(f"s_lshl_b32 s51, s7, 21\n s_add_u32 s51, s51, {OFF_X}\n s_mov_b32 s52, 0\n s_mov_b32 s39, 0\n s_mov_b32 s63, 0x20000000")
    a("s_lshl_b32 s53, s56, 4\n s_lshl_b32 s3, s6, 2\n s_add_u32 s53, s53, s3\n s_lshl_b32 s59, s6, 13")
    a(f"s_lshl_b32 s34, s7, 13\n s_add_u32 s34, s34, {FD}\n s_or_b32 s3, s58, s7\n s_cmp_eq_u32 s3, 0\n s_cselect_b32 s35, {FH+64*128}, s63")
    if o.get("trace"):
        for r in range(245, 252):
            a(f"v_mov_b32 v{r}, 0")
    a("s_mov_b32 s3, s48")
    for ld in range(8):
        for u in range(2):
            a(f"buffer_load_dwordx4 v[64:67], v{VP2L}, {WS}, s3 offen offset:{u*128} sc1")
        a("s_add_u32 s3, s3, 65536")
    a("s_mov_b32 s62, 0")
    team_wait(a, VF, 40, "L_ao_mx", n=16)
    a("s_mov_b32 s62, 1")
    a("L_ao_mx:")
    a(f"v_and_b32 v{VFO}, 4, v{VL4}\n v_add_u32 v{VFO}, {NG*4096}, v{VFO}\n v_lshlrev_b32 v{VZ}, 2, v{VL16}\n s_mov_b32 s54, {SENT:#x}")
    a("s_cmp_eq_u32 s62, 0\n s_cbranch_scc1 L_ao_mixed")

    TSLOT = {7: 0, 8: 1, 9: 2, 12: 1, 13: 2, 14: 3, 10: 4, 11: 5, 15: 6}

    def ltrace(tag):
        if o.get("trace"):
            a(("s_memtime" if o.get("cyc") else "s_memrealtime") + " s[96:97]\n s_waitcnt lgkmcnt(0)")
            a(f"s_and_b32 s96, s96, 0x0fffffff\n s_or_b32 s96, s96, {tag << 28:#x}\n s_mov_b32 m0, s44")
            a(f"v_writelane_b32 v{245+TSLOT[tag]}, s96, m0")

    NT = lambda m: " nt" if (o.get("nt", 4) >> m) & 1 else ""

    def qkv_list(which, so):
        return [f"buffer_load_dwordx4 v[{dst+4*i}:{dst+4*i+3}], v{VL16}, {WS}, {so(m, i >> 2)} offen offset:{(i&3)*1024} sc1{NT(m)}"
                for m, dst in which for i in range(8)]

    def qkv_loads(which):
        for m, dst in which:
            a(f"s_add_u32 s3, s46, {m*8192}\n s_add_u32 s40, s46, {m*8192+4096}")
            for x in qkv_list(((m, dst),), lambda m_, hh: ("s3", "s40")[hh]):
                a(x)

    def km_list(so):
        L = [f"buffer_load_dwordx4 v[{KM+4*i}:{KM+4*i+3}], v{VKM}, {WS}, {so} offen offset:{i*256} sc1" for i in range(8)]
        L += [f"buffer_load_dword v{VM+2*ct+j}, v{VVM}, {WS}, {so} offen offset:{2048+ct*512+j*128} sc1" for ct in range(4) for j in range(2)]
        return L

    def loop(mode):
        st = "" if mode == "pure" else " sc1"
        T_ = f"ao_{mode}"
        a(f"L_{T_}:")
        ltrace(7)
        a(f"s_cmp_ge_u32 s6, 2\n s_cbranch_scc1 L_{T_}_bar")
        a(f"s_and_b32 s3, s52, s39\n s_cbranch_scc1 L_{T_}_have")
        a(f"s_cmp_lt_u32 s44, {NG}\n s_cbranch_scc1 L_{T_}_nob\n s_barrier")
        a(f"L_{T_}_nob:")
        a(f"s_cmp_lg_u32 s52, 0\n s_cbranch_scc1 L_{T_}_have")
        a(f"v_and_b32 v{TMP}, 4, v{VL4}")
        wait_flags(a, VF, TMP, "s45")
        qkv_loads(((0, RK), (2, RQ), (1, RV)))
        a("s_waitcnt vmcnt(8)")
        a(f"L_{T_}_have:")
        for i in range(8):
            a(f"v_mfma_f32_32x32x16_bf16 v[{SX}:{SX+15}], v[{RK+4*i}:{RK+4*i+3}], v[{RQ+4*i}:{RQ+4*i+3}], " + (f"v[{SX}:{SX+15}]" if i else f"v[{MB}:{MB+15}]"))
        ltrace(8)
        a(f"s_and_b32 s33, s52, s39\n s_cbranch_scc1 L_{T_}_km")
        if not o.get("kl", 0):
            a(f"v_mov_b32 v{TMP}, 0")
            wait_flags(a, VF, TMP, "s45", imm=32, sleep=o.get("sla", 1))
            if o.get("hd", 6):
                a(f"s_sleep {o.get('hd', 6)}")
        a(f"L_{T_}_kw:")
        a(f"buffer_load_dword v{VRW}, v{VZ}, {WS}, s47 offen sc1")
        a(f"s_waitcnt vmcnt(0)\n v_cmp_eq_u32 vcc, s54, v{VRW}\n s_cbranch_vccz L_{T_}_kl")
        if o.get("sla", 1):
            a(f"s_sleep {o.get('sla', 1)}")
        poll_tail(a, f"L_{T_}_kw")
        a(f"L_{T_}_kl:")
        for x in km_list("s47"):
            a(x)
        a(f"buffer_load_dword v{VF}, v{VFO}, {WS}, s45 offen sc1")
        a(f"L_{T_}_km:")
        ltrace(9)
        a(f"s_add_u32 s46, s46, {NG*SEGB}\n s_nop 8")
        a(f"v_max3_f32 v{MXR}, v{SX}, v{SX+1}, v{SX+2}\n v_max3_f32 v{TMP}, v{SX+3}, v{SX+4}, v{SX+5}")
        for r in range(6, 14, 4):
            a(f"v_max3_f32 v{MXR}, v{MXR}, v{SX+r}, v{SX+r+1}\n v_max3_f32 v{TMP}, v{TMP}, v{SX+r+2}, v{SX+r+3}")
        a(f"v_max3_f32 v{MXR}, v{MXR}, v{SX+14}, v{SX+15}")
        for i in range(8):
            a(f"s_waitcnt vmcnt({16-i})")
            a(f"v_mfma_f32_32x32x16_bf16 v[{SM}:{SM+15}], v[{KM+4*i}:{KM+4*i+3}], v[{RQ+4*i}:{RQ+4*i+3}], " + (f"v[{SM}:{SM+15}]" if i else "0"))
        a(f"s_add_u32 s45, s45, {NG*32*128}\n s_add_u32 s47, s47, {NG*SEGB}")
        a(f"v_max3_f32 v{TMP}, v{TMP}, v{SM}, v{SM+1}\n v_max3_f32 v{MXR}, v{MXR}, v{SM+2}, v{SM+3}\n v_max_f32 v{MXR}, v{MXR}, v{TMP}")
        a(f"v_mov_b32 v{TMP}, v{MXR}\n v_permlane32_swap_b32 v{TMP}, v{MXR}\n v_max_f32 v{MXR}, v{MXR}, v{TMP}")
        for r in range(SX, SX + 20, 2):
            a(f"v_pk_add_f32 v[{r}:{r+1}], v[{r}:{r+1}], v[{MXR}:{MXR+1}] op_sel_hi:[1,0] neg_lo:[0,1] neg_hi:[0,1]")
        for r in range(SX, SX + 20):
            a(f"v_exp_f32 v{r}, v{r}")
        a(f"v_pk_add_f32 v[{SUM}:{SUM+1}], v[{SX}:{SX+1}], v[{SX+2}:{SX+3}]\n v_pk_add_f32 v[{MXR}:{MXR+1}], v[{SX+4}:{SX+5}], v[{SX+6}:{SX+7}]")
        for r in range(SX + 8, SX + 20, 4):
            a(f"v_pk_add_f32 v[{SUM}:{SUM+1}], v[{SUM}:{SUM+1}], v[{r}:{r+1}]\n v_pk_add_f32 v[{MXR}:{MXR+1}], v[{MXR}:{MXR+1}], v[{r+2}:{r+3}]")
        a(f"v_pk_add_f32 v[{SUM}:{SUM+1}], v[{SUM}:{SUM+1}], v[{MXR}:{MXR+1}]\n v_add_f32 v{SUM}, v{SUM}, v{SUM+1}")
        a(f"v_mov_b32 v{TMP}, v{SUM}\n v_permlane32_swap_b32 v{TMP}, v{SUM}\n v_add_f32 v{SUM}, v{SUM}, v{TMP}\n v_rcp_f32 v{SUM}, v{SUM}")
        a(f"v_add_u32 v{TMP}, s59, v{VOB}")
        for r in range(SX, SX + 20, 2):
            a(f"v_pk_mul_f32 v[{r}:{r+1}], v[{r}:{r+1}], v[{SUM}:{SUM+1}] op_sel_hi:[1,0]")
        for i in range(10):
            r = SX + (4 * (i >> 2) + 8 * ((i >> 1) & 1) + 2 * (i & 1) if i < 8 else 2 * i)
            a(f"v_cvt_pk_bf16_f32 v{PF+i}, v{r}, v{r+1}")
        sk = a.label("Lb")
        a(f"s_waitcnt vmcnt(0)\n s_cmp_eq_u32 s33, 0\n s_cbranch_scc1 {sk}\n s_barrier")
        a(f"{sk}:")
        a(f"v_cmp_eq_u32 vcc, 0, v{VF}\n s_cmp_eq_u32 vcc_lo, 0\n s_cselect_b32 s52, 1, 0\n s_cmp_ge_u32 s44, {64-NG}\n s_cselect_b32 s52, 0, s52")
        a(f"s_cmp_lg_u32 s52, 0\n s_cselect_b32 s64, s46, s63\n s_add_u32 s65, s64, 4096")
        oacc = [OA, OA + 16, SX, SM]
        KQ = qkv_list(((0, RK), (2, RQ)), lambda m, hh: f"s{64+2*m+hh}")
        npv = o.get("npv", 8)

        def oepi(ct):
            A = oacc[ct]
            L = []
            for i in range(8):
                L.append(f"v_cvt_pk_bf16_f32 v{KM+8*ct+i}, v{A+2*i}, v{A+2*i+1}")
                if i & 3 == 3:
                    L.append(f"ds_write_b128 v{TMP}, v[{KM+8*ct+i-3}:{KM+8*ct+i}] offset:{(2*ct+(i>>2))*1024}")
            return L

        k = 0
        for ct in range(4):
            A = oacc[ct]
            E = oepi(ct - 1) if ct >= 1 else []
            for f in range(3):
                if f < 2:
                    a(f"v_mfma_f32_32x32x16_bf16 v[{A}:{A+15}], v[{RV+8*ct+4*f}:{RV+8*ct+4*f+3}], v[{PF+4*f}:{PF+4*f+3}], " + (f"v[{A}:{A+15}]" if f else "0"))
                else:
                    a(f"v_mfma_f32_32x32x8_bf16 v[{A}:{A+15}], v[{VM+2*ct}:{VM+2*ct+1}], v[{PM}:{PM+1}], v[{A}:{A+15}]")
                if (ct == 0 or f == 0) and k < npv:
                    a(KQ[k]); k += 1
                    if ct == 0 and k < npv:
                        a(KQ[k]); k += 1
                if f >= 1:
                    for x in E[5 * (f - 1):5 * f]:
                        a(x)
        a(f"buffer_load_dword v{VF}, v{VFO}, {WS}, s45 offen sc1\n buffer_load_dword v{VRW}, v{VZ}, {WS}, {'s47' if o.get('kl', 0) or o.get('pp', 0) else 's63'} offen sc1")
        for i in range(2, 6):
            a(f"s_add_u32 s{64+i}, s64, {i*4096}")
        for x in oepi(3):
            a(x)
        a("s_waitcnt lgkmcnt(0)")
        a(f"L_{T_}_bar:")
        a("s_add_u32 s36, s48, 8192\n s_add_u32 s37, s48, 16384\n s_add_u32 s38, s48, 24576\n s_mov_b32 s39, 0")
        ltrace(10)
        a("s_barrier")
        af = lambda j: f"v[{AFR[j%NB]}:{AFR[j%NB]+3}]"
        rd = lambda j: a(f"ds_read_b128 {af(j)}, v{VOB} offset:{(j&15)*1024}")
        acc = [SX, SM, OA, OA + 16]
        pack = lambda p: [f"v_cvt_pk_bf16_f32 v{acc[2*p]+r}, v{acc[2*p]+r}, v{acc[2*p+1]+r}\n buffer_store_dword v{acc[2*p]+r}, v{VP2S}, {WS}, {('s48', 's36', 's37', 's38')[r>>2]} offen offset:{(r&3)*1024+p*128}{st}" for r in range(16)]
        for j in range(NB - 1):
            rd(j)

        def wo_phase(fill):
            P0 = pack(0)
            for r in range(16):
                fill.setdefault(2 * (18 + r * 13 // 16) + (1 if r in (1, 6, 12) else 0), []).append(P0[r])
            for j in range(32):
                ks, p = j & 15, j >> 4
                if j + NB - 1 < 32:
                    rd(j + NB - 1)
                a(f"s_waitcnt lgkmcnt({min(NB-1, 31-j)})")
                for t in range(2):
                    A = acc[2 * p + t]
                    b = (ks * 4 + 2 * p + t) * 4
                    a(f"v_mfma_f32_32x32x16_bf16 v[{A}:{A+15}], {af(j)}, a[{b}:{b+3}], " + (f"v[{A}:{A+15}]" if ks else "0"))
                    for x in fill.get(2 * j + t, []):
                        a(x)
            a(f"v_xor_b32 v{VOB}, 0x4000, v{VOB}\n s_add_u32 s3, s49, s53")
            for x in pack(1):
                a(x)
            ltrace(11)
            a("s_waitcnt vmcnt(0)")
            a(f"buffer_store_dword v{VONE}, off, {WS}, s3{st}")

        a(f"s_cmp_ge_u32 s6, 2\n s_cbranch_scc1 L_{T_}_red")
        rest = KQ[k:] + qkv_list(((1, RV),), lambda m, hh: f"s{64+2*m+hh}")
        fill = {i: [x] for i, x in enumerate(rest)}
        n = len(rest)
        fill[n] = [f"s_waitcnt vmcnt({n})\n v_cmp_eq_u32 vcc, s54, v{VRW}"]
        fill[n + 1] = [f"s_cmp_eq_u64 vcc, 0\n s_cselect_b32 s39, {'s52' if o.get('kl', 0) or o.get('pp', 0) else 0}, 0\n s_cmp_lg_u32 s39, 0\n s_cselect_b32 s40, s47, s63"]
        for i, x in enumerate(km_list("s40")):
            fill[n + 2 + i] = [x]
        wo_phase(fill)
        a(f"s_branch L_{T_}_nx")
        a(f"L_{T_}_red:")
        wo_phase({0: [f"s_add_u32 s3, s51, s50\n buffer_load_dwordx4 v[{XP}:{XP+3}], v{VRW}, {WS}, s3 offen sc1"],
                  2: [f"s_add_u32 s3, s50, {OFF_Y}\n buffer_load_dwordx4 v[{YP}:{YP+3}], v{VRW}, {WS}, s3 offen sc1"],
                  4: [f"buffer_load_dword v{VF}, v{VL4}, {WS}, s49 offen sc1"],
                  6: [f"s_lshl_b32 s3, s44, 7\n s_add_u32 s3, s3, s34\n buffer_load_dword v{VF}, off, {WS}, s3 sc1"]})
        ltrace(12)
        row = dict(x=40, t=48, s=56, y=68, xo=60, ho=64)
        for i in range(4):
            unpack(a, XP + i, 40 + 2 * i, 41 + 2 * i)
            unpack(a, YP + i, 68 + 2 * i, 69 + 2 * i)
        wait_flags(a, VF, VL4, "s49", sleep=0)
        ltrace(13)
        G = 136
        a("s_mov_b32 s3, s48")
        for ld in range(8):
            for u in range(2):
                r = G + 8 * ld + 4 * u
                a(f"buffer_load_dwordx4 v[{r}:{r+3}], v{VP2L}, {WS}, s3 offen offset:{u*128} sc1")
            a("s_add_u32 s3, s3, 65536")
        a("s_barrier")
        for ld in range(8):
            a(f"s_waitcnt vmcnt({2*(7-ld)})")
            for u in range(2):
                r = G + 8 * ld + 4 * u
                a(f"v_mfma_f32_16x16x32_bf16 v[{32+4*u}:{35+4*u}], v[{SEL}:{SEL+3}], v[{r}:{r+3}], " + (f"v[{32+4*u}:{35+4*u}]" if ld else "0"))
        for i in range(4):
            A = 32 + 4 * (i & 1) + 2 * (i >> 1)
            a(f"v_cvt_pk_bf16_f32 v{56+i}, v{A}, v{A+1}")
        for i in range(4):
            unpack(a, 56 + i, 32 + 2 * i, 33 + 2 * i)
        for i in range(4):
            a(f"v_pk_add_f32 v[{40+2*i}:{41+2*i}], v[{40+2*i}:{41+2*i}], v[{32+2*i}:{33+2*i}]")
        for i in range(4):
            a(f"v_cvt_pk_bf16_f32 v{60+i}, v{40+2*i}, v{41+2*i}")
        ltrace(14)
        l1 = a.label("Lao")
        a(f"s_cmp_lg_u32 s7, 0\n s_cbranch_scc1 {l1}")
        for i in range(4):
            unpack(a, 60 + i, 40 + 2 * i, 41 + 2 * i)
        rowfin(a, [row])
        a(f"s_add_u32 s3, s50, {OFF_H+0x200000}\n s_add_u32 s40, s50, {OFF_X+0x200000}")
        a(f"buffer_store_dwordx4 v[64:67], v{VHS}, {WS}, s3 offen sc1")
        a(f"buffer_store_dwordx4 v[60:63], v{VRW}, {WS}, s40 offen sc1")
        a("s_waitcnt vmcnt(0)")
        a(f"s_branch L_{T_}_dn")
        a(f"{l1}:")
        a(f"buffer_store_dwordx4 v[60:63], v{VRW}, s[12:15], s50 offen")
        a(f"L_{T_}_dn:")
        a(f"s_lshr_b32 s3, s50, 8\n s_add_u32 s3, s3, s34")
        a(f"buffer_store_dword v{VONE}, off, {WS}, s3{st}")
        a(f"s_lshl_b32 s40, s44, 7\n s_add_u32 s41, s40, s34\n v_and_b32 v{TMP}, 0x7c, v{VL4}")
        wait_flags(a, VF, TMP, "s41", sleep=0)
        a(f"s_add_u32 s40, s40, s35")
        a(f"buffer_store_dword v{VONE}, v{TMP}, {WS}, s40 offen sc1")
        a(f"L_{T_}_nx:")
        ltrace(15)
        a(f"s_add_u32 s44, s44, {NG}\n s_add_u32 s49, s49, {NG*256}\n s_add_u32 s50, s50, {NG*32*1024}")
        a(f"s_cmp_lt_u32 s44, 64\n s_cbranch_scc1 L_{T_}")
        if o.get("trace"):
            for r in range(7):
                a(f"buffer_store_dword v{245+r}, v{VL4}, {WS}, s99 offen offset:{r*256}")
        a("s_endpgm")

    loop("pure")
    loop("mixed")
```

```python
import sys
sys.path.insert(0, "gen")
from asmlib import *
from layout import *
import hazard

PTR = lambda i: 64 + 2 * i
WS = "s[8:11]"
DBG = "s[28:31]"
TMO = "s98"
EPS = 0x3727C5AC


def poll_tail(a, loop):
    a(f"s_sub_u32 {TMO}, {TMO}, 1")
    a(f"s_cbranch_scc1 L_end")
    a(f"s_branch {loop}")


def wait_flags(a, vdst, voff, soff, imm=0, sleep=1, srd=WS):
    lp, dn = a.label("Lw"), a.label("Lwd")
    a(f"{lp}:")
    a(f"buffer_load_dword v{vdst}, v{voff}, {srd}, {soff} offen offset:{imm} sc1")
    a("s_waitcnt vmcnt(0)")
    a(f"v_cmp_eq_u32 vcc, 0, v{vdst}")
    a(f"s_cbranch_vccz {dn}")
    if sleep:
        a(f"s_sleep {sleep}")
    poll_tail(a, lp)
    a(f"{dn}:")


def wait_counter(a, vtmp, vz, imm, target):
    lp, dn = a.label("Lc"), a.label("Lcd")
    a(f"{lp}:")
    a(f"buffer_load_dword v{vtmp}, v{vz}, {DBG}, 0 offen offset:{imm} sc1")
    a("s_waitcnt vmcnt(0)")
    a(f"v_cmp_gt_u32 vcc, {target}, v{vtmp}")
    a(f"s_cbranch_vccz {dn}")
    a("s_sleep 2")
    poll_tail(a, lp)
    a(f"{dn}:")


def count_arrive(a, vtmp, vz, imm):
    a(f"v_mov_b32 v{vtmp}, 1")
    a("s_mov_b64 exec, 1")
    a(f"buffer_atomic_add v{vtmp}, v{vz}, {DBG}, 0 offen offset:{imm} sc1")
    a("s_mov_b64 exec, -1")


def trace(a, o, vtmp, vlane, tag):
    if not o.get("trace"):
        return
    a(("s_memtime" if o.get("cyc") else "s_memrealtime") + " s[96:97]\n s_waitcnt lgkmcnt(0)")
    a(f"s_and_b32 s96, s96, 0x0fffffff\n s_or_b32 s96, s96, {tag << 28:#x}")
    a(f"v_mov_b32 v{vtmp}, s96\n s_mov_b64 exec, 1")
    a(f"buffer_store_dword v{vtmp}, v{vlane}, {WS}, s99 offen")
    a("s_mov_b64 exec, -1\n s_add_u32 s99, s99, 4")


def strace(a, o, k):
    if o.get("ptrace"):
        a(f"s_memrealtime s[96:97]\n s_waitcnt lgkmcnt(0)\n s_mov_b32 s{50+k}, s96")


def allreduce(a, rs, op="v_add_f32", fill=()):
    fill = list(fill)
    per = -(-len(fill) // 6)

    def gap():
        for _ in range(per):
            if fill:
                a(fill.pop(0))

    for pat in ("quad_perm:[1,0,3,2]", "quad_perm:[2,3,0,1]", "row_half_mirror", "row_mirror"):
        gap()
        for r, t in rs:
            a(f"{op}_dpp v{r}, v{r}, v{r} {pat} row_mask:0xf bank_mask:0xf")
    for sw in ("v_permlane16_swap_b32", "v_permlane32_swap_b32"):
        for r, t in rs:
            a(f"v_mov_b32 v{t}, v{r}")
        gap()
        for r, t in rs:
            a(f"{sw} v{t}, v{r}")
        for r, t in rs:
            a(f"{op} v{r}, v{r}, v{t}")


def unpack(a, p, lo, hi):
    a(f"v_lshlrev_b32 v{lo}, 16, v{p}")
    a(f"v_and_b32 v{hi}, 0xffff0000, v{p}")


def rnd1(a, r):
    a(f"v_cvt_pk_bf16_f32 v{r}, v{r}, v{r}")
    a(f"v_and_b32 v{r}, 0xffff0000, v{r}")


def pk(a, op, d, x, y, mod=""):
    a(f"v_pk_{op}_f32 v[{d}:{d+1}], v[{x}:{x+1}], v[{y}:{y+1}]{mod}")


BC = " op_sel_hi:[1,0]"
NBC = " op_sel_hi:[1,0] neg_lo:[0,1] neg_hi:[0,1]"


def layernorm(a, rows, key):
    for R in rows:
        x, s = R["x"], R["s"]
        pk(a, "add", s, x, x + 2); pk(a, "add", s + 2, x + 4, x + 6); pk(a, "add", s, s, s + 2)
        a(f"v_add_f32 v{s}, v{s}, v{s+1}")
    allreduce(a, [(R["s"], R["s"] + 1) for R in rows])
    for R in rows:
        x, t, s = R["x"], R["t"], R["s"]
        a(f"v_mul_f32 v{s}, 0x3b000000, v{s}")
        for i in range(0, 8, 2):
            pk(a, "add", t + i, x + i, s, NBC)
        pk(a, "mul", s + 2, t, t)
        for i in range(2, 8, 2):
            a(f"v_pk_fma_f32 v[{s+2}:{s+3}], v[{t+i}:{t+i+1}], v[{t+i}:{t+i+1}], v[{s+2}:{s+3}]")
        a(f"v_add_f32 v{s+2}, v{s+2}, v{s+3}")
    fill = []
    for R in rows:
        x, t, s = R["x"], R["t"], R["s"]
        fill += [f"v_cvt_pk_bf16_f32 v{s}, v{s}, v{s}", f"v_and_b32 v{s}, 0xffff0000, v{s}"]
        fill += [f"v_pk_add_f32 v[{t+i}:{t+i+1}], v[{x+i}:{x+i+1}], v[{s}:{s+1}]{NBC}" for i in range(0, 8, 2)]
        for i in range(0, 8, 2):
            fill += [f"v_cvt_pk_bf16_f32 v{t+i+1}, v{t+i}, v{t+i+1}", f"v_lshlrev_b32 v{t+i}, 16, v{t+i+1}", f"v_and_b32 v{t+i+1}, 0xffff0000, v{t+i+1}"]
    allreduce(a, [(R["s"] + 2, R["s"] + 3) for R in rows], fill=fill)
    for R in rows:
        t, s = R["t"], R["s"]
        a(f"v_mul_f32 v{s+2}, 0x3b000000, v{s+2}")
        rnd1(a, s + 2)
        a(f"v_add_f32 v{s+2}, {EPS:#x}, v{s+2}")
        rnd1(a, s + 2)
        a(f"v_sqrt_f32 v{s+2}, v{s+2}")
        rnd1(a, s + 2)
        a(f"v_rcp_f32 v{s+2}, v{s+2}")
        for i in range(0, 8, 2):
            pk(a, "mul", t + i, t + i, s + 2, BC)
        if key:
            for i in range(4):
                a(f"v_cvt_pk_bf16_f32 v{R[key]+i}, v{t+2*i}, v{t+2*i+1}")


def rowfin(a, rows, first=True):
    if first:
        layernorm(a, rows, None)
    for R in rows:
        x, t, y, xo = R["x"], R["t"], R["y"], R["xo"]
        for i in range(0, 8, 2):
            a(f"v_pk_fma_f32 v[{x+i}:{x+i+1}], v[{t+i}:{t+i+1}], v[{y+i}:{y+i+1}], v[{x+i}:{x+i+1}]")
        for i in range(4):
            a(f"v_cvt_pk_bf16_f32 v{xo+i}, v{x+2*i}, v{x+2*i+1}")
        for i in range(4):
            unpack(a, xo + i, x + 2 * i, x + 2 * i + 1)
    layernorm(a, rows, "ho")


def role_pre(a, o):
    KK, KC = 0x0, 4160
    KKS = 4 * KC
    KVR, KVS = 0x10400, 4608
    YS, YR, RS = 0x0, 0x4800, 1040
    TA = 0x14C00
    YB, KVG = 16384 + o.get("ypad", 256), 4096 + o.get("kpad", 128)
    a.srd(12, PTR(1), S * D * 2)
    a.srd(16, PTR(2), S * D * 2)
    a.srd(20, PTR(4), S * D * 2)
    a.srd(24, PTR(0), S * D * 2)
    a.srd(40, PTR(3), D * 4 * 2)
    a(f"s_lshl_b32 s3, s7, 3\n s_load_dwordx2 s[36:37], s[{PTR(5)}:{PTR(5)+1}], s3")
    a("v_and_b32 v1, 63, v0\n v_lshlrev_b32 v2, 4, v1")
    a("v_and_b32 v3, 15, v0\n v_bfe_u32 v4, v0, 4, 2")
    a("s_lshr_b32 s44, s7, 5\n s_lshl_b32 s45, s5, 16\n s_lshl_b32 s3, s44, 8\n s_add_u32 s45, s45, s3")
    a("v_lshrrev_b32 v8, 4, v0\n v_lshlrev_b32 v6, 12, v8\n v_lshl_add_u32 v6, v3, 4, v6\n v_add_u32 v6, s45, v6\n v_subrev_u32 v5, 3072, v6")
    KB, VB, SB = 12, 40, 56
    for i in range(7):
        vo, im = (5, i * 1024) if i < 3 else (6, (i - 3) * 1024)
        a(f"buffer_load_dwordx4 v[{KB+4*i}:{KB+4*i+3}], v{vo}, s[12:15], 0 offen offset:{im}")
    for i in range(4):
        a(f"buffer_load_dwordx4 v[{VB+4*i}:{VB+4*i+3}], v6, s[16:19], 0 offen offset:{i*1024}")
    a("v_lshlrev_b32 v7, 6, v3\n s_lshl_b32 s3, s44, 10")
    for i in range(4):
        a(f"buffer_load_dwordx4 v[{SB+4*i}:{SB+4*i+3}], v7, s[40:43], s3 offen offset:{i*16}")
    a("s_lshl_b32 s38, s7, 2\n s_add_u32 s38, s38, s6")
    a("s_lshl_b32 s39, s38, 12")
    a(f"s_mul_i32 s33, s6, {KKS}")

    def kcopy(cp):
        a(f"s_add_u32 m0, s33, {KK+32+cp*KC}\n s_add_u32 s3, s39, {2*cp}")
        for i in range(4):
            a(f"buffer_load_dwordx4 v2, s[20:23], s3 offen offset:{i*1024} lds")

    kcopy(0)
    XP = 100

    def xrows():
        a("s_lshl_b32 s46, s32, 4\n s_lshl_b32 s3, s6, 2\n s_add_u32 s46, s46, s3\n s_lshl_b32 s47, s46, 10")
        for r in range(4):
            a(f"buffer_load_dwordx4 v[{XP+4*r}:{XP+4*r+3}], v2, s[24:27], s47 offen offset:{r*1024}")

    xrows()
    a(f"s_mul_i32 s45, s44, {128*KVG}\n s_add_u32 s45, s45, {OFF_KVR+3968}\n s_lshl_b32 s3, s5, 7\n s_sub_u32 s45, s45, s3")
    a(f"s_mov_b32 s48, {KVG}\n s_mov_b32 s49, {YB}")
    a("v_lshrrev_b32 v117, 3, v0\n v_and_b32 v116, 7, v0\n v_lshlrev_b32 v116, 4, v116\n v_mad_u32_u24 v118, v117, s49, v116\n v_mad_u32_u24 v116, v117, s48, v116")
    a("v_mov_b32 v10, 0\n v_mov_b32 v11, 0")
    a(f"s_mul_i32 s34, s6, {KVS}\n s_add_u32 s34, s34, {KVR}")
    a("v_lshlrev_b32 v7, 3, v1\n v_add_u32 v9, s34, v7")
    a("ds_write_b64 v9, v[10:11] offset:4096")
    a("v_and_b32 v9, 24, v7\n v_add_u32 v9, s33, v9")
    a(f"ds_write_b64 v9, v[10:11] offset:{KK}")
    a("s_waitcnt lgkmcnt(0)")
    a("s_bitcmp1_b32 s6, 1\n s_cselect_b32 s36, s37, s36")
    a("s_lshl_b32 s37, s36, 16\n s_and_b32 s36, s36, 0xffff0000")
    a("s_bitcmp1_b32 s6, 0\n s_cselect_b32 s36, s36, s37")
    a(f"v_mul_u32_u24 v9, 1040, v3\n v_lshlrev_b32 v8, 3, v8\n v_sub_u32 v9, v9, v8\n v_add_u32 v9, {TA+120}, v9")
    strace(a, o, 0)
    a("s_waitcnt vmcnt(8)")
    strace(a, o, 1)
    for c in range(8):
        up = (lambda d, s: a(f"v_lshlrev_b32 v{d}, 16, v{s}")) if c % 2 == 0 else (lambda d, s: a(f"v_and_b32 v{d}, 0xffff0000, v{s}"))
        for i in range(7):
            up(72 + i, KB + 4 * i + (c >> 1))
        for i in range(4):
            up(80 + i, VB + 4 * i + (c >> 1))
        unpack(a, SB + 2 * c, 84, 85)
        unpack(a, SB + 2 * c + 1, 86, 87)
        for i in range(4):
            a(f"v_mul_f32 v{88+i}, v87, v{72+i}")
        for tap in (2, 1, 0):
            for i in range(4):
                a(f"v_fmac_f32 v{88+i}, v{84+tap}, v{72+i+3-tap}")
        pk(a, "mul", 88, 88, 80); pk(a, "mul", 90, 90, 82)
        P = 92 + 2 * (c & 3)
        a(f"v_cvt_pk_bf16_f32 v{P}, v91, v90\n v_cvt_pk_bf16_f32 v{P+1}, v89, v88")
        a(f"ds_write_b64 v9, v[{P}:{P+1}] offset:{c*128}")
    a(f"v_lshlrev_b32 v7, 4, v0\n s_lshl_b32 s3, s6, 4\n s_add_u32 s3, s3, {TA}\n v_add_u32 v7, s3, v7")
    a("s_waitcnt lgkmcnt(0)\n s_barrier")
    strace(a, o, 2)
    a(f"buffer_load_dword v119, off, {DBG}, 0 sc1")
    for i in range(4):
        a(f"ds_read_b128 v[{12+4*i}:{15+4*i}], v7 offset:{i*4160}")
    for i in range(4):
        a(f"s_waitcnt lgkmcnt({3-i})")
        a(f"buffer_store_dwordx4 v[{12+4*i}:{15+4*i}], v116, {WS}, s45 offen sc1")
        a(f"s_add_u32 s45, s45, {32*KVG}")
    a(f"v_lshlrev_b32 v8, 1, v3\n v_lshl_add_u32 v8, v4, 4, v8\n v_add_u32 v8, s33, v8\n v_mov_b32 v5, 0")
    kc = o.get("kc", 0)
    kcopy(2)
    if kc:
        a("s_barrier")
        kcopy(1); kcopy(3)
    a(f"s_waitcnt vmcnt({12 if kc else 4})")
    if not o.get("staged"):
        sk = a.label("Lsk")
        a(f"v_cmp_gt_u32 vcc, 32, v119\n s_cbranch_vccz {sk}")
        wait_counter(a, 6, 5, 0, 32)
        a(f"{sk}:")
    a("s_lshl_b32 s48, s7, 2\n s_lshl_b32 s3, s6, 29\n s_add_u32 s48, s48, s3\n v_mov_b32 v7, 1")
    a(f"s_add_u32 s3, s48, {FPA}")
    a("s_barrier")
    a(f"buffer_store_dword v7, off, {WS}, s3 sc1")
    strace(a, o, 3)
    if not kc:
        kcopy(1); kcopy(3)
    a(f"s_waitcnt vmcnt({1 if kc else 0})")
    a(f"ds_read_b128 a[0:3], v8 offset:{KK+2}")
    a(f"v_add_u32 v9, 1, v3\n v_and_b32 v8, 3, v9\n v_mul_u32_u24 v8, {KC}, v8\n v_lshrrev_b32 v9, 2, v9\n v_lshl_add_u32 v8, v9, 3, v8")
    a("v_lshl_add_u32 v8, v4, 4, v8\n v_add_u32 v8, s33, v8")
    for i in range(1, 64):
        a(f"ds_read_b64 a[{4*i}:{4*i+1}], v8 offset:{64*i}\n ds_read_b64 a[{4*i+2}:{4*i+3}], v8 offset:{64*i+8}")
        if i % 4 == 3:
            a("s_waitcnt lgkmcnt(6)")
    a(f"v_and_b32 v9, 31, v0\n v_lshlrev_b32 v9, 2, v9\n s_lshl_b32 s3, s44, 7\n s_add_u32 s49, s3, {FPA}")
    strace(a, o, 4)
    wait_flags(a, 6, 9, "s49")
    strace(a, o, 5)
    a(f"s_mov_b32 m0, s34\n s_mul_i32 s3, s38, {KVG}\n s_add_u32 s3, s3, {OFF_KVR}")
    for i in range(4):
        a(f"buffer_load_dwordx4 v2, {WS}, s3 offen offset:{i*1024} sc1 lds")
    a(f"v_lshlrev_b32 v8, 5, v3\n v_sub_u32 v8, {4064-64*56}, v8\n v_lshl_add_u32 v8, v4, 4, v8\n v_add_u32 v8, s34, v8")
    a("s_waitcnt vmcnt(0) lgkmcnt(0)\n s_barrier")
    strace(a, o, 6)
    NB = 6
    BF, ACC = 10, 40
    a(f"v_lshlrev_b32 v9, 5, v3\n v_lshl_add_u32 v9, v4, 3, v9\n v_sub_u32 v34, {4088-7*512}, v9\n v_add_u32 v34, s34, v34")
    a(f"v_mul_u32_u24 v35, 144, v3\n v_lshl_add_u32 v35, v4, 3, v35\n s_lshl_b32 s3, s6, 5\n s_add_u32 s3, s3, {YS}\n v_add_u32 v35, s3, v35")
    a(f"v_lshrrev_b32 v9, 3, v0\n v_add_u32 v36, v0, v9\n v_lshlrev_b32 v36, 4, v36\n v_add_u32 v36, {YS}, v36")
    a(f"s_lshl_b32 s39, s7, 7\n s_add_u32 s39, s39, {OFF_YT}")

    def conv(ms, tiles, hook=None):
        rd = lambda j: a(f"ds_read_b128 v[{BF+4*(j%NB)}:{BF+4*(j%NB)+3}], v8 offset:{64*(56-ms[j])}")
        for j in range(NB - 1):
            rd(j)
        started = set()
        for j, m in enumerate(ms):
            if j + NB - 1 < len(ms):
                rd(j + NB - 1)
            a(f"s_waitcnt lgkmcnt({min(NB-1, len(ms)-1-j)})")
            for T in tiles:
                ai = 8 * T - m
                if 0 <= ai <= 63:
                    c = f"v[{ACC+4*T}:{ACC+4*T+3}]" if T in started else "0"
                    started.add(T)
                    a(f"v_mfma_f32_16x16x32_bf16 v[{ACC+4*T}:{ACC+4*T+3}], a[{4*ai}:{4*ai+3}], v[{BF+4*(j%NB)}:{BF+4*(j%NB)+3}], {c}")
            if hook:
                hook(j)

    def finish(tiles):
        for T in tiles:
            a(f"ds_read_b64 v[{80+2*T}:{81+2*T}], v34 offset:{(7-T)*512}")
        a("s_waitcnt lgkmcnt(0)")
        for T in tiles:
            A = ACC + 4 * T
            unpack(a, 81 + 2 * T, 11, 10)
            unpack(a, 80 + 2 * T, 13, 12)
            for r in range(4):
                a(f"v_fmac_f32 v{A+r}, s36, v{10+r}")
            a(f"v_cvt_pk_bf16_f32 v{A}, v{A}, v{A+1}\n v_cvt_pk_bf16_f32 v{A+1}, v{A+2}, v{A+3}")
            a(f"ds_write_b64 v35, v[{A}:{A+1}] offset:{T*2304}")
        a("s_waitcnt lgkmcnt(0)\n s_barrier")

    def arrive(off):
        a(f"s_lshl_b32 s3, s44, 7\n s_add_u32 s3, s3, {FPB+128+off}\n v_mov_b32 v6, 1\n s_mov_b64 exec, 1")
        a(f"buffer_atomic_add v6, off, {WS}, s3 sc0 sc1")
        a("s_mov_b64 exec, -1")

    def announce(flag, sk):
        a(f"s_lshl_b32 s3, s44, 2\n s_add_u32 s3, s3, {flag}\n s_waitcnt vmcnt(0)")
        a(f"v_readfirstlane_b32 s37, v6\n s_cmp_lg_u32 s37, 31\n s_cbranch_scc1 {sk}")
        a(f"buffer_store_dword v7, off, {WS}, s3 sc1")

    conv(list(range(0, -8, -1)), [0])
    finish([0])
    sk = a.label("Lsk")
    a(f"s_cmp_lg_u32 s6, 0\n s_cbranch_scc1 {sk}")
    a(f"ds_read_b128 v[72:75], v36\n ds_read_b128 v[76:79], v36 offset:1152\n s_add_u32 s3, s39, {8*YB}\n s_waitcnt lgkmcnt(0)")
    a(f"buffer_store_dwordx4 v[72:75], v118, {WS}, s39 offen sc1\n buffer_store_dwordx4 v[76:79], v118, {WS}, s3 offen sc1")
    a(f"{sk}:")

    def hook(j):
        if j in (8, 15):
            sk = a.label("Lsk")
            a(f"s_cmp_lg_u32 s6, 0\n s_cbranch_scc1 {sk}")
            if j == 8:
                a("s_waitcnt vmcnt(0)")
                arrive(64)
            else:
                announce(FPE, sk)
            a(f"{sk}:")

    conv(list(range(-7, 57)), range(1, 8), hook)
    strace(a, o, 7)
    finish(range(1, 8))
    strace(a, o, 8)
    for i in range(4):
        a(f"ds_read_b128 v[{12+4*i}:{15+4*i}], v36 offset:{i*4608}")
    for i in range(4):
        a(f"s_waitcnt lgkmcnt({3-i})")
        a(f"buffer_store_dwordx4 v[{12+4*i}:{15+4*i}], v118, {WS}, s39 offen sc1")
        a(f"s_add_u32 s39, s39, {32*YB}")
    a("s_waitcnt vmcnt(0)\n s_barrier")
    sk = a.label("Lsk")
    a(f"s_cmp_lg_u32 s6, 0\n s_cbranch_scc1 {sk}")
    arrive(0)
    announce(FPB, sk)
    a(f"{sk}:")
    a(f"s_mov_b32 s48, {FPB}\n s_cmp_ge_u32 s32, 128\n s_cbranch_scc1 L_pre_end")
    if not o.get("staged") and o.get("hc", 1) >= 0:
        a(f"s_lshl_b32 s49, s5, 7\n s_add_u32 s49, s49, {FB + o.get('hc', 1) * 4096}")
        wait_flags(a, 6, 5, "s49", sleep=8)
    a("s_branch L_pre_c")
    a("L_pre_early:")
    a.srd(24, PTR(0), S * D * 2)
    a("v_and_b32 v1, 63, v0\n v_lshlrev_b32 v2, 4, v1\n v_and_b32 v3, 15, v0\n v_bfe_u32 v4, v0, 4, 2\n v_mov_b32 v5, 0")
    a(f"s_mov_b32 s48, {FPE}")
    if not o.get("staged"):
        wait_counter(a, 6, 5, 0, 32)
    a("L_pre_x:")
    xrows()
    a("s_waitcnt vmcnt(0)")
    a("L_pre_c:")
    strace(a, o, 9)
    rows = []
    for r in range(4):
        b = 120 + 32 * r
        rows.append(dict(x=b, t=b + 8, s=b + 16, yp=b + 20, xo=b + 24, ho=b + 28, y=40 + 8 * r))
        for i in range(4):
            unpack(a, XP + 4 * r + i, b + 2 * i, b + 2 * i + 1)
    layernorm(a, rows, None)
    a(f"s_lshl_b32 s3, s6, 2\n s_add_u32 s49, s3, s48")
    wait_flags(a, 6, 5, "s49")
    strace(a, o, 10)
    a(f"s_mul_i32 s35, s32, {YB}\n s_add_u32 s35, s35, {OFF_YT}\n s_lshl_b32 s3, s6, 12\n s_add_u32 s35, s35, s3\n s_add_u32 s37, s3, {YS}")
    a("s_mov_b32 m0, s37")
    for i in range(4):
        a(f"buffer_load_dwordx4 v2, {WS}, s35 offen offset:{i*1024} sc1 lds")
    a("v_lshl_add_u32 v6, v1, 3, s37")
    a(f"v_mul_u32_u24 v7, {RS}, v3\n v_lshl_add_u32 v7, v4, 3, v7\n s_lshl_b32 s3, s6, 8\n v_add_u32 v7, s3, v7")
    a("s_waitcnt vmcnt(0)")
    for i in range(8):
        a(f"ds_read_b64_tr_b16 v[{10+2*i}:{11+2*i}], v6 offset:{i*512}")
    for i in range(8):
        a(f"s_waitcnt lgkmcnt(7)")
        a(f"ds_write_b64 v7, v[{10+2*i}:{11+2*i}] offset:{YR+32*i}")
    a("s_waitcnt lgkmcnt(0)\n s_barrier")
    strace(a, o, 11)
    a(f"s_mul_i32 s3, s6, {4*RS}\n v_add_u32 v7, s3, v2")
    for r in range(4):
        a(f"ds_read_b128 v[{rows[r]['yp']}:{rows[r]['yp']+3}], v7 offset:{YR+r*RS}")
    a("s_waitcnt lgkmcnt(0)")
    a(f"s_add_u32 s35, s47, {OFF_Y}")
    for r in range(4):
        a(f"buffer_store_dwordx4 v[{rows[r]['yp']}:{rows[r]['yp']+3}], v2, {WS}, s35 offen offset:{r*1024} sc1")
        for i in range(4):
            unpack(a, rows[r]['yp'] + i, rows[r]['y'] + 2 * i, rows[r]['y'] + 2 * i + 1)
    rowfin(a, rows, first=False)
    strace(a, o, 12)
    a(f"s_add_u32 s35, s47, {OFF_X}\n s_add_u32 s36, s47, {OFF_H}")
    for r in range(4):
        a(f"s_add_u32 s3, s46, {r}\n s_and_b32 s3, s3, 15\n s_lshl_b32 s3, s3, 4")
        a(f"v_xor_b32 v{10+r}, s3, v2")
        a(f"buffer_store_dwordx4 v[{rows[r]['ho']}:{rows[r]['ho']+3}], v{10+r}, {WS}, s36 offen offset:{r*1024} sc1")
        a(f"buffer_store_dwordx4 v[{rows[r]['xo']}:{rows[r]['xo']+3}], v2, {WS}, s35 offen offset:{r*1024} sc1")
    a(f"s_lshl_b32 s35, s46, 2\n s_add_u32 s35, s35, {FH}")
    for r in range(16, 20):
        a(f"v_mov_b32 v{r}, 1")
    a("s_waitcnt vmcnt(0)")
    a(f"buffer_store_dwordx4 v[16:19], off, {WS}, s35 sc1")
    strace(a, o, 13)
    a("s_barrier")
    a("s_sub_u32 s3, s32, 16\n s_add_u32 s32, s32, 32\n s_cmp_lt_u32 s3, 64\n s_cbranch_scc1 L_pre_x")
    a("L_pre_end:")
    if o.get("ptrace"):
        for k in range(14):
            a(f"s_and_b32 s3, s{50+k}, 0x0fffffff\n s_or_b32 s3, s3, {2 << 28:#x}\n v_mov_b32 v6, s3\n buffer_store_dword v6, off, {WS}, s99\n s_add_u32 s99, s99, 4")
    trace(a, o, 6, 1, 5)


def build(o):
    from roles import role_qkv, role_chain, role_ao
    roles = o["roles"]
    a = Asm()
    a("s_cmp_ge_u32 s2, 256\n s_cbranch_scc1 L_end")
    a("s_load_dwordx16 s[64:79], s[0:1], 0\n s_load_dwordx16 s[80:95], s[0:1], 64")
    a("s_and_b32 s4, s2, 7\n s_lshr_b32 s5, s2, 3")
    tm = o.get("tm", 0x36274150)
    if tm != 0x76543210:
        a(f"s_lshl_b32 s4, s4, 2\n s_lshr_b32 s4, {tm:#x}, s4\n s_and_b32 s4, s4, 7")
    a("v_lshrrev_b32 v1, 6, v0\n s_nop 0\n v_readfirstlane_b32 s6, v1")
    a(f"s_mov_b32 {TMO}, {o.get('tmo', 1 << 20)}")
    a("s_waitcnt lgkmcnt(0)")
    a.srd(8, PTR(15), WS_BYTES)
    a.srd(28, PTR(14), 256)
    if o.get("trace"):
        a(f"s_lshl_b32 s99, s5, 3\n s_add_u32 s99, s99, s4\n s_lshl_b32 s99, s99, 2\n s_add_u32 s99, s99, s6\n s_lshl_b32 s99, s99, 12\n s_add_u32 s99, s99, {OFF_TR}")
        a("v_and_b32 v1, 63, v0")
        trace(a, o, 2, 1, 1)
    if not o.get("staged"):
        a(f"s_cmp_lg_u32 s4, {T_CHAIN[1]}\n s_cbranch_scc1 L_nc")
        a("v_and_b32 v1, 63, v0\n v_lshlrev_b32 v1, 4, v1")
        for r in range(4, 8):
            a(f"v_mov_b32 v{r}, 0")
        a("s_lshl_b32 s3, s5, 2\n s_add_u32 s3, s3, s6\n s_lshl_b32 s3, s3, 10")
        for i in (4, 0, 1, 2, 3):
            a(f"s_add_u32 s7, s3, {i*0x20000}\n buffer_store_dwordx4 v[4:7], v1, {WS}, s7 offen sc1")
        a("s_waitcnt vmcnt(0)\n s_barrier")
        a("s_cmp_lg_u32 s6, 0\n s_cbranch_scc1 L_nc0")
        count_arrive(a, 2, 4, 0)
        a("L_nc0:")
        if o.get("cwo", 1):
            a.srd(20, PTR(11), D * H * DH * 2)
            a("s_barrier\n v_lshlrev_b32 v2, 3, v1\n s_lshl_b32 s3, s3, 5")
            for i in range(4):
                a("buffer_load_dword v127, v2, s[20:23], s3 offen\n s_add_u32 s3, s3, 8192")
        a("L_nc:")
    if "pre" in roles:
        a("s_cmp_lg_u32 s4, 3\n s_cbranch_scc1 L_nq\n s_cmp_lt_u32 s5, 16\n s_cbranch_scc1 L_main")
        a("s_and_b32 s32, s5, 15\n s_lshl_b32 s3, s32, 2\n s_add_u32 s3, s3, s6\n s_lshl_b32 s3, s3, 15\n s_add_u32 s41, s3, 0x200000")
        a("v_bfe_u32 v9, v0, 1, 5\n v_lshlrev_b32 v9, 10, v9\n v_and_b32 v10, 1, v0\n v_lshl_add_u32 v9, v10, 7, v9")
        for m in (9, 10):
            a.srd(20, PTR(m), D * H * DH * 2)
            a("buffer_load_dword v10, v9, s[20:23], s3 offen offset:256\n buffer_load_dword v10, v9, s[20:23], s41 offen offset:256")
        a("s_branch L_pre_early")
        a("L_nq:")
        a("s_lshr_b32 s3, 0xe2, s4\n s_bitcmp0_b32 s3, 0\n s_cbranch_scc1 L_main")
        a("s_mov_b32 s32, 128\n s_cmp_eq_u32 s4, 5\n s_cselect_b32 s32, 16, s32")
        a("s_lshr_b32 s3, s5, 4\n s_add_u32 s3, s3, s4\n s_cmp_eq_u32 s3, 8\n s_cselect_b32 s32, 96, s32\n s_add_u32 s32, s32, s5")
        a("s_max_u32 s7, s4, 4\n s_and_b32 s7, s7, 3\n s_lshl_b32 s7, s7, 5\n s_add_u32 s7, s7, s5")
        role_pre(a, o)
        if not o.get("staged") and o.get("hold", 1):
            a("s_lshr_b32 s3, s5, 4\n s_add_u32 s3, s3, s4\n s_cmp_eq_u32 s4, 7\n s_cselect_b32 s3, s3, s4")
            a("s_cmp_lt_u32 s3, 4\n s_cbranch_scc1 L_main\n s_cmp_eq_u32 s3, 7\n s_cbranch_scc1 L_main")
            if o.get("hk", 0) < 0:
                a("s_cmp_eq_u32 s3, 6\n s_cbranch_scc1 L_main")
            a(f"s_cmp_eq_u32 s3, 6\n s_cselect_b32 s49, {o.get('hk', 0)}, {o.get('ha', 5)}\n s_lshl_b32 s49, s49, 12")
            a(f"s_lshl_b32 s3, s5, 7\n s_add_u32 s49, s49, s3")
            wait_flags(a, 6, 5, "s49", sleep=8)
    a("L_main:")
    a("s_lshr_b32 s7, s4, 2\n s_lshr_b32 s3, s5, 4\n s_and_b32 s40, s4, 3\n s_cmp_eq_u32 s40, 3\n s_cselect_b32 s7, s3, s7")
    a("s_lshl_b32 s3, s7, 3\n s_add_u32 s3, s3, s4")
    for l in (0, 1):
        if f"chain{l}" in roles:
            a(f"s_cmp_eq_u32 s4, {T_CHAIN[l]}\n s_cbranch_scc1 L_chain")
        if f"ao{l}" in roles:
            a(f"s_cmp_eq_u32 s4, {T_AO[l]}\n s_cbranch_scc1 L_ao")
            a(f"s_cmp_eq_u32 s3, {7+8*l}\n s_cbranch_scc1 L_ao")
        if f"qkv{l}" in roles:
            a(f"s_cmp_eq_u32 s4, {T_KV[l]}\n s_cbranch_scc1 L_qkv")
            a(f"s_cmp_eq_u32 s3, {3+8*l}\n s_cbranch_scc1 L_qkv")
    a("L_end:\n s_endpgm")
    if roles & {"qkv0", "qkv1"}:
        a("L_qkv:")
        role_qkv(a, o)
        a("s_endpgm")
    if roles & {"ao0", "ao1"}:
        a("L_ao:")
        role_ao(a, o)
        a("s_endpgm")
    if roles & {"chain0", "chain1"}:
        a("L_chain:")
        role_chain(a, o)
        a("s_endpgm")
    body = hazard.fix(a.text())
    errs = hazard.check(body)
    if errs:
        raise SystemExit("hazards:\n" + "\n".join(errs))
    name = KNAME + "_kernel"
    hdr = open("header.txt").read()
    hdr += "; @launch grid=(256,1,1) block=(256,1,1) lds=163840\n.amdgcn_target \"amdgcn-amd-amdhsa--gfx950\"\n"
    return hdr + kernel_header(name) + body + "\n" + kernel_desc(name, 512, 256), name


ALL = {"pre", "qkv0", "qkv1", "chain0", "chain1", "ao0", "ao1"}

if __name__ == "__main__":
    txt, name = build(dict(roles=ALL))
    open(f"cdna_kernels/{KNAME}.s", "w").write(txt)
    print("written", len(txt), "bytes")
```

```python
from asmlib import *
from layout import *
from gen import PTR, WS, DBG, TMO, wait_flags, wait_counter, count_arrive, poll_tail, unpack, rowfin, allreduce, trace


def stage_weights(a, srds, trfn, vsrc, nslot=8, perm=False, head="s5", extra=None, hook=None):
    a(f"v_bfe_u32 v{vsrc}, v0, 2, 2")
    if perm:
        a(f"v_and_b32 v{vsrc+1}, 2, v{vsrc}\n v_add_u32 v{vsrc}, v{vsrc}, v{vsrc+1}")
    a(f"v_lshlrev_b32 v{vsrc}, 13, v{vsrc}")
    a(f"v_bfe_u32 v{vsrc+1}, v0, 4, 2\n v_lshl_add_u32 v{vsrc}, v{vsrc+1}, 6, v{vsrc}")
    a(f"v_and_b32 v{vsrc+1}, 3, v0\n v_lshl_add_u32 v{vsrc}, v{vsrc+1}, 4, v{vsrc}")
    a(f"s_lshl_b32 s40, {head}, 8\n v_add_u32 v{vsrc}, s40, v{vsrc}")
    if perm:
        a("s_and_b32 s40, s6, 1\n s_lshl_b32 s40, s40, 5\n s_and_b32 s41, s6, 2\n s_lshl_b32 s41, s41, 6\n s_add_u32 s40, s40, s41\n s_lshl_b32 s40, s40, 13")
    else:
        a("s_lshl_b32 s40, s6, 17")
    a("s_lshl_b32 s41, s6, 12")
    chunks = [(m, c) for m in range(len(srds)) for c in range(8)]

    def issue(j):
        m, c = chunks[j]
        if extra and c == 0 and m == 1:
            a(f"s_add_u32 s40, s40, {extra}")
        for b in range(4):
            a(f"s_add_u32 m0, s41, {(j % nslot) * 16384 + b * 1024}")
            row = 256 * (c & 1) + 64 * (c >> 2) + 2 * ((c >> 1) & 1) + 8 * b if perm else 64 * c + 4 * b
            a(f"s_add_u32 s42, s40, {row * 8192}")
            a(f"buffer_load_dwordx4 v{vsrc}, {srds[m]}, s42 offen lds")

    ops = []
    issued = 0
    for j in range(min(nslot, len(chunks))):
        issue(j); ops.extend([j] * 4); issued += 1
    for j, (m, c) in enumerate(chunks):
        last = max(i for i, x in enumerate(ops) if x == j)
        a(f"s_waitcnt vmcnt({len(ops) - 1 - last})\n s_barrier")
        trfn(m, c, (j % nslot) * 16384)
        if hook:
            hook(j, ops)
        if j >= 1 and issued < len(chunks):
            issue(issued); ops.extend([issued] * 4); issued += 1
        a("s_waitcnt lgkmcnt(0)")
    a("s_barrier")
    return ops


def flag_store(a, vone, vz, soff, imm=0):
    a("s_mov_b64 exec, 1")
    a(f"buffer_store_dword v{vone}, v{vz}, {WS}, {soff} offen offset:{imm} sc1")
    a("s_mov_b64 exec, -1")


def role_qkv(a, o):
    VL16, VZ, VONE, VF, VFO = 1, 2, 3, 4, 5
    HF, NB, PK, VA = 64, 4, 88, 104
    a("s_and_b32 s56, s4, 1\n s_lshl_b32 s57, s5, s56\n s_and_b32 s57, s57, 31\n s_lshl_b32 s58, s56, 8")
    a("s_cmp_lg_u32 s56, 0")
    a(f"s_cselect_b64 s[12:13], s[{PTR(8)}:{PTR(8)+1}], s[{PTR(9)}:{PTR(9)+1}]\n s_cselect_b64 s[16:17], s[{PTR(8)}:{PTR(8)+1}], s[{PTR(10)}:{PTR(10)+1}]")
    a.srd(12, 12, D * H * DH * 2)
    a.srd(16, 16, D * H * DH * 2)
    WREG = lambda m, ks: f"a[{128*m+4*ks}:{128*m+4*ks+3}]"
    a(f"v_and_b32 v{VL16}, 63, v0\n v_lshlrev_b32 v{VL16}, 4, v{VL16}")
    a(f"v_mov_b32 v{VZ}, 0\n v_mov_b32 v{VONE}, 1")
    a(f"v_and_b32 v{VFO}, 31, v0\n v_lshlrev_b32 v{VFO}, 2, v{VFO}")
    a("v_bfe_u32 v8, v0, 5, 1\n v_lshlrev_b32 v8, 11, v8")
    a("v_bfe_u32 v9, v0, 2, 2\n v_lshl_add_u32 v8, v9, 6, v8")
    a("v_bfe_u32 v9, v0, 4, 1\n v_lshl_add_u32 v8, v9, 5, v8")
    a("v_and_b32 v9, 3, v0\n v_lshl_add_u32 v8, v9, 3, v8")
    a("s_lshl_b32 s3, s6, 8\n v_add_u32 v8, s3, v8\n v_add_u32 v9, 0x10000, v8")

    def tr(m, c, base):
        for kk in range(4):
            for u in range(2):
                r = 128 * m + 4 * (4 * c + kk) + 2 * u
                off = base + kk * 4096 + u * 1024
                a(f"ds_read_b64_tr_b16 a[{r}:{r+1}], v{8 + (off >> 16)} offset:{off & 0xffff}")

    if not o.get("staged") and o.get("kw", 1):
        wait_counter(a, VF, VZ, 0, 32)
    stage_weights(a, ["s[12:15]", "s[16:19]"], tr, 10, head="s57", extra="s58")
    if not o.get("staged") and not o.get("kw", 1):
        wait_counter(a, VF, VZ, 0, 32)
    a("v_and_b32 v8, 31, v0\n v_bfe_u32 v9, v0, 5, 1\n v_and_b32 v10, 15, v0\n v_xor_b32 v9, v9, v10")
    a("v_lshlrev_b32 v9, 4, v9\n v_lshl_add_u32 v8, v8, 10, v9")
    for j in range(8):
        a(f"v_xor_b32 v{VA+j}, {j << 5}, v8")
    a("v_mov_b32 v6, 0x3e0293ee\n v_and_b32 v7, 1, v0\n v_lshlrev_b32 v7, 7, v7\n v_mul_u32_u24 v7, s56, v7")
    a(f"s_lshl_b32 s3, s7, 6\n s_mov_b32 s44, 0")
    a(f"s_lshl_b32 s45, s3, 7\n s_add_u32 s45, s45, {FH}")
    a(f"s_lshl_b32 s46, s3, 15\n s_add_u32 s46, s46, {OFF_H}\n s_lshl_b32 s53, s6, 13\n s_add_u32 s46, s46, s53")
    a(f"s_lshl_b32 s3, s3, 5\n s_add_u32 s3, s3, s57")
    a(f"s_lshl_b32 s50, s3, 7\n s_lshl_b32 s47, s56, 2\n s_add_u32 s50, s50, s47")
    a(f"s_lshl_b32 s3, s7, 5\n s_add_u32 s3, s3, s57\n s_mul_i32 s47, s3, {HEADB}\n s_add_u32 s47, s47, {OFF_QKV}\n s_lshl_b32 s3, s6, 11\n s_add_u32 s47, s47, s3")
    a(f"s_lshl_b32 s3, s56, 14\n s_add_u32 s47, s47, s3\n s_mul_i32 s3, s56, {HEADB-8192}\n s_add_u32 s48, s47, 8192\n s_add_u32 s48, s48, s3")

    ACC = ((16, 32), (112, 128))

    def dma_list(buf):
        L = []
        for hh in range(2):
            for i in range(4):
                pre = (f"s_add_u32 m0, s53, {buf*32768}\n s_add_u32 s3, s46, 4096\n" if hh == 0 else f"s_add_u32 m0, s53, {buf*32768+4096}\n s_add_u32 s45, s45, 128\n") if i == 0 else ""
                L.append(pre + f"buffer_load_dwordx4 v{VL16}, {WS}, {('s46', 's3')[hh]} offen offset:{i*1024} sc1 lds")
        L[-1] += "\n s_add_u32 s46, s46, 32768"
        return L

    def epi(q, acc2):
        G = []
        for mi, acc in enumerate(acc2):
            isv = mi == 1 and not q
            for hh in range(2):
                g = []
                for i in range(4 * hh, 4 * hh + 4):
                    if isv:
                        r0 = acc + 4 * (i >> 2) + 8 * ((i >> 1) & 1) + 2 * (i & 1); r1 = r0 + 1
                    else:
                        r0 = acc + 8 * (i >> 2) + (i & 3); r1 = r0 + 4
                    if q:
                        g += [f"v_mul_f32 v{r0}, v6, v{r0}", f"v_mul_f32 v{r1}, v6, v{r1}"]
                    g.append(f"v_cvt_pk_bf16_f32 v{PK+8*mi+i}, v{r0}, v{r1}")
                b = PK + 8 * mi + 4 * hh
                g.append(f"buffer_store_dwordx4 v[{b}:{b+3}], v{VL16}, {WS}, {('s60', 's61')[mi]} offen offset:{hh*1024} sc1")
                G.append(g)
        if not q:
            G.append([f"s_add_u32 s3, s60, s49\n buffer_store_dwordx4 v[48:51], v{VL16}, {WS}, s3 offen sc1"])
        return G

    ARR = lambda p: f"s_mov_b64 exec, s[54:55]\n ds_add_rtn_u32 v11, v12, v{VONE} offset:{4*p}\n s_mov_b64 exec, -1"
    FL = f"v_readfirstlane_b32 s3, v11\n s_and_b32 s3, s3, 3\n s_cmp_eq_u32 s3, 3\n s_cselect_b32 s3, s62, s63\n buffer_store_dword v{VONE}, v7, {WS}, s3 offen sc1"
    SAMPLE = f"buffer_load_dword v{VF}, v{VFO}, {WS}, s45 offen sc1"
    ADV = (f"s_mov_b32 s60, s47\n s_mov_b32 s61, s48\n s_mov_b32 s62, s50\n s_mov_b64 s[54:55], 1", f"s_add_u32 s47, s47, {SEGB}\n s_add_u32 s48, s48, {SEGB}",
           f"s_add_u32 s50, s50, {32*128}\n s_add_u32 s44, s44, 1")
    hf = lambda j: f"v[{HF+4*(j%NB)}:{HF+4*(j%NB)+3}]"
    rd = lambda j, buf: a(f"ds_read_b128 {hf(j)}, v{VA+(j&7)} offset:{buf*32768+(j>>3)*256}")

    def choose(T, par):
        a(f"v_cmp_eq_u32 vcc, 0, v{VF}\n s_cmp_ge_u32 s44, 63\n s_cbranch_scc1 L_{T}{par}B\n s_cbranch_vccnz L_{T}{par}B\n s_branch L_{T}{par}A")

    trace(a, o, 10, VZ, 6)
    a("s_lshl_b32 s3, s6, 10\n s_sub_u32 s49, 24576, s3")
    for r in range(48, 52):
        a(f"v_mov_b32 v{r}, {SENT:#x}")
    a(f"s_mov_b32 s63, 0x20000000\n v_mov_b32 v12, 0x10000\n v_mov_b32 v11, 0\n ds_write2_b32 v12, v{VZ}, v{VZ} offset1:1\n s_waitcnt lgkmcnt(0)")
    a(f"v_mov_b32 v{VF}, 0\n s_cmp_lg_u32 s56, 0\n s_cbranch_scc1 L_qq1W\n s_branch L_kv1W")

    def mm(q, par, j, t):
        A = ACC[par][t]
        ops = f"{WREG(t,j)}, {hf(j)}" if (q or t == 0) else f"{hf(j)}, {WREG(t,j)}"
        a(f"v_mfma_f32_32x32x16_bf16 v[{A}:{A+15}], {ops}, " + (f"v[{A}:{A+15}]" if j else "0"))

    def one_pass(T, q, par, var):
        a(f"L_{T}{par}{var}:")
        trace(a, o, 10, VZ, 7)
        fill = {}
        g = 4
        j1, j2 = o.get("j1", 11), o.get("j2", 24)
        if var == "A":
            for i, x in enumerate(dma_list(1 - par) + [SAMPLE]):
                fill[i] = [x]
            g = 9
        for grp in epi(q, ACC[1 - par]):
            per = 4
            for k in range(0, len(grp), per):
                fill[g] = grp[k:k + per]; g += 1
        if var == "A":
            fill[55] = ["s_waitcnt vmcnt(0)", ARR(1 - par)]
            fill[58] = [FL]
            fill[50] = [ADV[0].replace("s_mov_b32 s62, s50\n s_mov_b64 s[54:55], 1", "s_mov_b32 s51, s50")]
            fill[60] = ["s_mov_b32 s62, s51\n s_mov_b64 s[54:55], 1"]
        else:
            fill[1] = [SAMPLE, "s_mov_b32 s52, 0"]
            fill[2 * j2 - 10] = [SAMPLE]
            fill[2 * j2 + 8] = [FL]
            fill[50] = fill.get(50, []) + [ADV[0].replace("s_mov_b32 s62, s50\n s_mov_b64 s[54:55], 1", "s_mov_b32 s51, s50")]
            fill[57] = ["s_mov_b32 s62, s51\n s_mov_b64 s[54:55], 1"]
        fill[51] = [ADV[1]]; fill[53] = [ADV[2]]
        for j in range(32):
            if j == 29:
                if var == "B":
                    a(f"s_cmp_lg_u32 s52, 1\n s_cbranch_scc1 L_{T}{par}T")
                a(f"s_waitcnt vmcnt({0 if var == 'A' else 1}) lgkmcnt(0)\n s_barrier")
            if j + NB - 1 < 32:
                rd(j + NB - 1, par)
                a(f"s_waitcnt lgkmcnt({NB-1})")
            else:
                rd(j + NB - 1 - 32, 1 - par)
            for t in range(2):
                mm(q, par, j, t)
                for x in fill.get(2 * j + t, []):
                    a(x)
            if var == "B" and j in (j1, j2):
                sk = a.label("Lq")
                if j == j1:
                    a(f"s_waitcnt vmcnt({4 if q else 5})")
                else:
                    a(f"s_cmp_lg_u32 s52, 0\n s_cbranch_scc0 {sk}a\n s_waitcnt vmcnt(9)")
                    a(ARR(1 - par))
                    a(f"s_branch {sk}x")
                    a(f"{sk}a:")
                    a("s_waitcnt vmcnt(0)")
                    a(ARR(1 - par))
                a(f"v_cmp_eq_u32 vcc, 0, v{VF}\n s_cmp_ge_u32 s44, 63\n s_cbranch_scc1 {sk}\n s_cbranch_vccnz {sk}")
                for x in dma_list(1 - par):
                    a(x)
                a(f"s_mov_b32 s52, {1 if j == j1 else 2}")
                a(f"{sk}:")
                a(f"{sk}x:")
        choose(T, 1 - par)
        if var == "B":
            a(f"L_{T}{par}T:")
            a("s_waitcnt lgkmcnt(0)")
            a(SAMPLE)
            for j in range(29, 32):
                for t in range(2):
                    mm(q, par, j, t)
            for grp in epi(q, ACC[par]):
                for x in grp:
                    a(x)
            a(f"s_cmp_eq_u32 s52, 2\n s_cbranch_scc0 L_{T}{par}X\n s_waitcnt vmcnt(0)\n s_branch L_{T}{par}Y")
            a(f"L_{T}{par}X:")
            a(f"s_waitcnt vmcnt({4 if q else 5})\n v_cmp_eq_u32 vcc, 0, v{VF}\n s_cmp_ge_u32 s44, 64\n s_cbranch_scc1 L_{T}{par}U\n s_cbranch_vccnz L_{T}{par}U")
            for x in dma_list(1 - par):
                a(x)
            a(SAMPLE)
            a("s_waitcnt vmcnt(9)")
            a(f"L_{T}{par}Y:")
            a(ARR(par))
            a("s_waitcnt lgkmcnt(0)")
            a(FL)
            a("s_mov_b32 s60, s63\n s_mov_b32 s61, s63\n s_mov_b32 s62, s63\n s_mov_b64 s[54:55], 0")
            a(f"s_waitcnt vmcnt(1)\n s_branch L_{T}{par}V")
            a(f"L_{T}{par}U:")
            a("s_waitcnt vmcnt(0)")
            a(SAMPLE)
            a(ARR(par))
            a("s_waitcnt lgkmcnt(0)")
            a(FL)
            a("s_cmp_ge_u32 s44, 64\n s_cbranch_scc1 L_end\n s_waitcnt vmcnt(1)")
            a(f"L_{T}{par}W:")
            a("s_mov_b32 s60, s63\n s_mov_b32 s61, s63\n s_mov_b32 s62, s63\n s_mov_b64 s[54:55], 0")
            s2 = a.label("Lq")
            a(f"v_cmp_eq_u32 vcc, 0, v{VF}\n s_cbranch_vccz {s2}")
            wait_flags(a, VF, VFO, "s45", sleep=o.get("slq", 1))
            a(f"{s2}:")
            for x in dma_list(1 - par):
                a(x)
            a(SAMPLE)
            a("s_waitcnt vmcnt(0)")
            a(f"L_{T}{par}V:")
            a("s_barrier")
            for j in range(NB - 1):
                rd(j, 1 - par)
            choose(T, 1 - par)

    for T, q in (("kv", False), ("qq", True)):
        for par in range(2):
            for var in "AB":
                one_pass(T, q, par, var)


def team_publish(a, vtmp, vz):
    sk = a.label("Ltp")
    a(f"s_cmp_lg_u32 s6, 0\n s_cbranch_scc1 {sk}")
    a("s_getreg_b32 s3, hwreg(HW_REG_XCC_ID)\n s_and_b32 s3, s3, 15\n s_add_u32 s3, s3, 1")
    a(f"v_mov_b32 v{vtmp}, s3")
    a(f"s_lshl_b32 s3, s4, 5\n s_add_u32 s3, s3, s5\n s_lshl_b32 s3, s3, 2\n s_add_u32 s3, s3, {FTEAM}")
    flag_store(a, vtmp, vz, "s3")
    a(f"{sk}:")


def team_wait(a, vtmp, voff, mixed_label, n=32):
    a(f"v_and_b32 v{voff}, {n-1}, v0\n v_lshlrev_b32 v{voff}, 2, v{voff}")
    a(f"s_lshl_b32 s40, s4, 7\n s_add_u32 s40, s40, {FTEAM}\n s_and_b32 s3, s5, {32-n}\n s_lshl_b32 s3, s3, 2\n s_add_u32 s40, s40, s3")
    wait_flags(a, vtmp, voff, "s40")
    a(f"v_readfirstlane_b32 s3, v{vtmp}")
    a(f"v_cmp_ne_u32 vcc, s3, v{vtmp}")
    a(f"s_cbranch_vccnz {mixed_label}")


def nops(a, cyc):
    n = cyc // 4
    while n > 0:
        k = min(n, 16)
        a(f"s_nop {k-1}")
        n -= k


def role_chain(a, o):
    MX, OX, KX, QX = 0x20000, 0x22000, 0x24000, 0x26000
    VL16, VIDX, VMX, VQW, VQR, VKX, VVX, VPF, VWO, VP1S, VKMS, VMS, VOR, VL8, VF = range(1, 16)
    RM, RK, AQ, AK, AV, QF, VX = 16, 48, 80, 88, 96, 104, 120
    prof = o.get("prof")
    CLK = "s_memrealtime" if o.get("rt") else "s_memtime"
    a.srd(12, PTR(8), D * H * DH * 2)
    a.srd(16, PTR(9), D * H * DH * 2)
    a.srd(20, PTR(10), D * H * DH * 2)
    a.srd(24, PTR(11), D * H * DH * 2)
    a.srd(32, PTR(7), M * D * 2)
    a(f"v_and_b32 v{VL16}, 63, v0\n v_lshlrev_b32 v{VL16}, 4, v{VL16}")
    a("v_and_b32 v20, 15, v0\n v_bfe_u32 v21, v0, 4, 2\n v_mov_b32 v22, 0")
    a(f"s_mov_b32 s62, {SENT:#x}")
    for r in range(24, 28):
        a(f"v_mov_b32 v{r}, s62")
    a(f"s_lshl_b32 s46, s7, 20\n s_add_u32 s46, s46, {OFF_M}")
    a(f"s_lshl_b32 s47, s7, 19\n s_add_u32 s47, s47, {OFF_P1}")
    a("s_lshl_b32 s43, s6, 5\n s_add_u32 s43, s43, s5")
    a("s_lshl_b32 s52, s43, 11\n s_add_u32 s52, s52, s47")
    for r in range(16, 20):
        a(f"v_mov_b32 v{r}, 0")
    for i in range(2):
        a(f"buffer_store_dwordx4 v[16:19], v{VL16}, {WS}, s52 offen offset:{i*1024} sc1")
    a("v_lshlrev_b32 v23, 13, v21\n v_lshl_add_u32 v23, v20, 4, v23")
    a("s_lshl_b32 s3, s6, 17\n s_add_u32 s3, s3, s46\n s_lshl_b32 s40, s5, 8\n s_add_u32 s3, s3, s40\n s_add_u32 s3, s3, 8192")
    for i in range(4):
        a(f"buffer_store_dwordx4 v[24:27], v23, {WS}, s3 offen sc1")
        a("s_add_u32 s3, s3, 0x8000")
    a(f"v_lshlrev_b32 v{VMS}, 4, v21\n v_and_b32 v28, 3, v20\n v_lshl_add_u32 v{VMS}, v28, 2, v{VMS}")
    a(f"s_lshl_b32 s3, s43, 6\n v_add_u32 v{VMS}, s3, v{VMS}")
    a("v_and_b32 v23, 1, v21\n v_lshlrev_b32 v23, 10, v23\n v_lshl_add_u32 v23, v28, 4, v23\n v_and_b32 v29, 2, v21\n v_lshl_add_u32 v23, v29, 2, v23")
    a("s_and_b32 s3, s5, 3\n s_lshl_b32 s3, s3, 11\n s_lshr_b32 s40, s5, 3\n s_lshl_b32 s40, s40, 8\n s_add_u32 s3, s3, s40")
    a("s_and_b32 s40, s5, 4\n s_lshl_b32 s40, s40, 4\n s_add_u32 s3, s3, s40\n s_and_b32 s40, s6, 2\n s_lshl_b32 s40, s40, 6\n s_add_u32 s3, s3, s40")
    a("s_and_b32 s40, s6, 1\n s_lshl_b32 s40, s40, 2\n s_add_u32 s3, s3, s40")
    a("buffer_load_dword v28, v23, s[32:35], s3 offen")
    a("v_lshlrev_b32 v8, 11, v21\n v_bfe_u32 v9, v0, 2, 2\n v_lshl_add_u32 v8, v9, 6, v8")
    a("s_lshl_b32 s3, s6, 8\n v_add_u32 v8, s3, v8")
    a("v_and_b32 v9, 1, v0\n v_lshl_add_u32 v6, v9, 3, v8\n v_and_b32 v9, 2, v0\n v_lshl_add_u32 v6, v9, 4, v6\n v_add_u32 v7, 0x10000, v6")
    a("v_and_b32 v9, 3, v0\n v_lshl_add_u32 v8, v9, 3, v8\n v_add_u32 v9, 0x10000, v8")

    def wreg(m, t, j, lo=0, n=8):
        b = (t * 8 + j) * 8 + lo
        return f"a[{128*m+b}:{128*m+b+n-1}]" if m < 2 else f"v[{128+b}:{128+b+n-1}]"

    def tr(m, c, base):
        L = [a.label("Lt") for _ in range(5)]
        a(f"s_cmp_eq_u32 s6, 1\n s_cbranch_scc1 {L[1]}\n s_cmp_eq_u32 s6, 2\n s_cbranch_scc1 {L[2]}\n s_cmp_eq_u32 s6, 3\n s_cbranch_scc1 {L[3]}")
        for w in range(4):
            if w:
                a(f"{L[w]}:")
            for t in range(2):
                for q in range(4):
                    off = base + (q >> 1) * 8192 + (q & 1) * 1024 + t * (32 if m == 2 else 16)
                    a(f"ds_read_b64_tr_b16 {wreg(m, t, c ^ (2 * w), 2 * q, 2)}, v{(8 if m == 2 else 6) + (off >> 16)} offset:{off & 0xffff}")
            if w < 3:
                a(f"s_branch {L[4]}")
        a(f"{L[4]}:")

    a("v_and_b32 v5, 1, v21\n v_lshlrev_b32 v5, 14, v5\n v_lshrrev_b32 v10, 1, v21\n v_lshl_add_u32 v5, v10, 12, v5")
    a("v_lshl_add_u32 v5, v20, 3, v5\n s_lshl_b32 s3, s6, 8\n v_add_u32 v5, s3, v5")
    a("s_mov_b32 s60, 0x05040100\n s_mov_b32 s61, 0x07060302\n s_lshl_b32 s55, s5, 17")
    groups = [(0, 0), (0, 1), (1, 0), (2, 0), (3, 0), (3, 1), (1, 1), (2, 1)]
    RES = {(1, 2): 0, (1, 3): 64, (2, 2): 8, (2, 3): 72}

    def woff(jc, np_):
        gi = groups.index((jc, np_ >> 1))
        return (gi >> 1) * 16384 + (gi & 1) * 4096 + (np_ & 1) * 2048

    NL = 5
    LD = lambda gi: 48 + 16 * (gi % NL)
    a(f"s_lshr_b32 s3, s6, 1\n s_lshl_b32 s3, s3, 16\n s_and_b32 s40, s6, 1\n s_lshl_b32 s40, s40, 13\n s_add_u32 s3, s3, s40\n v_add_u32 v31, s3, v{VL16}")

    def wo_issue(gi, ops):
        jc, i = groups[gi]
        a(f"s_xor_b32 s3, s6, {jc}\n s_lshl_b32 s3, s3, 15\n s_add_u32 s3, s3, s55\n s_add_u32 s3, s3, {i*128}\n s_add_u32 s42, s3, 8192")
        for u in range(2):
            for v in range(2):
                for e in range(2):
                    r = LD(gi) + 8 * u + 4 * v + 2 * e
                    a(f"buffer_load_dwordx2 v[{r}:{r+1}], v5, s[24:27], {'s42' if u else 's3'} offen offset:{(2*v+e)*1024}")
        ops.extend([f"w{gi}"] * 8)

    def wo_build(gi, ops):
        jc, i = groups[gi]
        last = max(k for k, x in enumerate(ops) if x == f"w{gi}")
        a(f"s_waitcnt vmcnt({len(ops) - 1 - last})")
        for sel in range(2):
            for u in range(2):
                for v in range(2):
                    for z in range(2):
                        r = LD(gi) + 8 * u + 4 * v + sel
                        a(f"v_perm_b32 v{32+8*sel+4*u+2*v+z}, v{r+2}, v{r}, s{60+z}")
        if gi + NL < 8:
            wo_issue(gi + NL, ops)
        for sel in range(2):
            res = RES.get((jc, 2 * i + sel))
            for hh in range(2):
                src = f"v[{32+8*sel+4*hh}:{35+8*sel+4*hh}]" if res is None else f"a[{res+4*hh}:{res+4*hh+3}]"
                a(f"ds_write_b128 v31, {src} offset:{woff(jc, 2*i+sel)+hh*1024}")
        a("s_waitcnt lgkmcnt(0)")
        for sel in range(2):
            res = RES.get((jc, 2 * i + sel))
            if res is not None:
                for r in range(8):
                    a(f"v_accvgpr_write_b32 a{res+r}, v{32+8*sel+r}")

    def hook(j, ops):
        if j == 3:
            a("v_or_b32 v29, 64, v28\n v_cmp_eq_u32 vcc, s62, v28\n v_cndmask_b32 v28, v28, v29, vcc")
            a(f"buffer_store_dword v28, v{VMS}, {WS}, s46 offen sc1")
            a(f"buffer_load_dword v30, off, {DBG}, 0 sc1")
            ops.extend([None] * 2)
        if j == 11:
            if not o.get("staged"):
                sk = a.label("Lsk")
                a(f"v_cmp_gt_u32 vcc, 32, v30\n s_cbranch_vccz {sk}")
                wait_counter(a, 23, 22, 0, 32)
                a(f"{sk}:")
            team_publish(a, 23, 22)
        wi = {13: 0, 14: 1, 15: 2, 16: 3, 18: 4}
        if j in wi:
            wo_issue(wi[j], ops)
        if j >= 21:
            wo_build(2 * (j - 21), ops)
            wo_build(2 * (j - 21) + 1, ops)
        if j == 22:
            a("s_lshl_b32 s3, s7, 11\n s_add_u32 s3, s3, s5\n s_lshl_b32 s49, s3, 7")
            a(f"s_lshl_b32 s3, s7, 5\n s_add_u32 s3, s3, s5\n s_mul_i32 s48, s3, {HEADB}\n s_add_u32 s48, s48, {OFF_QKV}\n s_add_u32 s50, s48, 24576")
            a(f"s_add_u32 s3, s46, 8192\n buffer_load_dword v17, v{VMS}, {WS}, s46 offen sc1\n buffer_load_dword v17, v{VMS}, {WS}, s3 offen sc1")
            a(f"v_lshlrev_b32 v16, 1, v{VL16}\n buffer_load_dword v17, v16, {WS}, s52 offen sc1")
            a(f"s_lshl_b32 s3, s4, 7\n s_add_u32 s3, s3, {FTEAM}\n buffer_load_dword v17, off, {WS}, s3 sc1")
            ops.extend([None] * 4)

    mo = (1, 2, 0)
    ops = stage_weights(a, [f"s[{12+4*m}:{15+4*m}]" for m in mo], lambda m, c, b: tr(mo[m], c, b), 10, perm=True, hook=hook)
    trace(a, o, 23, VL16, 6)
    a(f"s_lshl_b32 s40, s6, 12\n s_add_u32 s40, s48, s40\n v_lshlrev_b32 v16, 2, v{VL16}")
    a(f"buffer_load_dword v{VF}, off, {WS}, s49 sc1\n buffer_load_dword v17, v16, {WS}, s40 offen sc1")
    ops.extend([None] * 2)
    wo_build(6, ops); wo_build(7, ops)
    a(f"v_mov_b32 v{VWO}, v31")
    a(f"v_mov_b32 v{VIDX}, 0x4444\n v_bfe_u32 v23, v20, 1, 1\n v_mul_u32_u24 v23, 0xaaaa, v23\n v_or_b32 v{VIDX}, v{VIDX}, v23")
    a(f"s_lshl_b32 s3, s6, 11\n s_add_u32 s3, s3, {MX}\n v_add_u32 v{VMX}, s3, v{VL16}")
    a(f"v_mul_u32_u24 v23, 1088, v21\n v_lshl_add_u32 v23, v20, 2, v23\n s_lshl_b32 s3, s6, 6\n s_add_u32 s3, s3, {QX}\n v_add_u32 v{VQW}, s3, v23")
    a(f"v_mul_u32_u24 v23, 272, v20\n v_lshl_add_u32 v23, v21, 4, v23\n v_add_u32 v{VQR}, {QX}, v23")
    a(f"v_and_b32 v23, 1, v21\n v_lshlrev_b32 v23, 5, v23\n v_or_b32 v{VOR}, 32, v{VMX}\n v_xor_b32 v{VOR}, v{VOR}, v23\n v_lshrrev_b32 v{VL8}, 1, v{VL16}")
    a(f"v_lshlrev_b32 v23, 9, v21\n v_lshl_add_u32 v{VVX}, v20, 4, v23\n v_add_u32 v{VKX}, {KX}, v{VVX}")
    a(f"v_lshrrev_b32 v23, 3, v20\n v_lshl_add_u32 v23, v23, 2, v21\n v_lshlrev_b32 v23, 11, v23\n v_and_b32 v25, 7, v20\n v_lshl_add_u32 v23, v25, 3, v23")
    a(f"s_lshl_b32 s3, s6, 14\n s_lshl_b32 s40, s5, 6\n s_add_u32 s3, s3, s40\n v_add_u32 v{VP1S}, s3, v23")
    a(f"v_and_b32 v23, 12, v20\n v_bfe_u32 v25, v20, 1, 1\n v_add_u32 v23, v23, v25\n v_mul_u32_u24 v23, 272, v23\n v_lshl_add_u32 v23, v21, 4, v23")
    a(f"v_and_b32 v25, 1, v20\n v_lshl_add_u32 v23, v25, 3, v23\n s_lshl_b32 s3, s6, 6\n s_add_u32 s3, s3, {QX}\n v_add_u32 v{VKMS}, s3, v23")
    a(f"v_lshlrev_b32 v{VPF}, 7, v20\n v_lshl_add_u32 v{VPF}, v21, 13, v{VPF}")
    a(f"v_cmp_eq_u32 vcc, 2, v21\n v_cndmask_b32 v{VPF}, v{VPF}, v22, vcc")
    a(f"v_cmp_eq_u32 vcc, 3, v21\n v_cndmask_b32 v{VPF}, v{VPF}, v{VMS}, vcc")
    a("s_lshl_b32 s3, s7, 11\n s_add_u32 s3, s3, s5")
    a("s_lshl_b32 s40, s6, 11\n s_add_u32 s48, s48, s40")
    a(f"s_lshl_b32 s63, s6, 9\n s_add_u32 s50, s50, s63")
    a("s_mov_b32 s51, 0x20000000")
    a("s_lshl_b32 s41, s6, 29\n s_add_u32 s59, s49, s41\n s_sub_u32 s59, s59, 4064")
    a(f"s_add_u32 s45, s46, s40\n s_add_u32 s46, s46, 8192\n s_add_u32 m0, s40, {KX}")
    a("s_mov_b32 s44, 0\n s_mov_b32 s54, 0x3e0293ee")
    a("s_mov_b32 s56, 0\n s_mov_b32 s57, 0xffff\n s_mov_b32 s36, 0\n s_mov_b32 s37, 0xffff0000")
    for d in range(4):
        m = (3 << (4 * d)) * 0x00010001
        a(f"s_mov_b32 s{64+2*d}, {m:#x}\n s_mov_b32 s{65+2*d}, {m:#x}")
    a("s_mov_b32 s72, 0x000f000f\n s_mov_b32 s73, 0x000f000f\n s_mov_b32 s74, 0xcccccccc\n s_mov_b32 s75, 0xcccccccc")
    a("s_mov_b32 s38, 0x3f803f80\n s_mov_b32 s39, 0x3f803f80\n s_add_u32 s58, s47, 0x10000\n s_add_u32 s60, s47, 0x20000\n s_add_u32 s61, s47, 0x30000")

    trace(a, o, 23, VL16, 9)
    a("s_mov_b32 s53, 0")
    team_wait(a, 24, 25, "L_chain_mixed_pre")
    a("s_branch L_chain_pure_pre")

    def sm(acc, A, B, mod=""):
        a(f"v_smfmac_f32_16x16x64_bf16 v[{acc}:{acc+3}], v[{A}:{A+3}], {B}, v{VIDX}{mod}")

    def proj(m, t, j):
        B = f"v[{RK+16*j+8*t}:{RK+16*j+8*t+7}]" if m == 0 and j < 2 else wreg(m, t, j)
        sm((AQ, AK, AV)[m] + 4 * t, RM + 4 * j, B)

    def early():
        for j in range(2):
            for t in range(2):
                for hh in range(2):
                    r = RK + 16 * j + 8 * t + 4 * hh
                    a(f"ds_read_b128 v[{r}:{r+3}], v{VWO} offset:{woff(j+1, 2+t)+hh*1024}")

    def halves(acc):
        return [f"v_add_f32 v{acc}, v{acc}, v{acc+2}", f"v_add_f32 v{acc+1}, v{acc+1}, v{acc+3}",
                f"v_add_f32 v{acc+4}, v{acc+4}, v{acc+6}", f"v_add_f32 v{acc+5}, v{acc+5}, v{acc+7}",
                f"v_cvt_pk_bf16_f32 v{acc+2}, v{acc}, v{acc+1}", f"v_cvt_pk_bf16_f32 v{acc+3}, v{acc+4}, v{acc+5}"]

    def poll(dst, voff, soff):
        return lambda: (a(f"buffer_load_dwordx4 v[{dst}:{dst+3}], v{voff}, {WS}, {soff} offen sc1"),
                        a(f"buffer_load_dwordx4 v[{dst+4}:{dst+7}], v{voff}, {WS}, {soff} offen offset:1024 sc1"))

    def stamp(i):
        if prof and (prof >> i) & 1:
            a(f"{CLK} s[76:77]\n s_waitcnt lgkmcnt(0)\n s_sub_u32 s3, s76, s78\n s_add_u32 s{80+i}, s{80+i}, s3\n s_mov_b32 s78, s76")

    def check2(R, t0):
        a(f"v_max_u32 v{t0}, v{R}, v{R+4}\n v_cmp_eq_u32 vcc, s62, v{t0}")

    def check1(R, t0):
        a(f"v_bitop3_b32 v{t0}, v{R}, v{R+2}, s53 bitop3:0x7e\n v_bitop3_b32 v{t0+1}, v{R+4}, v{R+6}, s53 bitop3:0x7e")
        a(f"v_bitop3_b32 v{t0}, v{t0}, v{t0+1}, 1 bitop3:0xa8\n v_cmp_ne_u32 vcc, 0, v{t0}")

    def warm(n, r):
        if o.get("wm", 2) == 3:
            if n >= 16:
                a(f"s_sleep {n // 16}")
            n %= 16
        while n > 0:
            k = min(n, 4)
            if k > 1:
                a(f"s_nop {k-2}")
            a(f"v_mov_b32 v{r}, 0")
            n -= k

    LAND = [RM, RM + 8, RM + 16, RM + 24, RK, RK + 8, RK + 16, RK + 24, VX, QF + 8]
    WACC = [QF, QF + 4, AV, AV + 4]
    order = [(0, np_) for np_ in range(4)] + [(jc, np_) for np_ in range(4) for jc in (1, 2, 3)]
    slot_of = [0, 1, 2, 3, 4, 5, 6, 7, 8, 9, None, None, 0, None, None, 1]

    def landl(k):
        jc, np_ = order[k]
        r = LAND[slot_of[k]]
        return [f"ds_read_b128 v[{r}:{r+3}], v{VWO} offset:{woff(jc, np_)}", f"ds_read_b128 v[{r+4}:{r+7}], v{VWO} offset:{woff(jc, np_)+1024}"]

    def land(k):
        for x in landl(k):
            a(x)

    def wo(k):
        jc, np_ = order[k]
        B = f"a[{RES[order[k]]}:{RES[order[k]]+7}]" if order[k] in RES else f"v[{LAND[slot_of[k]]}:{LAND[slot_of[k]]+7}]"
        sm(WACC[np_], AQ + 4 * jc, B)

    def loop(mode):
        st = "" if mode == "pure" else " sc1"
        T = f"chain_{mode}"
        outl = []
        PR = (12, 14, 16, 18, 20, 22, 24, 26)
        XS = " sc1"

        KR = [f"ds_read_b128 v[{RK+4*i}:{RK+4*i+3}], v{VKX} offset:{(i>>1)*2048+(i&1)*256}" for i in range(8)]

        def prep_b():
            a("s_add_u32 s42, s48, 8192\n s_mov_b32 s55, s48")
            a(f"s_cmp_lt_u32 s44, 63\n s_cselect_b32 s40, {SEGB}, 0\n s_cselect_b32 s41, 4096, 0\n s_add_u32 s48, s48, s40")
            a(f"s_add_u32 s49, s49, s41\n s_add_u32 s3, s46, 8192")
            a(f"v_mov_b32 v{QF}, s48\n v_mov_b32 v{QF+8}, s49\n v_mov_b32 v{QF+9}, s3")
            a(f"v_cndmask_b32 v{QF}, v{QF}, v{QF+8}, s[56:57]\n v_cndmask_b32 v{QF}, v{QF}, v{QF+9}, s[36:37]\n v_add_u32 v{QF}, v{QF}, v{VPF}")
            for jj in (1, 2, 3):
                a(f"v_xor_b32 v{QF+jj}, {jj << 11}, v{VMX}")
            a("s_xor_b32 s53, s53, 1")

        a(f"L_{T}_pre:")
        a(f"v_mov_b32 v0, 0x3f80\n v_mov_b32 v23, 0x3f800000\n s_mov_b32 s40, 0xaaaaaaaa\n s_mov_b32 s41, 0xaaaaaaaa")
        a("v_cndmask_b32 v0, v0, v23, s[40:41]")
        early()
        if prof:
            for i in range(16):
                a(f"s_mov_b32 s{80+i}, 0")
            a(f"{CLK} s[78:79]\n s_waitcnt lgkmcnt(0)")
        a(f"s_branch L_{T}\n .p2align 6")
        for _ in range(o.get("sh", 0)):
            a("s_nop 0")
        a(f"L_{T}:")
        a(f"v_cmp_eq_u32 vcc, 0, v{VF}\n s_and_b64 vcc, vcc, s[56:57]\n s_cbranch_scc1 L_{T}_kvw")
        a(f"L_{T}_kvr:")
        if o.get("pb", 0) == 0:
            prep_b()
        warm(o.get("d2", 14), QF + 4)
        poll(RM, VL16, "s45")()
        if o.get("pb", 0) == 1:
            prep_b()
        for r in range(AQ, AQ + 24, 2):
            a(f"v_mov_b64 v[{r}:{r+1}], 0")
        warm(o.get("g2", 24), QF + 4)
        poll(QF + 8, VL16, "s45")()
        warm(o.get("w2", 0), QF + 4)
        a(".p2align 5")
        for _ in range(o.get("al", 1)):
            a(f"v_mov_b32 v{QF+4}, 0")
        a("s_waitcnt vmcnt(2) lgkmcnt(0)")
        sw = o.get("sw", 0)
        if not sw:
            check2(RM, QF + 4)
            a(f"s_cbranch_vccnz L_{T}_h2r")
        WR = [f"ds_write_b128 v{VMX}, v[{RM}:{RM+3}]", f"ds_write_b128 v{VMX}, v[{RM+4}:{RM+7}] offset:1024"]
        a(f"L_{T}_h2:")
        outl.append((f"L_{T}_h2r", f"L_{T}_h2", RM, QF + 8, VX, "s45", lambda R: check2(R, QF + 4), 90))
        stamp(0)
        mark = len(a.lines)
        nv = o.get("nv", 3)
        VP = [(2, t, j) for j in range(8) for t in range(2)]
        P = [(m, t, j) for m in range(2) for j in range(2) for t in range(2)]
        P = VP[:nv] + P + [(m, t, j) for m in range(2) for j in range(2, 8) for t in range(2)] + VP[nv:]
        b0 = nv + 1
        F = {0: [WR[0]], 1: [WR[1]]} if sw < 2 else {0: WR}
        if sw:
            F[0] = F[0] + [f"v_max_u32 v{QF+4}, v{RM}, v{RM+4}\n v_cmp_eq_u32 vcc, s62, v{QF+4}\n s_cbranch_vccnz L_{T}_h2r"]
        put = lambda i, L: F.setdefault(i, []).extend(L)
        put(b0, ["s_waitcnt lgkmcnt(0)", "s_barrier"])
        for j in range(2, 8):
            put(b0 + j - 2, [f"ds_read_b128 v[{RM+4*j}:{RM+4*j+3}], v{QF+(j>>1)} offset:{(j&1)*1024}"])
        put(b0 + 6, [f"buffer_load_dwordx4 v{VL16}, {WS}, s55 offen sc1 lds"])
        put(b0 + 7, ["s_waitcnt lgkmcnt(4)"])
        put(b0 + 8, [f"buffer_load_dwordx4 v{VL16}, {WS}, s55 offen offset:1024 sc1 lds"])
        put(b0 + 10, [f"buffer_load_dwordx4 v[{VX}:{VX+3}], v{VVX}, {WS}, s42 offen sc1"])
        put(b0 + 11, ["s_waitcnt lgkmcnt(2)"])
        put(b0 + 12, [f"buffer_load_dwordx4 v[{VX+4}:{VX+7}], v{VVX}, {WS}, s42 offen offset:256 sc1"])
        put(b0 + 15, ["s_waitcnt lgkmcnt(0)"])
        kl = o.get("kl", 0)
        if kl:
            put(b0 + 13, [f"ds_read_b64 v[{RK}:{RK+1}], v{VKMS}"])
            put(b0 + 14, [f"ds_read_b64 v[{RK+2}:{RK+3}], v{VMX} offset:{OX-MX+1024}"])
            F[b0 + 15] = ["s_waitcnt lgkmcnt(2)"]
            put(b0 + 19, ["s_waitcnt lgkmcnt(0)"])
            put(b0 + 20, [f"buffer_store_dwordx2 v[{RK}:{RK+1}], v{VL8}, {WS}, s51 offen sc1"])
            put(b0 + 21, [f"buffer_store_dwordx2 v[{RK+2}:{RK+3}], v{VL8}, {WS}, s51 offen offset:2048 sc1"])
            put(b0 + 22, [f"buffer_load_dword v{VF}, v{QF}, {WS}, 0 offen sc1"])
        else:
            put(b0 + o.get("hp", 18), [f"buffer_store_dword v{VIDX}, off, {WS}, s59 sc1"])
            put(b0 + o.get("pfp", 19), [f"buffer_load_dword v{VF}, v{QF}, {WS}, 0 offen sc1"])
            put(b0 + 9, ["s_add_u32 s59, s59, 4096"])
            put(b0 + 20, ["s_nop 0"])
            for i in (21, 22):
                put(b0 + i, ["s_nop 0"])
        ns = 3 if kl else 2
        Eq = [f"v_add_f32 v{AQ+r}, v{AQ+r}, v{AQ+r+2}" for r in (0, 1, 4, 5)] + [f"v_mul_f32 v{AQ+r}, s54, v{AQ+r}" for r in (0, 1, 4, 5)]
        Eq += [f"v_cvt_pk_bf16_f32 v{AQ+2}, v{AQ}, v{AQ+4}", f"v_cvt_pk_bf16_f32 v{AQ+3}, v{AQ+1}, v{AQ+5}",
               f"ds_write2_b32 v{VQW}, v{AQ+2}, v{AQ+3} offset0:136 offset1:204"]
        Ek = [f"v_add_f32 v{AK+r}, v{AK+r}, v{AK+r+2}" for r in (0, 1, 4, 5)]
        Ek += [f"v_cvt_pk_bf16_f32 v{AK+2}, v{AK}, v{AK+4}", f"v_cvt_pk_bf16_f32 v{AK+3}, v{AK+1}, v{AK+5}",
               f"ds_write2_b32 v{VQW}, v{AK+2}, v{AK+3} offset1:68"]
        for i in range(8):
            put(b0 + 23 + i, [Eq[i]])
        kv = b0 + 31
        LL = [x for k in range(9) for x in landl(k)]
        put(kv, Eq[8:10]); put(kv + 1, [Eq[10], "s_add_u32 s45, s45, 8192"])
        put(kv + 2, Ek[0:4]); put(kv + 3, Ek[4:7])
        put(kv + 4, [LL[0]]); put(kv + 5, [LL[1]])
        qb = kv + o.get("qb", 6)
        npre = 2
        if qb > kv + 6:
            put(kv + 6, [LL[2]]); npre = 3
        QR = [f"ds_read_b128 v[{QF+4*k}:{QF+4*k+3}], v{VQR} offset:{k*64}" for k in range(4)]
        RD = [x for k in range(4) for x in (QR[k], KR[2 * k], KR[2 * k + 1])]
        xt = 1 if o.get("trace") else 0
        put(qb, [f"s_waitcnt vmcnt({2+ns+xt}) lgkmcnt({npre})", "s_barrier"])
        slots = list(range(qb, len(P)))
        extra = 8 - len(slots)
        k = 0
        for n_, i in enumerate(slots):
            c = 2 if n_ < extra else 1
            put(i, RD[k:k + c]); k += c
        assert k == 8
        RD = RD[8:]
        for i, p in enumerate(P):
            if i == b0 + 21:
                trace(a, o, QF + 6, VL16, 7)
            for x in F.get(i, []):
                a(x)
            proj(*p)
        if npre == 2:
            LL[3] = LL[2] + "\n" + LL[3]
        stamp(2)
        MXR, TMP = AK + 4, AK + 5
        Ev = [f"v_add_f32 v{AV+r}, v{AV+r}, v{AV+r+2}" for r in (0, 1, 4, 5)]
        Ev += [f"v_cvt_pk_bf16_f32 v{AV+2}, v{AV}, v{AV+1}", f"v_cvt_pk_bf16_f32 v{AV+3}, v{AV+4}, v{AV+5}",
               f"v_mov_b64 v[{AV+4}:{AV+5}], s[38:39]"]
        assert len(RD) == 4
        G = {0: [RD[0], "s_waitcnt lgkmcnt(6)"], 1: [RD[1]], 2: [RD[2]], 3: [RD[3], "s_waitcnt lgkmcnt(6)"],
             4: [f"ds_read_b64 v[{AK+6}:{AK+7}], v{VKMS}", Ev[0]], 5: [LL[3], Ev[1]], 6: [f"s_waitcnt lgkmcnt({8-npre})", Ev[2]],
             7: [LL[4], Ev[3]], 8: [LL[5], Ev[4]], 9: [f"s_waitcnt vmcnt({ns+xt}) lgkmcnt({6-npre})", Ev[5]],
             10: [f"buffer_store_dwordx2 v[{AK+6}:{AK+7}], v{VL8}, {WS}, s50 offen{XS}"], 11: [f"buffer_store_dwordx2 v[{AV+2}:{AV+3}], v{VL8}, {WS}, s50 offen offset:2048{XS}"]}
        if kl:
            G[4] = [Ev[0]]; G[6] = [f"s_waitcnt lgkmcnt({7-npre})", Ev[2]]
            G[10] = [f"ds_write_b64 v{VMX}, v[{AV+2}:{AV+3}] offset:{OX-MX+1024}"]; G[11] = ["s_mov_b32 s51, s50"]
        i = 0
        for kst in range(4):
            B = f"v[{QF+4*kst}:{QF+4*kst+3}]"
            for kt in (2, 0, 1):
                A = f"v[{RK+8*kst+4*kt}:{RK+8*kst+4*kt+3}]" if kt < 2 else B
                for x in G.get(i, []):
                    a(x)
                a(f"v_mfma_f32_16x16x32_bf16 v[{AQ+4*kt}:{AQ+4*kt+3}], {A}, {B}, " + (f"v[{AQ+4*kt}:{AQ+4*kt+3}]" if kst else "0"))
                i += 1
        a(LL[6])
        a(f"s_cmp_eq_u32 s44, 63")
        a(Ev[6])
        a("s_cbranch_scc1 L_chain_done")
        a(f"v_mov_b64 v[{AV+6}:{AV+7}], s[38:39]")
        a(LL[7])
        stamp(3)
        a(f"v_max3_f32 v{MXR}, v{AK}, v{AK+1}, v{AQ}\n v_max3_f32 v{MXR}, v{MXR}, v{AQ+1}, v{AQ+2}")
        a(f"v_max3_f32 v{TMP}, v{AQ+4}, v{AQ+5}, v{AQ+6}\n v_max3_f32 v{MXR}, v{MXR}, v{AQ+3}, v{AQ+7}\n v_max_f32 v{MXR}, v{MXR}, v{TMP}")
        a(f"v_mov_b32 v{TMP}, v{MXR}\n v_mov_b32 v{QF+5}, 0")
        a(LL[9])
        a(f"v_permlane16_swap_b32 v{TMP}, v{MXR}\n v_max_f32 v{MXR}, v{MXR}, v{TMP}\n v_mov_b32 v{TMP}, v{MXR}\n v_mov_b32 v{QF+6}, 0")
        a(LL[10])
        a(f"v_permlane32_swap_b32 v{TMP}, v{MXR}\n v_max_f32 v{MXR}, v{MXR}, v{TMP}")
        for r in (AK, AQ, AQ + 2, AQ + 4, AQ + 6):
            a(f"v_pk_add_f32 v[{r}:{r+1}], v[{r}:{r+1}], v[{MXR}:{MXR+1}] op_sel_hi:[1,0] neg_lo:[0,1] neg_hi:[0,1]")
        OA, SA = QF + 8, AK + 4
        ex = lambda r: a(f"v_exp_f32 v{r}, v{r}")
        cv = lambda i: a(f"v_cvt_pk_bf16_f32 v{QF+i}, v{AQ+2*i}, v{AQ+2*i+1}")
        ex(AK); ex(AK + 1); ex(AQ)
        a(f"v_cvt_pk_bf16_f32 v{QF+4}, v{AK}, v{AK+1}\n v_cvt_pk_bf16_f32 v{QF+7}, v{AK}, v{AK+1}")
        ex(AQ + 1)
        a(f"v_mfma_f32_16x16x16_bf16 v[{SA}:{SA+3}], v[{AV+4}:{AV+5}], v[{QF+4}:{QF+5}], 0")
        ex(AQ + 2)
        a(f"v_mfma_f32_16x16x16_bf16 v[{OA}:{OA+3}], v[{AV+2}:{AV+3}], v[{QF+4}:{QF+5}], 0")
        ex(AQ + 3)
        a(f"v_mfma_f32_16x16x16_bf16 v[{OA+4}:{OA+7}], v[{AV+2}:{AV+3}], v[{QF+6}:{QF+7}], 0")
        for r in range(AQ + 4, AQ + 8):
            ex(r)
        for i in range(4):
            cv(i)
        a(LL[11]); a(LL[12])
        a(f"v_mfma_f32_16x16x32_bf16 v[{SA}:{SA+3}], v[{AV+4}:{AV+7}], v[{QF}:{QF+3}], v[{SA}:{SA+3}]")
        a(LL[8]); a(f"v_xor_b32 v{AQ+5}, 2048, v{VOR}")
        a(f"v_mfma_f32_16x16x32_bf16 v[{OA}:{OA+3}], v[{VX}:{VX+3}], v[{QF}:{QF+3}], v[{OA}:{OA+3}]")
        a(LL[13]); a(LL[14])
        a(f"v_mfma_f32_16x16x32_bf16 v[{OA+4}:{OA+7}], v[{VX+4}:{VX+7}], v[{QF}:{QF+3}], v[{OA+4}:{OA+7}]")
        Z = [f"v_mov_b64 v[{r}:{r+1}], 0" for r in list(range(QF, QF + 8, 2)) + list(range(AV, AV + 8, 2))]
        a(LL[15]); a(Z[0])
        a(f"v_rcp_f32 v{SA}, v{SA}")
        a(Z[1]); a(f"v_xor_b32 v{AQ+10}, 4096, v{VOR}")
        stamp(4)
        pm = lambda r: a(f"v_pk_mul_f32 v[{OA+r}:{OA+r+1}], v[{OA+r}:{OA+r+1}], v[{SA}:{SA+1}] op_sel_hi:[1,0]")
        co = lambda i: a(f"v_cvt_pk_bf16_f32 v{AQ+i}, v{OA+2*i}, v{OA+2*i+1}")
        pm(0); pm(2); co(0); pm(4); pm(6); co(1); co(2); co(3)
        a("s_mov_b64 exec, s[74:75]")
        a(f"ds_write_b128 v{VOR}, v[{AQ}:{AQ+3}] offset:{OX-MX}")
        a("s_mov_b64 exec, -1")
        for i in range(4):
            a(f"v_mov_b32_dpp v{AQ+i}, v{AQ+i} quad_perm:[2,3,2,3] row_mask:0xf bank_mask:0xf")
        a(f"v_xor_b32 v{AQ+14}, 6144, v{VOR}")
        a(Z[2])
        oe = o.get("oe", 0)
        wo(0); a(Z[3])
        a("s_waitcnt lgkmcnt(1)"); a(Z[4]); wo(1); a(Z[5])
        if oe:
            a(Z[6]); a(Z[7])
        a("s_waitcnt lgkmcnt(0)\n s_barrier")
        for jc in (1, 2, 3):
            a(f"ds_read_b128 v[{AQ+4*jc}:{AQ+4*jc+3}], v{AQ+(0, 5, 10, 14)[jc]} offset:{OX-MX}")
        if not oe:
            a(Z[6]); a(Z[7])
        stamp(5)
        L = LL[16:18] + landl(9) + landl(12) + landl(15)

        def pub(np_):
            A = WACC[np_]
            return [f"v_cvt_pk_bf16_f32 v{A}, v{A}, v{A+2}", f"v_cvt_pk_bf16_f32 v{A+1}, v{A+1}, v{A+3}", f"v_bfi_b32 v{A}, 1, s53, v{A}",
                    f"buffer_store_dwordx2 v[{A}:{A+1}], v{VP1S}, {WS}, {('s47', 's58', 's60', 's61')[np_]} offen{st}"]

        W = {4: 6, 5: 4, 8: 2, 12: 0}
        X = {2: L[0:2], 3: L[2:4], 5: L[4:5], 6: L[5:6], 8: L[6:7], 9: L[7:8], 10: pub(0)[0:2], 11: pub(0)[2:4], 12: pub(1)[0:1],
             13: pub(1)[1:3], 14: pub(1)[3:4], 15: [f"s_add_u32 s50, s50, {SEGB}"] + pub(2)}
        for k in range(2, 16):
            if k in W:
                a(f"s_waitcnt lgkmcnt({W[k]})")
            wo(k)
            for x in X.get(k, []):
                a(x)
        for d in range(3):
            a(f"v_cndmask_b32 v{QF+4+d}, 0, v0, s[{64+2*d}:{65+2*d}]")
        for x in pub(3):
            a(x)
        a(f"v_cndmask_b32 v{QF+7}, 0, v0, s[70:71]\n s_add_u32 s44, s44, 1")
        stamp(6)
        warm(o.get("d0", 10), AQ)
        for w in (1, 2, 3):
            a(f"s_cmp_lt_u32 s6, {w}\n s_cbranch_scc1 L_{T}_p1")
            warm(o.get("d1", 16), AQ)
        a(f"L_{T}_p1:")
        poll(RM + 8, VL16, "s52")()
        early()
        warm(o.get("g1", 28), AQ)
        poll(RM + 16, VL16, "s52")()
        warm(o.get("w1", 0), AQ)
        a("s_waitcnt vmcnt(2)")
        a(f"L_{T}_h1:")
        a(f"v_mfma_f32_16x16x32_bf16 v[{AV}:{AV+3}], v[{QF+4}:{QF+7}], v[{RM+8}:{RM+11}], 0")
        a(f"v_mfma_f32_16x16x32_bf16 v[{AV}:{AV+3}], v[{QF+4}:{QF+7}], v[{RM+12}:{RM+15}], v[{AV}:{AV+3}]")
        check1(RM + 8, AQ)
        a(f"s_cbranch_vccnz L_{T}_h1r")
        outl.append((f"L_{T}_h1r", f"L_{T}_h1", RM + 8, RM + 16, RM + 24, "s52", lambda R: check1(R, AQ), 91))
        stamp(7)
        for rot in (4, 8):
            for r in (AV, AV + 1):
                a(f"v_add_f32_dpp v{r}, v{r}, v{r} row_ror:{rot} row_mask:0xf bank_mask:0xf")
        if o.get("mx", 1):
            a("s_mov_b64 exec, s[72:73]")
        a(f"v_cvt_pk_bf16_f32 v{AQ+2}, v{AV}, v{AV+1}")
        a(f"buffer_store_dword v{AQ+2}, v{VMS}, {WS}, s46 offen{st}")
        a("s_mov_b64 exec, -1\n s_add_u32 s46, s46, 8192")
        if "probe" in o:
            for i, k in enumerate(sorted(o["probe"], reverse=True)):
                a.lines.insert(mark + k, f"    s_memtime s[{PR[i]}:{PR[i]+1}]")
            a.lines.insert(mark, "    s_memtime s[94:95]")
            a("s_waitcnt lgkmcnt(0)")
            for i in range(len(o["probe"])):
                a(f"s_sub_u32 s3, s{PR[i]}, s94\n s_add_u32 s{80+i}, s{80+i}, s3")
        stamp(8)
        if prof and o.get("from"):
            a(f"s_cmp_eq_u32 s44, {o['from']}\n s_cselect_b32 s88, 0, s88")
        a(f"s_branch L_{T}")
        for lab, back, A, B, C, soff, chk, cnt in outl:
            a(f"{lab}:")
            for src, nxt in ((B, C), (C, B)):
                a("s_mov_b64 exec, vcc")
                poll(nxt, VL16, soff)()
                if prof:
                    a(f"s_add_u32 s{cnt}, s{cnt}, 1")
                if src == C:
                    a(f"s_sub_u32 {TMO}, {TMO}, 1\n s_cbranch_scc1 L_end")
                a("s_waitcnt vmcnt(2)")
                chk(src)
                for r in range(0, 8, 2):
                    a(f"v_mov_b64 v[{A+r}:{A+r+1}], v[{src+r}:{src+r+1}]")
                a("s_mov_b64 exec, -1")
                a(f"s_cbranch_vccz {back}")
            a(f"s_branch {lab}")
        a(f"L_{T}_kvw:")
        a(f"v_mov_b32 v{QF+8}, 0")
        wait_flags(a, VF, QF + 8, "s49", sleep=o.get("slc", 1))
        a(f"s_branch L_{T}_kvr")

    loop("pure")
    loop("mixed")
    a("L_chain_done:")
    if o.get("kl", 0):
        a(f"ds_read_b64 v[{AK+6}:{AK+7}], v{VKMS}\n buffer_store_dwordx2 v[{AV+2}:{AV+3}], v{VL8}, {WS}, s50 offen offset:2048 sc1")
        a(f"s_waitcnt lgkmcnt(0)\n buffer_store_dwordx2 v[{AK+6}:{AK+7}], v{VL8}, {WS}, s50 offen sc1")
    if prof:
        sk = a.label("Lp")
        a(f"s_cmp_lg_u32 s43, {o.get('who', 0)}\n s_cbranch_scc1 {sk}")
        a("s_lshl_b32 s3, s7, 6\n s_add_u32 s3, s3, 4\n s_mov_b64 exec, 1")
        for i in range(12):
            a(f"v_mov_b32 v{RM+i}, s{80+i}\n buffer_store_dword v{RM+i}, v{VL16}, {DBG}, s3 offen offset:{4*i}")
        a(f"{sk}:")


def role_ao(a, o):
    VL16, VZ, VONE, VF, VL4, VOB, VKM, SEL, VP2S, VP2L, VVM, VHS = 1, 2, 3, 4, 5, 6, 7, 8, 12, 13, 14, 15
    MB, SX, SM, RQ, RK, RV, KM, VM, PF, PM, OA = 16, 32, 48, 64, 96, 128, 160, 192, 200, 208, 212
    NG = 3
    AFR, NB, XP, YP = (200, 204, 208), 3, 128, 132
    MXR, TMP, SUM, VFO, VRW = 252, 253, 254, 0, 244
    a.srd(24, PTR(11), D * H * DH * 2)
    a.srd(12, PTR(13), S * D * 2)
    a(f"v_and_b32 v40, 63, v0\n v_lshlrev_b32 v{VL16}, 4, v40\n v_lshlrev_b32 v{VL4}, 2, v40")
    a(f"v_mov_b32 v{VZ}, 0\n v_mov_b32 v{VONE}, 1")
    a("v_and_b32 v41, 15, v0\n v_bfe_u32 v42, v0, 4, 1\n v_bfe_u32 v43, v0, 5, 1\n v_and_b32 v44, 31, v0")
    a("s_and_b32 s56, s5, 15\n s_lshr_b32 s57, s5, 4\n s_add_u32 s57, s57, 1\n s_bitcmp1_b32 s4, 1\n s_cselect_b32 s57, 0, s57")
    if not o.get("staged"):
        wait_counter(a, VF, VZ, 0, 32)
    team_publish(a, VF, VZ)
    a("v_lshlrev_b32 v45, 12, v43\n v_lshl_add_u32 v45, v44, 3, v45")
    a("s_mov_b32 s60, 0x05040100\n s_mov_b32 s61, 0x07060302")
    a("s_lshl_b32 s41, s56, 18\n s_lshl_b32 s3, s6, 8\n s_add_u32 s41, s41, s3")
    DEPTH = o.get("aod", 7)
    LD = lambda ks: 80 + 16 * (ks % (DEPTH + 1))

    def wo_issue(ks):
        a(f"s_add_u32 s3, s41, {ks*16384}\n s_add_u32 s40, s3, 8192")
        for j in range(8):
            r = LD(ks) + 2 * j
            a(f"buffer_load_dwordx2 v[{r}:{r+1}], v45, s[24:27], {'s40' if j >> 2 else 's3'} offen offset:{(j&3)*1024}")

    for ks in range(DEPTH):
        wo_issue(ks)
    for ks in range(16):
        a(f"s_waitcnt vmcnt({8*min(DEPTH-1, 15-ks)})")
        if ks + DEPTH < 16:
            wo_issue(ks + DEPTH)
        for T in range(4):
            for i in range(4):
                r = LD(ks) + 4 * i + (T >> 1)
                a(f"v_perm_b32 v{48+4*T+i}, v{r+2}, v{r}, s{60+(T&1)}")
        for i in range(16):
            a(f"v_accvgpr_write_b32 a{16*ks+i}, v{48+i}")
    a("v_mov_b32 v48, 0xf149f2ca\n v_lshlrev_b32 v49, 2, v43")
    for r in range(16):
        a(f"v_add_u32 v50, {8*(r>>2)+(r&3)}, v49\n v_cmp_gt_u32 vcc, v50, v44\n v_cndmask_b32 v{MB+r}, 0, v48, vcc")
    a("v_mov_b32 v48, 0x3f80\n v_and_b32 v49, 1, v0\n v_lshlrev_b32 v49, 4, v49\n v_lshlrev_b32 v48, v49, v48")
    a("v_lshrrev_b32 v49, 1, v41\n v_lshlrev_b32 v50, 2, v43\n v_sub_u32 v49, v49, v50")
    for d in range(4):
        a(f"v_cmp_eq_u32 vcc, {d}, v49\n v_cndmask_b32 v{SEL+d}, 0, v48, vcc")
    a(f"v_and_b32 v48, 7, v0\n v_lshlrev_b32 v{VKM}, 4, v48\n v_lshl_add_u32 v{VKM}, v43, 7, v{VKM}")
    a(f"v_lshlrev_b32 v{VVM}, 8, v43\n v_lshl_add_u32 v{VVM}, v41, 3, v{VVM}\n v_lshl_add_u32 v{VVM}, v42, 2, v{VVM}")
    a(f"v_lshlrev_b32 v{VP2S}, 12, v43\n v_lshl_add_u32 v{VP2S}, v44, 2, v{VP2S}\n s_lshl_b32 s3, s6, 8\n s_lshl_b32 s40, s56, 15\n s_add_u32 s3, s3, s40\n v_add_u32 v{VP2S}, s3, v{VP2S}")
    a("s_and_b32 s58, s6, 1\n s_lshl_b32 s3, s56, 1\n s_add_u32 s58, s58, s3")
    a(f"v_lshlrev_b32 v{VP2L}, 15, v42\n v_lshl_add_u32 v{VP2L}, v43, 9, v{VP2L}\n v_lshl_add_u32 v{VP2L}, v48, 4, v{VP2L}\n v_bfe_u32 v48, v0, 3, 1\n v_lshl_add_u32 v{VP2L}, v48, 8, v{VP2L}")
    a(f"v_lshlrev_b32 v48, 9, v43\n v_lshl_add_u32 v48, v41, 5, v48\n v_lshl_add_u32 v48, v42, 4, v48")
    a(f"v_mov_b32 v{VRW}, v48")
    a(f"s_lshl_b32 s3, s58, 10\n v_add_u32 v{VP2L}, s3, v{VP2L}")
    a(f"s_and_b32 s3, s58, 15\n s_lshl_b32 s3, s3, 4\n v_xor_b32 v{VHS}, s3, v{VRW}\n v_mov_b32 v{VOB}, v{VL16}")
    a("s_mov_b32 s44, s57\n s_lshl_b32 s3, s7, 6\n s_add_u32 s3, s3, s44")
    a(f"s_lshl_b32 s49, s3, 8\n s_add_u32 s49, s49, {FP}")
    a("s_lshl_b32 s3, s3, 5\n s_add_u32 s3, s3, s58\n s_lshl_b32 s45, s3, 7")
    a(f"s_lshl_b32 s3, s7, 5\n s_add_u32 s3, s3, s58\n s_mul_i32 s46, s3, {HEADB}\n s_mul_i32 s3, s44, {SEGB}\n s_add_u32 s46, s46, s3\n s_add_u32 s46, s46, {OFF_QKV}\n s_add_u32 s47, s46, 24576")
    a(f"s_lshl_b32 s48, s7, 23\n s_lshl_b32 s3, s57, 20\n s_add_u32 s48, s48, s3\n s_add_u32 s48, s48, {OFF_P2}")
    a("s_lshl_b32 s50, s44, 5\n s_add_u32 s50, s50, s58\n s_lshl_b32 s50, s50, 10")
    a(f"s_lshl_b32 s51, s7, 21\n s_add_u32 s51, s51, {OFF_X}\n s_mov_b32 s52, 0\n s_mov_b32 s39, 0\n s_mov_b32 s63, 0x20000000")
    a("s_lshl_b32 s53, s56, 4\n s_lshl_b32 s3, s6, 2\n s_add_u32 s53, s53, s3\n s_lshl_b32 s59, s6, 13")
    a(f"s_lshl_b32 s34, s7, 13\n s_add_u32 s34, s34, {FD}\n s_or_b32 s3, s58, s7\n s_cmp_eq_u32 s3, 0\n s_cselect_b32 s35, {FH+64*128}, s63")
    if o.get("trace"):
        for r in range(245, 252):
            a(f"v_mov_b32 v{r}, 0")
    a("s_mov_b32 s3, s48")
    for ld in range(8):
        for u in range(2):
            a(f"buffer_load_dwordx4 v[64:67], v{VP2L}, {WS}, s3 offen offset:{u*128} sc1")
        a("s_add_u32 s3, s3, 65536")
    a("s_mov_b32 s62, 0")
    team_wait(a, VF, 40, "L_ao_mx", n=16)
    a("s_mov_b32 s62, 1")
    a("L_ao_mx:")
    a(f"v_and_b32 v{VFO}, 4, v{VL4}\n v_add_u32 v{VFO}, {NG*4096}, v{VFO}\n v_lshlrev_b32 v{VZ}, 2, v{VL16}\n s_mov_b32 s54, {SENT:#x}")
    a("s_cmp_eq_u32 s62, 0\n s_cbranch_scc1 L_ao_mixed")

    TSLOT = {7: 0, 8: 1, 9: 2, 12: 1, 13: 2, 14: 3, 10: 4, 11: 5, 15: 6}

    def ltrace(tag):
        if o.get("trace"):
            a(("s_memtime" if o.get("cyc") else "s_memrealtime") + " s[96:97]\n s_waitcnt lgkmcnt(0)")
            a(f"s_and_b32 s96, s96, 0x0fffffff\n s_or_b32 s96, s96, {tag << 28:#x}\n s_mov_b32 m0, s44")
            a(f"v_writelane_b32 v{245+TSLOT[tag]}, s96, m0")

    NT = lambda m: " nt" if (o.get("nt", 4) >> m) & 1 else ""

    def qkv_list(which, so):
        return [f"buffer_load_dwordx4 v[{dst+4*i}:{dst+4*i+3}], v{VL16}, {WS}, {so(m, i >> 2)} offen offset:{(i&3)*1024} sc1{NT(m)}"
                for m, dst in which for i in range(8)]

    def qkv_loads(which):
        for m, dst in which:
            a(f"s_add_u32 s3, s46, {m*8192}\n s_add_u32 s40, s46, {m*8192+4096}")
            for x in qkv_list(((m, dst),), lambda m_, hh: ("s3", "s40")[hh]):
                a(x)

    def km_list(so):
        L = [f"buffer_load_dwordx4 v[{KM+4*i}:{KM+4*i+3}], v{VKM}, {WS}, {so} offen offset:{i*256} sc1" for i in range(8)]
        L += [f"buffer_load_dword v{VM+2*ct+j}, v{VVM}, {WS}, {so} offen offset:{2048+ct*512+j*128} sc1" for ct in range(4) for j in range(2)]
        return L

    def loop(mode):
        st = "" if mode == "pure" else " sc1"
        T_ = f"ao_{mode}"
        a(f"L_{T_}:")
        ltrace(7)
        a(f"s_cmp_ge_u32 s6, 2\n s_cbranch_scc1 L_{T_}_bar")
        a(f"s_and_b32 s3, s52, s39\n s_cbranch_scc1 L_{T_}_have")
        a(f"s_cmp_lt_u32 s44, {NG}\n s_cbranch_scc1 L_{T_}_nob\n s_barrier")
        a(f"L_{T_}_nob:")
        a(f"s_cmp_lg_u32 s52, 0\n s_cbranch_scc1 L_{T_}_have")
        a(f"v_and_b32 v{TMP}, 4, v{VL4}")
        wait_flags(a, VF, TMP, "s45")
        qkv_loads(((0, RK), (2, RQ), (1, RV)))
        a("s_waitcnt vmcnt(8)")
        a(f"L_{T_}_have:")
        for i in range(8):
            a(f"v_mfma_f32_32x32x16_bf16 v[{SX}:{SX+15}], v[{RK+4*i}:{RK+4*i+3}], v[{RQ+4*i}:{RQ+4*i+3}], " + (f"v[{SX}:{SX+15}]" if i else f"v[{MB}:{MB+15}]"))
        ltrace(8)
        a(f"s_and_b32 s33, s52, s39\n s_cbranch_scc1 L_{T_}_km")
        if not o.get("kl", 0):
            a(f"v_mov_b32 v{TMP}, 0")
            wait_flags(a, VF, TMP, "s45", imm=32, sleep=o.get("sla", 1))
            if o.get("hd", 6):
                a(f"s_sleep {o.get('hd', 6)}")
        a(f"L_{T_}_kw:")
        a(f"buffer_load_dword v{VRW}, v{VZ}, {WS}, s47 offen sc1")
        a(f"s_waitcnt vmcnt(0)\n v_cmp_eq_u32 vcc, s54, v{VRW}\n s_cbranch_vccz L_{T_}_kl")
        if o.get("sla", 1):
            a(f"s_sleep {o.get('sla', 1)}")
        poll_tail(a, f"L_{T_}_kw")
        a(f"L_{T_}_kl:")
        for x in km_list("s47"):
            a(x)
        a(f"buffer_load_dword v{VF}, v{VFO}, {WS}, s45 offen sc1")
        a(f"L_{T_}_km:")
        ltrace(9)
        a(f"s_add_u32 s46, s46, {NG*SEGB}\n s_nop 8")
        a(f"v_max3_f32 v{MXR}, v{SX}, v{SX+1}, v{SX+2}\n v_max3_f32 v{TMP}, v{SX+3}, v{SX+4}, v{SX+5}")
        for r in range(6, 14, 4):
            a(f"v_max3_f32 v{MXR}, v{MXR}, v{SX+r}, v{SX+r+1}\n v_max3_f32 v{TMP}, v{TMP}, v{SX+r+2}, v{SX+r+3}")
        a(f"v_max3_f32 v{MXR}, v{MXR}, v{SX+14}, v{SX+15}")
        for i in range(8):
            a(f"s_waitcnt vmcnt({16-i})")
            a(f"v_mfma_f32_32x32x16_bf16 v[{SM}:{SM+15}], v[{KM+4*i}:{KM+4*i+3}], v[{RQ+4*i}:{RQ+4*i+3}], " + (f"v[{SM}:{SM+15}]" if i else "0"))
        a(f"s_add_u32 s45, s45, {NG*32*128}\n s_add_u32 s47, s47, {NG*SEGB}")
        a(f"v_max3_f32 v{TMP}, v{TMP}, v{SM}, v{SM+1}\n v_max3_f32 v{MXR}, v{MXR}, v{SM+2}, v{SM+3}\n v_max_f32 v{MXR}, v{MXR}, v{TMP}")
        a(f"v_mov_b32 v{TMP}, v{MXR}\n v_permlane32_swap_b32 v{TMP}, v{MXR}\n v_max_f32 v{MXR}, v{MXR}, v{TMP}")
        for r in range(SX, SX + 20, 2):
            a(f"v_pk_add_f32 v[{r}:{r+1}], v[{r}:{r+1}], v[{MXR}:{MXR+1}] op_sel_hi:[1,0] neg_lo:[0,1] neg_hi:[0,1]")
        for r in range(SX, SX + 20):
            a(f"v_exp_f32 v{r}, v{r}")
        a(f"v_pk_add_f32 v[{SUM}:{SUM+1}], v[{SX}:{SX+1}], v[{SX+2}:{SX+3}]\n v_pk_add_f32 v[{MXR}:{MXR+1}], v[{SX+4}:{SX+5}], v[{SX+6}:{SX+7}]")
        for r in range(SX + 8, SX + 20, 4):
            a(f"v_pk_add_f32 v[{SUM}:{SUM+1}], v[{SUM}:{SUM+1}], v[{r}:{r+1}]\n v_pk_add_f32 v[{MXR}:{MXR+1}], v[{MXR}:{MXR+1}], v[{r+2}:{r+3}]")
        a(f"v_pk_add_f32 v[{SUM}:{SUM+1}], v[{SUM}:{SUM+1}], v[{MXR}:{MXR+1}]\n v_add_f32 v{SUM}, v{SUM}, v{SUM+1}")
        a(f"v_mov_b32 v{TMP}, v{SUM}\n v_permlane32_swap_b32 v{TMP}, v{SUM}\n v_add_f32 v{SUM}, v{SUM}, v{TMP}\n v_rcp_f32 v{SUM}, v{SUM}")
        a(f"v_add_u32 v{TMP}, s59, v{VOB}")
        for r in range(SX, SX + 20, 2):
            a(f"v_pk_mul_f32 v[{r}:{r+1}], v[{r}:{r+1}], v[{SUM}:{SUM+1}] op_sel_hi:[1,0]")
        for i in range(10):
            r = SX + (4 * (i >> 2) + 8 * ((i >> 1) & 1) + 2 * (i & 1) if i < 8 else 2 * i)
            a(f"v_cvt_pk_bf16_f32 v{PF+i}, v{r}, v{r+1}")
        sk = a.label("Lb")
        a(f"s_waitcnt vmcnt(0)\n s_cmp_eq_u32 s33, 0\n s_cbranch_scc1 {sk}\n s_barrier")
        a(f"{sk}:")
        a(f"v_cmp_eq_u32 vcc, 0, v{VF}\n s_cmp_eq_u32 vcc_lo, 0\n s_cselect_b32 s52, 1, 0\n s_cmp_ge_u32 s44, {64-NG}\n s_cselect_b32 s52, 0, s52")
        a(f"s_cmp_lg_u32 s52, 0\n s_cselect_b32 s64, s46, s63\n s_add_u32 s65, s64, 4096")
        oacc = [OA, OA + 16, SX, SM]
        KQ = qkv_list(((0, RK), (2, RQ)), lambda m, hh: f"s{64+2*m+hh}")
        npv = o.get("npv", 8)

        def oepi(ct):
            A = oacc[ct]
            L = []
            for i in range(8):
                L.append(f"v_cvt_pk_bf16_f32 v{KM+8*ct+i}, v{A+2*i}, v{A+2*i+1}")
                if i & 3 == 3:
                    L.append(f"ds_write_b128 v{TMP}, v[{KM+8*ct+i-3}:{KM+8*ct+i}] offset:{(2*ct+(i>>2))*1024}")
            return L

        k = 0
        for ct in range(4):
            A = oacc[ct]
            E = oepi(ct - 1) if ct >= 1 else []
            for f in range(3):
                if f < 2:
                    a(f"v_mfma_f32_32x32x16_bf16 v[{A}:{A+15}], v[{RV+8*ct+4*f}:{RV+8*ct+4*f+3}], v[{PF+4*f}:{PF+4*f+3}], " + (f"v[{A}:{A+15}]" if f else "0"))
                else:
                    a(f"v_mfma_f32_32x32x8_bf16 v[{A}:{A+15}], v[{VM+2*ct}:{VM+2*ct+1}], v[{PM}:{PM+1}], v[{A}:{A+15}]")
                if (ct == 0 or f == 0) and k < npv:
                    a(KQ[k]); k += 1
                    if ct == 0 and k < npv:
                        a(KQ[k]); k += 1
                if f >= 1:
                    for x in E[5 * (f - 1):5 * f]:
                        a(x)
        a(f"buffer_load_dword v{VF}, v{VFO}, {WS}, s45 offen sc1\n buffer_load_dword v{VRW}, v{VZ}, {WS}, {'s47' if o.get('kl', 0) or o.get('pp', 0) else 's63'} offen sc1")
        for i in range(2, 6):
            a(f"s_add_u32 s{64+i}, s64, {i*4096}")
        for x in oepi(3):
            a(x)
        a("s_waitcnt lgkmcnt(0)")
        a(f"L_{T_}_bar:")
        a("s_add_u32 s36, s48, 8192\n s_add_u32 s37, s48, 16384\n s_add_u32 s38, s48, 24576\n s_mov_b32 s39, 0")
        ltrace(10)
        a("s_barrier")
        af = lambda j: f"v[{AFR[j%NB]}:{AFR[j%NB]+3}]"
        rd = lambda j: a(f"ds_read_b128 {af(j)}, v{VOB} offset:{(j&15)*1024}")
        acc = [SX, SM, OA, OA + 16]
        pack = lambda p: [f"v_cvt_pk_bf16_f32 v{acc[2*p]+r}, v{acc[2*p]+r}, v{acc[2*p+1]+r}\n buffer_store_dword v{acc[2*p]+r}, v{VP2S}, {WS}, {('s48', 's36', 's37', 's38')[r>>2]} offen offset:{(r&3)*1024+p*128}{st}" for r in range(16)]
        for j in range(NB - 1):
            rd(j)

        def wo_phase(fill):
            P0 = pack(0)
            for r in range(16):
                fill.setdefault(2 * (18 + r * 13 // 16) + (1 if r in (1, 6, 12) else 0), []).append(P0[r])
            for j in range(32):
                ks, p = j & 15, j >> 4
                if j + NB - 1 < 32:
                    rd(j + NB - 1)
                a(f"s_waitcnt lgkmcnt({min(NB-1, 31-j)})")
                for t in range(2):
                    A = acc[2 * p + t]
                    b = (ks * 4 + 2 * p + t) * 4
                    a(f"v_mfma_f32_32x32x16_bf16 v[{A}:{A+15}], {af(j)}, a[{b}:{b+3}], " + (f"v[{A}:{A+15}]" if ks else "0"))
                    for x in fill.get(2 * j + t, []):
                        a(x)
            a(f"v_xor_b32 v{VOB}, 0x4000, v{VOB}\n s_add_u32 s3, s49, s53")
            for x in pack(1):
                a(x)
            ltrace(11)
            a("s_waitcnt vmcnt(0)")
            a(f"buffer_store_dword v{VONE}, off, {WS}, s3{st}")

        a(f"s_cmp_ge_u32 s6, 2\n s_cbranch_scc1 L_{T_}_red")
        rest = KQ[k:] + qkv_list(((1, RV),), lambda m, hh: f"s{64+2*m+hh}")
        fill = {i: [x] for i, x in enumerate(rest)}
        n = len(rest)
        fill[n] = [f"s_waitcnt vmcnt({n})\n v_cmp_eq_u32 vcc, s54, v{VRW}"]
        fill[n + 1] = [f"s_cmp_eq_u64 vcc, 0\n s_cselect_b32 s39, {'s52' if o.get('kl', 0) or o.get('pp', 0) else 0}, 0\n s_cmp_lg_u32 s39, 0\n s_cselect_b32 s40, s47, s63"]
        for i, x in enumerate(km_list("s40")):
            fill[n + 2 + i] = [x]
        wo_phase(fill)
        a(f"s_branch L_{T_}_nx")
        a(f"L_{T_}_red:")
        wo_phase({0: [f"s_add_u32 s3, s51, s50\n buffer_load_dwordx4 v[{XP}:{XP+3}], v{VRW}, {WS}, s3 offen sc1"],
                  2: [f"s_add_u32 s3, s50, {OFF_Y}\n buffer_load_dwordx4 v[{YP}:{YP+3}], v{VRW}, {WS}, s3 offen sc1"],
                  4: [f"buffer_load_dword v{VF}, v{VL4}, {WS}, s49 offen sc1"],
                  6: [f"s_lshl_b32 s3, s44, 7\n s_add_u32 s3, s3, s34\n buffer_load_dword v{VF}, off, {WS}, s3 sc1"]})
        ltrace(12)
        row = dict(x=40, t=48, s=56, y=68, xo=60, ho=64)
        for i in range(4):
            unpack(a, XP + i, 40 + 2 * i, 41 + 2 * i)
            unpack(a, YP + i, 68 + 2 * i, 69 + 2 * i)
        wait_flags(a, VF, VL4, "s49", sleep=0)
        ltrace(13)
        G = 136
        a("s_mov_b32 s3, s48")
        for ld in range(8):
            for u in range(2):
                r = G + 8 * ld + 4 * u
                a(f"buffer_load_dwordx4 v[{r}:{r+3}], v{VP2L}, {WS}, s3 offen offset:{u*128} sc1")
            a("s_add_u32 s3, s3, 65536")
        a("s_barrier")
        for ld in range(8):
            a(f"s_waitcnt vmcnt({2*(7-ld)})")
            for u in range(2):
                r = G + 8 * ld + 4 * u
                a(f"v_mfma_f32_16x16x32_bf16 v[{32+4*u}:{35+4*u}], v[{SEL}:{SEL+3}], v[{r}:{r+3}], " + (f"v[{32+4*u}:{35+4*u}]" if ld else "0"))
        for i in range(4):
            A = 32 + 4 * (i & 1) + 2 * (i >> 1)
            a(f"v_cvt_pk_bf16_f32 v{56+i}, v{A}, v{A+1}")
        for i in range(4):
            unpack(a, 56 + i, 32 + 2 * i, 33 + 2 * i)
        for i in range(4):
            a(f"v_pk_add_f32 v[{40+2*i}:{41+2*i}], v[{40+2*i}:{41+2*i}], v[{32+2*i}:{33+2*i}]")
        for i in range(4):
            a(f"v_cvt_pk_bf16_f32 v{60+i}, v{40+2*i}, v{41+2*i}")
        ltrace(14)
        l1 = a.label("Lao")
        a(f"s_cmp_lg_u32 s7, 0\n s_cbranch_scc1 {l1}")
        for i in range(4):
            unpack(a, 60 + i, 40 + 2 * i, 41 + 2 * i)
        a(f"s_add_u32 s3, s50, {OFF_H+0x200000}\n s_add_u32 s40, s50, {OFF_X+0x200000}")
        rowfin(a, [row], mid=lambda: a(f"buffer_store_dwordx4 v[60:63], v{VRW}, {WS}, s40 offen sc1"))
        a(f"buffer_store_dwordx4 v[64:67], v{VHS}, {WS}, s3 offen sc1")
        a("s_waitcnt vmcnt(0)")
        a(f"s_branch L_{T_}_dn")
        a(f"{l1}:")
        a(f"buffer_store_dwordx4 v[60:63], v{VRW}, s[12:15], s50 offen")
        a(f"s_cmp_ge_u32 s44, {64-NG}\n s_cbranch_scc1 L_{T_}_nx")
        a(f"L_{T_}_dn:")
        a(f"s_lshr_b32 s3, s50, 8\n s_add_u32 s3, s3, s34")
        a(f"buffer_store_dword v{VONE}, off, {WS}, s3{st}")
        a(f"s_lshl_b32 s40, s44, 7\n s_add_u32 s41, s40, s34\n v_and_b32 v{TMP}, 0x7c, v{VL4}")
        wait_flags(a, VF, TMP, "s41", sleep=0)
        a(f"s_add_u32 s40, s40, s35")
        a(f"buffer_store_dword v{VONE}, v{TMP}, {WS}, s40 offen sc1")
        a(f"L_{T_}_nx:")
        ltrace(15)
        a(f"s_add_u32 s44, s44, {NG}\n s_add_u32 s49, s49, {NG*256}\n s_add_u32 s50, s50, {NG*32*1024}")
        a(f"s_cmp_lt_u32 s44, 64\n s_cbranch_scc1 L_{T_}")
        if o.get("trace"):
            for r in range(7):
                a(f"buffer_store_dword v{245+r}, v{VL4}, {WS}, s99 offen offset:{r*256}")
        a("s_endpgm")

    loop("pure")
    loop("mixed")
```

```python
import sys
sys.path.insert(0, "gen")
from asmlib import *
from layout import *
import hazard

PTR = lambda i: 64 + 2 * i
WS = "s[8:11]"
DBG = "s[28:31]"
TMO = "s98"
EPS = 0x3727C5AC


def poll_tail(a, loop):
    a(f"s_sub_u32 {TMO}, {TMO}, 1")
    a(f"s_cbranch_scc1 L_end")
    a(f"s_branch {loop}")


def wait_flags(a, vdst, voff, soff, imm=0, sleep=1, srd=WS):
    lp, dn = a.label("Lw"), a.label("Lwd")
    a(f"{lp}:")
    a(f"buffer_load_dword v{vdst}, v{voff}, {srd}, {soff} offen offset:{imm} sc1")
    a("s_waitcnt vmcnt(0)")
    a(f"v_cmp_eq_u32 vcc, 0, v{vdst}")
    a(f"s_cbranch_vccz {dn}")
    if sleep:
        a(f"s_sleep {sleep}")
    poll_tail(a, lp)
    a(f"{dn}:")


def wait_counter(a, vtmp, vz, imm, target):
    lp, dn = a.label("Lc"), a.label("Lcd")
    a(f"{lp}:")
    a(f"buffer_load_dword v{vtmp}, v{vz}, {DBG}, 0 offen offset:{imm} sc1")
    a("s_waitcnt vmcnt(0)")
    a(f"v_cmp_gt_u32 vcc, {target}, v{vtmp}")
    a(f"s_cbranch_vccz {dn}")
    a("s_sleep 2")
    poll_tail(a, lp)
    a(f"{dn}:")


def count_arrive(a, vtmp, vz, imm):
    a(f"v_mov_b32 v{vtmp}, 1")
    a("s_mov_b64 exec, 1")
    a(f"buffer_atomic_add v{vtmp}, v{vz}, {DBG}, 0 offen offset:{imm} sc1")
    a("s_mov_b64 exec, -1")


def trace(a, o, vtmp, vlane, tag):
    if not o.get("trace"):
        return
    a(("s_memtime" if o.get("cyc") else "s_memrealtime") + " s[96:97]\n s_waitcnt lgkmcnt(0)")
    a(f"s_and_b32 s96, s96, 0x0fffffff\n s_or_b32 s96, s96, {tag << 28:#x}")
    a(f"v_mov_b32 v{vtmp}, s96\n s_mov_b64 exec, 1")
    a(f"buffer_store_dword v{vtmp}, v{vlane}, {WS}, s99 offen")
    a("s_mov_b64 exec, -1\n s_add_u32 s99, s99, 4")


def strace(a, o, k):
    if o.get("ptrace"):
        a(f"s_memrealtime s[96:97]\n s_waitcnt lgkmcnt(0)\n s_mov_b32 s{50+k}, s96")


def allreduce(a, rs, op="v_add_f32", fill=()):
    fill = list(fill)
    per = -(-len(fill) // 6)

    def gap():
        for _ in range(per):
            if fill:
                a(fill.pop(0))

    for pat in ("quad_perm:[1,0,3,2]", "quad_perm:[2,3,0,1]", "row_half_mirror", "row_mirror"):
        gap()
        for r, t in rs:
            a(f"{op}_dpp v{r}, v{r}, v{r} {pat} row_mask:0xf bank_mask:0xf")
    for sw in ("v_permlane16_swap_b32", "v_permlane32_swap_b32"):
        for r, t in rs:
            a(f"v_mov_b32 v{t}, v{r}")
        gap()
        for r, t in rs:
            a(f"{sw} v{t}, v{r}")
        for r, t in rs:
            a(f"{op} v{r}, v{r}, v{t}")


def unpack(a, p, lo, hi):
    a(f"v_lshlrev_b32 v{lo}, 16, v{p}")
    a(f"v_and_b32 v{hi}, 0xffff0000, v{p}")


def rnd1(a, r):
    a(f"v_cvt_pk_bf16_f32 v{r}, v{r}, v{r}")
    a(f"v_and_b32 v{r}, 0xffff0000, v{r}")


def pk(a, op, d, x, y, mod=""):
    a(f"v_pk_{op}_f32 v[{d}:{d+1}], v[{x}:{x+1}], v[{y}:{y+1}]{mod}")


BC = " op_sel_hi:[1,0]"
NBC = " op_sel_hi:[1,0] neg_lo:[0,1] neg_hi:[0,1]"


def layernorm(a, rows, key):
    for R in rows:
        x, s = R["x"], R["s"]
        pk(a, "add", s, x, x + 2); pk(a, "add", s + 2, x + 4, x + 6); pk(a, "add", s, s, s + 2)
        a(f"v_add_f32 v{s}, v{s}, v{s+1}")
    allreduce(a, [(R["s"], R["s"] + 1) for R in rows])
    for R in rows:
        x, t, s = R["x"], R["t"], R["s"]
        a(f"v_mul_f32 v{s}, 0x3b000000, v{s}")
        for i in range(0, 8, 2):
            pk(a, "add", t + i, x + i, s, NBC)
        pk(a, "mul", s + 2, t, t)
        for i in range(2, 8, 2):
            a(f"v_pk_fma_f32 v[{s+2}:{s+3}], v[{t+i}:{t+i+1}], v[{t+i}:{t+i+1}], v[{s+2}:{s+3}]")
        a(f"v_add_f32 v{s+2}, v{s+2}, v{s+3}")
    fill = []
    for R in rows:
        x, t, s = R["x"], R["t"], R["s"]
        fill += [f"v_cvt_pk_bf16_f32 v{s}, v{s}, v{s}", f"v_and_b32 v{s}, 0xffff0000, v{s}"]
        fill += [f"v_pk_add_f32 v[{t+i}:{t+i+1}], v[{x+i}:{x+i+1}], v[{s}:{s+1}]{NBC}" for i in range(0, 8, 2)]
        for i in range(0, 8, 2):
            fill += [f"v_cvt_pk_bf16_f32 v{t+i+1}, v{t+i}, v{t+i+1}", f"v_lshlrev_b32 v{t+i}, 16, v{t+i+1}", f"v_and_b32 v{t+i+1}, 0xffff0000, v{t+i+1}"]
    allreduce(a, [(R["s"] + 2, R["s"] + 3) for R in rows], fill=fill)
    for R in rows:
        t, s = R["t"], R["s"]
        a(f"v_mul_f32 v{s+2}, 0x3b000000, v{s+2}")
        rnd1(a, s + 2)
        a(f"v_add_f32 v{s+2}, {EPS:#x}, v{s+2}")
        rnd1(a, s + 2)
        a(f"v_sqrt_f32 v{s+2}, v{s+2}")
        rnd1(a, s + 2)
        a(f"v_rcp_f32 v{s+2}, v{s+2}")
        for i in range(0, 8, 2):
            pk(a, "mul", t + i, t + i, s + 2, BC)
        if key:
            for i in range(4):
                a(f"v_cvt_pk_bf16_f32 v{R[key]+i}, v{t+2*i}, v{t+2*i+1}")


def rowfin(a, rows, first=True, mid=None):
    if first:
        layernorm(a, rows, None)
    for R in rows:
        x, t, y, xo = R["x"], R["t"], R["y"], R["xo"]
        for i in range(0, 8, 2):
            a(f"v_pk_fma_f32 v[{x+i}:{x+i+1}], v[{t+i}:{t+i+1}], v[{y+i}:{y+i+1}], v[{x+i}:{x+i+1}]")
        for i in range(4):
            a(f"v_cvt_pk_bf16_f32 v{xo+i}, v{x+2*i}, v{x+2*i+1}")
        for i in range(4):
            unpack(a, xo + i, x + 2 * i, x + 2 * i + 1)
    if mid:
        mid()
    layernorm(a, rows, "ho")


def role_pre(a, o):
    KK, KC = 0x0, 4160
    KKS = 4 * KC
    KVR, KVS = 0x10400, 4608
    YS, YR, RS = 0x0, 0x4800, 1040
    TA = YG = 0x14C00
    YB, KVG = 16384 + o.get("ypad", 256), 4096 + o.get("kpad", 128)
    a.srd(12, PTR(1), S * D * 2)
    a.srd(16, PTR(2), S * D * 2)
    a.srd(20, PTR(4), S * D * 2)
    a.srd(24, PTR(0), S * D * 2)
    a.srd(40, PTR(3), D * 4 * 2)
    a(f"s_lshl_b32 s3, s7, 3\n s_load_dwordx2 s[36:37], s[{PTR(5)}:{PTR(5)+1}], s3")
    a("v_and_b32 v1, 63, v0\n v_lshlrev_b32 v2, 4, v1")
    a("v_and_b32 v3, 15, v0\n v_bfe_u32 v4, v0, 4, 2")
    a("s_lshr_b32 s44, s7, 5\n s_lshl_b32 s45, s5, 16\n s_lshl_b32 s3, s44, 8\n s_add_u32 s45, s45, s3")
    a("v_lshrrev_b32 v8, 4, v0\n v_lshlrev_b32 v6, 12, v8\n v_lshl_add_u32 v6, v3, 4, v6\n v_add_u32 v6, s45, v6\n v_subrev_u32 v5, 3072, v6")
    KB, VB, SB = 12, 40, 56
    for i in range(7):
        vo, im = (5, i * 1024) if i < 3 else (6, (i - 3) * 1024)
        a(f"buffer_load_dwordx4 v[{KB+4*i}:{KB+4*i+3}], v{vo}, s[12:15], 0 offen offset:{im}")
    for i in range(4):
        a(f"buffer_load_dwordx4 v[{VB+4*i}:{VB+4*i+3}], v6, s[16:19], 0 offen offset:{i*1024}")
    a("v_lshlrev_b32 v7, 6, v3\n s_lshl_b32 s3, s44, 10")
    for i in range(4):
        a(f"buffer_load_dwordx4 v[{SB+4*i}:{SB+4*i+3}], v7, s[40:43], s3 offen offset:{i*16}")
    a("s_lshl_b32 s38, s7, 2\n s_add_u32 s38, s38, s6")
    a("s_lshl_b32 s39, s38, 12")
    a(f"s_mul_i32 s33, s6, {KKS}")

    def kcopy(cp, parts=range(4)):
        a(f"s_add_u32 m0, s33, {KK+32+cp*KC}\n s_add_u32 s3, s39, {2*cp}")
        for i in parts:
            a(f"buffer_load_dwordx4 v2, s[20:23], s3 offen offset:{i*1024} lds")

    kcopy(0)
    XP = 100

    def xrows():
        a("s_lshl_b32 s46, s32, 4\n s_lshl_b32 s3, s6, 2\n s_add_u32 s46, s46, s3\n s_lshl_b32 s47, s46, 10")
        for r in range(4):
            a(f"buffer_load_dwordx4 v[{XP+4*r}:{XP+4*r+3}], v2, s[24:27], s47 offen offset:{r*1024}")

    xrows()
    a(f"s_mul_i32 s45, s44, {128*KVG}\n s_add_u32 s45, s45, {OFF_KVR+3968}\n s_lshl_b32 s3, s5, 7\n s_sub_u32 s45, s45, s3")
    a(f"s_mov_b32 s48, {KVG}\n s_mov_b32 s49, {YB}")
    a("v_lshrrev_b32 v117, 3, v0\n v_and_b32 v116, 7, v0\n v_lshlrev_b32 v116, 4, v116\n v_mad_u32_u24 v118, v117, s49, v116\n v_mad_u32_u24 v116, v117, s48, v116")
    a("v_mov_b32 v10, 0\n v_mov_b32 v11, 0")
    a(f"s_mul_i32 s34, s6, {KVS}\n s_add_u32 s34, s34, {KVR}")
    a("v_lshlrev_b32 v7, 3, v1\n v_add_u32 v9, s34, v7")
    a("ds_write_b64 v9, v[10:11] offset:4096")
    a("v_and_b32 v9, 24, v7\n v_add_u32 v9, s33, v9")
    a(f"ds_write_b64 v9, v[10:11] offset:{KK}")
    a("s_waitcnt lgkmcnt(0)")
    a("s_bitcmp1_b32 s6, 1\n s_cselect_b32 s36, s37, s36")
    a("s_lshl_b32 s37, s36, 16\n s_and_b32 s36, s36, 0xffff0000")
    a("s_bitcmp1_b32 s6, 0\n s_cselect_b32 s36, s36, s37")
    a(f"v_mul_u32_u24 v9, 1040, v3\n v_lshlrev_b32 v8, 3, v8\n v_sub_u32 v9, v9, v8\n v_add_u32 v9, {TA+120}, v9")
    strace(a, o, 0)
    a("s_waitcnt vmcnt(8)")
    strace(a, o, 1)
    for c in range(8):
        up = (lambda d, s: a(f"v_lshlrev_b32 v{d}, 16, v{s}")) if c % 2 == 0 else (lambda d, s: a(f"v_and_b32 v{d}, 0xffff0000, v{s}"))
        for i in range(7):
            up(72 + i, KB + 4 * i + (c >> 1))
        for i in range(4):
            up(80 + i, VB + 4 * i + (c >> 1))
        unpack(a, SB + 2 * c, 84, 85)
        unpack(a, SB + 2 * c + 1, 86, 87)
        for i in range(4):
            a(f"v_mul_f32 v{88+i}, v87, v{72+i}")
        for tap in (2, 1, 0):
            for i in range(4):
                a(f"v_fmac_f32 v{88+i}, v{84+tap}, v{72+i+3-tap}")
        pk(a, "mul", 88, 88, 80); pk(a, "mul", 90, 90, 82)
        P = 92 + 2 * (c & 3)
        a(f"v_cvt_pk_bf16_f32 v{P}, v91, v90\n v_cvt_pk_bf16_f32 v{P+1}, v89, v88")
        a(f"ds_write_b64 v9, v[{P}:{P+1}] offset:{c*128}")
    a(f"v_lshlrev_b32 v7, 4, v0\n s_lshl_b32 s3, s6, 4\n s_add_u32 s3, s3, {TA}\n v_add_u32 v7, s3, v7")
    a("s_waitcnt lgkmcnt(0)\n s_barrier")
    strace(a, o, 2)
    a(f"buffer_load_dword v119, off, {DBG}, 0 sc1")
    for i in range(4):
        a(f"ds_read_b128 v[{12+4*i}:{15+4*i}], v7 offset:{i*4160}")
    for i in range(4):
        a(f"s_waitcnt lgkmcnt({3-i})")
        a(f"buffer_store_dwordx4 v[{12+4*i}:{15+4*i}], v116, {WS}, s45 offen sc1")
        a(f"s_add_u32 s45, s45, {32*KVG}")
    a(f"v_lshlrev_b32 v8, 1, v3\n v_lshl_add_u32 v8, v4, 4, v8\n v_add_u32 v8, s33, v8\n v_mov_b32 v5, 0")
    for cp in (2, 1, 3):
        kcopy(cp, [0])
    a("s_waitcnt vmcnt(3)")
    if not o.get("staged"):
        sk = a.label("Lsk")
        a(f"v_cmp_gt_u32 vcc, 32, v119\n s_cbranch_vccz {sk}")
        wait_counter(a, 6, 5, 0, 32)
        a(f"{sk}:")
    a("s_lshl_b32 s48, s7, 7\n s_lshl_b32 s3, s6, 29\n s_add_u32 s48, s48, s3\n v_mov_b32 v7, 1")
    a(f"s_add_u32 s3, s48, {FPA}")
    a("s_barrier")
    a(f"buffer_store_dword v7, off, {WS}, s3 sc1")
    strace(a, o, 3)
    a("s_waitcnt vmcnt(1)")
    a(f"ds_read_b128 a[0:3], v8 offset:{KK+2}")
    a(f"v_add_u32 v9, 1, v3\n v_and_b32 v8, 3, v9\n v_mul_u32_u24 v8, {KC}, v8\n v_lshrrev_b32 v9, 2, v9\n v_lshl_add_u32 v8, v9, 3, v8")
    a("v_lshl_add_u32 v8, v4, 4, v8\n v_add_u32 v37, s33, v8")

    def afr(rng):
        for i in rng:
            a(f"ds_read_b64 a[{4*i}:{4*i+1}], v37 offset:{64*i}\n ds_read_b64 a[{4*i+2}:{4*i+3}], v37 offset:{64*i+8}")
            if i % 4 == 3:
                a("s_waitcnt lgkmcnt(6)")

    afr(range(1, 8))
    NB = 6
    BF, ACC = 10, 40
    a(f"v_lshlrev_b32 v8, 5, v3\n v_sub_u32 v8, {4064-64*56}, v8\n v_lshl_add_u32 v8, v4, 4, v8\n v_add_u32 v8, s34, v8")
    a(f"v_lshlrev_b32 v9, 5, v3\n v_lshl_add_u32 v9, v4, 3, v9\n v_sub_u32 v34, {4088-7*512}, v9\n v_add_u32 v34, s34, v34")
    a(f"v_mul_u32_u24 v35, 144, v3\n v_lshl_add_u32 v35, v4, 3, v35\n s_lshl_b32 s3, s6, 5\n s_add_u32 s3, s3, {YG}\n v_add_u32 v35, s3, v35")
    a(f"v_lshrrev_b32 v9, 3, v0\n v_add_u32 v36, v0, v9\n v_lshlrev_b32 v36, 4, v36\n v_add_u32 v36, {YG}, v36")
    a(f"v_and_b32 v9, 7, v0\n v_lshlrev_b32 v9, 7, v9\n s_lshl_b32 s3, s44, 12\n s_add_u32 s49, s3, {FPA}\n s_mul_i32 s45, s38, {KVG}\n s_add_u32 s45, s45, {OFF_KVR}")
    strace(a, o, 4)
    wait_flags(a, 6, 9, "s49")
    strace(a, o, 5)
    a(f"s_mov_b32 m0, s34\n s_lshl_b32 s35, s7, 7\n s_add_u32 s35, s35, {OFF_YT}")
    a(f"buffer_load_dwordx4 v2, {WS}, s45 offen offset:3072 sc1 lds")
    a("s_waitcnt vmcnt(0) lgkmcnt(0)")

    def conv(ms, tiles, hook=None):
        rd = lambda j: a(f"ds_read_b128 v[{BF+4*(j%NB)}:{BF+4*(j%NB)+3}], v8 offset:{64*(56-ms[j])}")
        for j in range(NB - 1):
            rd(j)
        started = set()
        for j, m in enumerate(ms):
            if j + NB - 1 < len(ms):
                rd(j + NB - 1)
            a(f"s_waitcnt lgkmcnt({min(NB-1, len(ms)-1-j)})")
            for T in tiles:
                ai = 8 * T - m
                if 0 <= ai <= 63:
                    c = f"v[{ACC+4*T}:{ACC+4*T+3}]" if T in started else "0"
                    started.add(T)
                    a(f"v_mfma_f32_16x16x32_bf16 v[{ACC+4*T}:{ACC+4*T+3}], a[{4*ai}:{4*ai+3}], v[{BF+4*(j%NB)}:{BF+4*(j%NB)+3}], {c}")
            if hook:
                hook(j)

    def finish(tiles):
        for T in tiles:
            a(f"ds_read_b64 v[{80+2*T}:{81+2*T}], v34 offset:{(7-T)*512}")
        a("s_waitcnt lgkmcnt(0)")
        for T in tiles:
            A = ACC + 4 * T
            unpack(a, 81 + 2 * T, 11, 10)
            unpack(a, 80 + 2 * T, 13, 12)
            for r in range(4):
                a(f"v_fmac_f32 v{A+r}, s36, v{10+r}")
            a(f"v_cvt_pk_bf16_f32 v{A}, v{A}, v{A+1}\n v_cvt_pk_bf16_f32 v{A+1}, v{A+2}, v{A+3}")
            a(f"ds_write_b64 v35, v[{A}:{A+1}] offset:{T*2304}")
        a("s_waitcnt lgkmcnt(0)\n s_barrier")

    def arrive(off):
        a(f"s_lshl_b32 s3, s44, 7\n s_add_u32 s3, s3, {FPB+512+off}\n v_mov_b32 v6, 1\n s_mov_b64 exec, 1")
        a(f"buffer_atomic_add v6, off, {WS}, s3 sc0 sc1")
        a("s_mov_b64 exec, -1")

    def announce(flag, sk):
        a(f"s_lshl_b32 s3, s44, 7\n s_add_u32 s3, s3, {flag}\n s_waitcnt vmcnt(0)")
        a(f"v_readfirstlane_b32 s37, v6\n s_cmp_lg_u32 s37, 31\n s_cbranch_scc1 {sk}")
        a(f"buffer_store_dword v7, off, {WS}, s3 sc1")

    conv(list(range(0, -8, -1)), [0])
    finish([0])
    sk = a.label("Lsk")
    a(f"s_cmp_lg_u32 s6, 0\n s_cbranch_scc1 {sk}")
    a(f"ds_read_b128 v[72:75], v36\n ds_read_b128 v[76:79], v36 offset:1152\n s_add_u32 s3, s35, {8*YB}\n s_waitcnt lgkmcnt(0)")
    a(f"buffer_store_dwordx4 v[72:75], v118, {WS}, s35 offen sc1\n buffer_store_dwordx4 v[76:79], v118, {WS}, s3 offen sc1")
    a("s_waitcnt vmcnt(0)")
    arrive(64)
    announce(FPE, sk)
    a(f"{sk}:")
    if o.get("eb", 0):
        a("s_barrier")
    for cp in (2, 1, 3):
        kcopy(cp, [1, 2, 3])
    a("v_and_b32 v9, 31, v0\n v_lshlrev_b32 v9, 7, v9\n s_mov_b32 s39, s35")
    wait_flags(a, 6, 9, "s49")
    a("s_mov_b32 m0, s34")
    for i in range(3):
        a(f"buffer_load_dwordx4 v2, {WS}, s45 offen offset:{i*1024} sc1 lds")
    afr(range(8, 64))
    a("s_waitcnt vmcnt(0) lgkmcnt(0)")
    strace(a, o, 6)
    conv(list(range(-7, 57)), range(1, 8))
    strace(a, o, 7)
    finish(range(1, 8))
    strace(a, o, 8)
    for i in range(4):
        a(f"ds_read_b128 v[{12+4*i}:{15+4*i}], v36 offset:{i*4608}")
    for i in range(4):
        a(f"s_waitcnt lgkmcnt({3-i})")
        a(f"buffer_store_dwordx4 v[{12+4*i}:{15+4*i}], v118, {WS}, s39 offen sc1")
        a(f"s_add_u32 s39, s39, {32*YB}")
    a("s_waitcnt vmcnt(0)\n s_barrier")
    sk = a.label("Lsk")
    a(f"s_cmp_lg_u32 s6, 0\n s_cbranch_scc1 {sk}")
    arrive(0)
    announce(FPB, sk)
    a(f"{sk}:")
    a(f"s_mov_b32 s48, {FPB}\n s_cmp_ge_u32 s32, 128\n s_cbranch_scc1 L_pre_end")
    if not o.get("staged") and o.get("hc", 1) >= 0:
        a(f"s_lshl_b32 s49, s5, 7\n s_add_u32 s49, s49, {FB + o.get('hc', 1) * 4096}")
        wait_flags(a, 6, 5, "s49", sleep=8)
    a("s_branch L_pre_c")
    a("L_pre_early:")
    a.srd(24, PTR(0), S * D * 2)
    a("v_and_b32 v1, 63, v0\n v_lshlrev_b32 v2, 4, v1\n v_and_b32 v3, 15, v0\n v_bfe_u32 v4, v0, 4, 2\n v_mov_b32 v5, 0")
    a(f"s_mov_b32 s48, {FPE}")
    if not o.get("staged"):
        wait_counter(a, 6, 5, 0, 32)
    a("L_pre_x:")
    xrows()
    a("s_waitcnt vmcnt(0)")
    a("L_pre_c:")
    strace(a, o, 9)
    rows = []
    for r in range(4):
        b = 120 + 32 * r
        rows.append(dict(x=b, t=b + 8, s=b + 16, yp=b + 20, xo=b + 24, ho=b + 28, y=40 + 8 * r))
        for i in range(4):
            unpack(a, XP + 4 * r + i, b + 2 * i, b + 2 * i + 1)
    layernorm(a, rows, None)
    a(f"s_lshl_b32 s3, s6, 7\n s_add_u32 s49, s3, s48")
    wait_flags(a, 6, 5, "s49")
    strace(a, o, 10)
    a(f"s_mul_i32 s35, s32, {YB}\n s_add_u32 s35, s35, {OFF_YT}\n s_lshl_b32 s3, s6, 12\n s_add_u32 s35, s35, s3\n s_add_u32 s37, s3, {YS}")
    a("s_mov_b32 m0, s37")
    for i in range(4):
        a(f"buffer_load_dwordx4 v2, {WS}, s35 offen offset:{i*1024} sc1 lds")
    a("v_lshl_add_u32 v6, v1, 3, s37")
    a(f"v_mul_u32_u24 v7, {RS}, v3\n v_lshl_add_u32 v7, v4, 3, v7\n s_lshl_b32 s3, s6, 8\n v_add_u32 v7, s3, v7")
    a("s_waitcnt vmcnt(0)")
    for i in range(8):
        a(f"ds_read_b64_tr_b16 v[{10+2*i}:{11+2*i}], v6 offset:{i*512}")
    for i in range(8):
        a(f"s_waitcnt lgkmcnt(7)")
        a(f"ds_write_b64 v7, v[{10+2*i}:{11+2*i}] offset:{YR+32*i}")
    a("s_waitcnt lgkmcnt(0)\n s_barrier")
    strace(a, o, 11)
    a(f"s_mul_i32 s3, s6, {4*RS}\n v_add_u32 v7, s3, v2")
    for r in range(4):
        a(f"ds_read_b128 v[{rows[r]['yp']}:{rows[r]['yp']+3}], v7 offset:{YR+r*RS}")
    a("s_waitcnt lgkmcnt(0)")
    a(f"s_add_u32 s35, s47, {OFF_Y}")
    for r in range(4):
        a(f"buffer_store_dwordx4 v[{rows[r]['yp']}:{rows[r]['yp']+3}], v2, {WS}, s35 offen offset:{r*1024} sc1")
        for i in range(4):
            unpack(a, rows[r]['yp'] + i, rows[r]['y'] + 2 * i, rows[r]['y'] + 2 * i + 1)
    a(f"s_add_u32 s35, s47, {OFF_X}\n s_add_u32 s36, s47, {OFF_H}")
    rowfin(a, rows, first=False, mid=lambda: [a(f"buffer_store_dwordx4 v[{R['xo']}:{R['xo']+3}], v2, {WS}, s35 offen offset:{r*1024} sc1") for r, R in enumerate(rows)])
    strace(a, o, 12)
    for r in range(4):
        a(f"s_add_u32 s3, s46, {r}\n s_and_b32 s3, s3, 15\n s_lshl_b32 s3, s3, 4")
        a(f"v_xor_b32 v{10+r}, s3, v2")
        a(f"buffer_store_dwordx4 v[{rows[r]['ho']}:{rows[r]['ho']+3}], v{10+r}, {WS}, s36 offen offset:{r*1024} sc1")
    a(f"s_lshl_b32 s35, s32, 6\n s_add_u32 s35, s35, {FH}\n s_lshl_b32 s3, s6, 29\n s_add_u32 s35, s35, s3")
    a("v_mov_b32 v16, 1\n v_lshlrev_b32 v17, 2, v3")
    a("s_waitcnt vmcnt(0)\n s_barrier")
    a(f"buffer_store_dword v16, v17, {WS}, s35 offen sc1")
    strace(a, o, 13)
    a("s_sub_u32 s3, s32, 16\n s_add_u32 s32, s32, 32\n s_cmp_lt_u32 s3, 64\n s_cbranch_scc1 L_pre_x")
    a("L_pre_end:")
    if o.get("ptrace"):
        for k in range(14):
            a(f"s_and_b32 s3, s{50+k}, 0x0fffffff\n s_or_b32 s3, s3, {2 << 28:#x}\n v_mov_b32 v6, s3\n buffer_store_dword v6, off, {WS}, s99\n s_add_u32 s99, s99, 4")
    trace(a, o, 6, 1, 5)


def build(o):
    from roles import role_qkv, role_chain, role_ao
    roles = o["roles"]
    a = Asm()
    a("s_cmp_ge_u32 s2, 256\n s_cbranch_scc1 L_end")
    a("s_load_dwordx16 s[64:79], s[0:1], 0\n s_load_dwordx16 s[80:95], s[0:1], 64")
    a("s_and_b32 s4, s2, 7\n s_lshr_b32 s5, s2, 3")
    tm = o.get("tm", 0x36274150)
    if tm != 0x76543210:
        a(f"s_lshl_b32 s4, s4, 2\n s_lshr_b32 s4, {tm:#x}, s4\n s_and_b32 s4, s4, 7")
    a("v_lshrrev_b32 v1, 6, v0\n s_nop 0\n v_readfirstlane_b32 s6, v1")
    a(f"s_mov_b32 {TMO}, {o.get('tmo', 1 << 20)}")
    a("s_waitcnt lgkmcnt(0)")
    a.srd(8, PTR(15), WS_BYTES)
    a.srd(28, PTR(14), 256)
    if o.get("trace"):
        a(f"s_lshl_b32 s99, s5, 3\n s_add_u32 s99, s99, s4\n s_lshl_b32 s99, s99, 2\n s_add_u32 s99, s99, s6\n s_lshl_b32 s99, s99, 12\n s_add_u32 s99, s99, {OFF_TR}")
        a("v_and_b32 v1, 63, v0")
        trace(a, o, 2, 1, 1)
    if not o.get("staged"):
        a(f"s_cmp_lg_u32 s4, {T_CHAIN[1]}\n s_cbranch_scc1 L_nc")
        a("v_and_b32 v1, 63, v0\n v_lshlrev_b32 v1, 4, v1")
        for r in range(4, 8):
            a(f"v_mov_b32 v{r}, 0")
        a("s_lshl_b32 s3, s5, 2\n s_add_u32 s3, s3, s6\n s_lshl_b32 s3, s3, 10")
        for i in (4, 0, 1, 2, 3):
            a(f"s_add_u32 s7, s3, {i*0x20000}\n buffer_store_dwordx4 v[4:7], v1, {WS}, s7 offen sc1")
        a("s_waitcnt vmcnt(0)\n s_barrier")
        a("s_cmp_lg_u32 s6, 0\n s_cbranch_scc1 L_nc0")
        count_arrive(a, 2, 4, 0)
        a("L_nc0:")
        if o.get("cwo", 1):
            a("s_barrier\n v_lshlrev_b32 v2, 3, v1\n s_lshl_b32 s3, s3, 5")
            if not o.get("c1q", 0):
                a("v_bfe_u32 v9, v0, 1, 5\n v_lshlrev_b32 v9, 10, v9\n v_and_b32 v10, 1, v0\n v_lshl_add_u32 v9, v10, 7, v9")
                for m in (9, 10, 8):
                    a.srd(20, PTR(m), D * H * DH * 2)
                    for cls in (1, 3, 0, 2)[:o.get("ncl", 1)]:
                        a(f"buffer_load_dword v127, v9, s[20:23], s3 offen offset:{256*cls}")
            a.srd(20, PTR(11), D * H * DH * 2)
            for i in range(4):
                a("buffer_load_dword v127, v2, s[20:23], s3 offen\n s_add_u32 s3, s3, 8192")
            if o.get("h1", 2):
                wait_counter(a, 2, 4, 0, 32)
                a(f"s_mov_b32 s3, {(0, FPE, FPB, FB)[o.get('h1', 2)]}")
                wait_flags(a, 2, 4, "s3", sleep=8)
        a("L_nc:")
    if "pre" in roles:
        a("s_cmp_lg_u32 s4, 3\n s_cbranch_scc1 L_nq\n s_cmp_lt_u32 s5, 16\n s_cbranch_scc1 L_main")
        a("s_and_b32 s32, s5, 15")
        if o.get("c1q", 0):
            a("s_and_b32 s32, s5, 15\n s_lshl_b32 s3, s32, 2\n s_add_u32 s3, s3, s6\n s_lshl_b32 s3, s3, 15\n s_add_u32 s41, s3, 0x200000")
            a("v_bfe_u32 v9, v0, 1, 5\n v_lshlrev_b32 v9, 10, v9\n v_and_b32 v10, 1, v0\n v_lshl_add_u32 v9, v10, 7, v9")
            for m in (9, 10):
                a.srd(20, PTR(m), D * H * DH * 2)
                a("buffer_load_dword v10, v9, s[20:23], s3 offen offset:256\n buffer_load_dword v10, v9, s[20:23], s41 offen offset:256")
        a("s_branch L_pre_early")
        a("L_nq:")
        a("s_lshr_b32 s3, 0xe2, s4\n s_bitcmp0_b32 s3, 0\n s_cbranch_scc1 L_main")
        a("s_mov_b32 s32, 128\n s_cmp_eq_u32 s4, 5\n s_cselect_b32 s32, 16, s32")
        a("s_lshr_b32 s3, s5, 4\n s_add_u32 s3, s3, s4\n s_cmp_eq_u32 s3, 8\n s_cselect_b32 s32, 96, s32\n s_add_u32 s32, s32, s5")
        a("s_max_u32 s7, s4, 4\n s_and_b32 s7, s7, 3\n s_lshl_b32 s7, s7, 5\n s_add_u32 s7, s7, s5")
        role_pre(a, o)
        if not o.get("staged") and o.get("hold", 1):
            a("s_lshr_b32 s3, s5, 4\n s_add_u32 s3, s3, s4\n s_cmp_eq_u32 s4, 7\n s_cselect_b32 s3, s3, s4")
            a("s_cmp_lt_u32 s3, 4\n s_cbranch_scc1 L_main\n s_cmp_eq_u32 s3, 7\n s_cbranch_scc1 L_main")
            if o.get("hk", 0) < 0:
                a("s_cmp_eq_u32 s3, 6\n s_cbranch_scc1 L_main")
            a(f"s_cmp_eq_u32 s3, 6\n s_cselect_b32 s49, {o.get('hk', 0)}, {o.get('ha', 5)}\n s_lshl_b32 s49, s49, 12")
            a(f"s_lshl_b32 s3, s5, 7\n s_add_u32 s49, s49, s3")
            wait_flags(a, 6, 5, "s49", sleep=8)
    a("L_main:")
    a("s_lshr_b32 s7, s4, 2\n s_lshr_b32 s3, s5, 4\n s_and_b32 s40, s4, 3\n s_cmp_eq_u32 s40, 3\n s_cselect_b32 s7, s3, s7")
    a("s_lshl_b32 s3, s7, 3\n s_add_u32 s3, s3, s4")
    for l in (0, 1):
        if f"chain{l}" in roles:
            a(f"s_cmp_eq_u32 s4, {T_CHAIN[l]}\n s_cbranch_scc1 L_chain")
        if f"ao{l}" in roles:
            a(f"s_cmp_eq_u32 s4, {T_AO[l]}\n s_cbranch_scc1 L_ao")
            a(f"s_cmp_eq_u32 s3, {7+8*l}\n s_cbranch_scc1 L_ao")
        if f"qkv{l}" in roles:
            a(f"s_cmp_eq_u32 s4, {T_KV[l]}\n s_cbranch_scc1 L_qkv")
            a(f"s_cmp_eq_u32 s3, {3+8*l}\n s_cbranch_scc1 L_qkv")
    a("L_end:\n s_endpgm")
    if roles & {"qkv0", "qkv1"}:
        a("L_qkv:")
        role_qkv(a, o)
        a("s_endpgm")
    if roles & {"ao0", "ao1"}:
        a("L_ao:")
        role_ao(a, o)
        a("s_endpgm")
    if roles & {"chain0", "chain1"}:
        a("L_chain:")
        role_chain(a, o)
        a("s_endpgm")
    body = hazard.fix(a.text())
    errs = hazard.check(body)
    if errs:
        raise SystemExit("hazards:\n" + "\n".join(errs))
    name = KNAME + "_kernel"
    hdr = open("header.txt").read()
    hdr += "; @launch grid=(256,1,1) block=(256,1,1) lds=163840\n.amdgcn_target \"amdgcn-amd-amdhsa--gfx950\"\n"
    return hdr + kernel_header(name) + body + "\n" + kernel_desc(name, 512, 256), name


ALL = {"pre", "qkv0", "qkv1", "chain0", "chain1", "ao0", "ao1"}

if __name__ == "__main__":
    txt, name = build(dict(roles=ALL))
    open(f"cdna_kernels/{KNAME}.s", "w").write(txt)
    print("written", len(txt), "bytes")
```
